```python
import torch

def _softmax(x, axis=-1):
    return torch.softmax(x, dim=axis)
def _gelu(x):
    return torch.nn.functional.gelu(x, approximate="tanh")
def _silu(x):
    return torch.nn.functional.silu(x)
def _sigmoid(x):
    return torch.sigmoid(x)
def _layernorm(x, axis=-1, eps=1e-5):
    m = x.mean(dim=axis, keepdim=True)
    v = x.var(dim=axis, keepdim=True, unbiased=False)
    return (x - m) / torch.sqrt(v + eps)
def _scatter_add(tgt, idx, src, axis=0):
    return tgt.clone().index_add_(axis, idx, src)
def _segment_sum(src, seg, n):
    out = torch.zeros((n,) + src.shape[1:], dtype=src.dtype)
    return out.index_add_(0, seg, src)
def _pad(x, pw):
    flat = tuple(v for pair in reversed(pw) for v in pair)
    return torch.nn.functional.pad(x, flat)

kernel_name = 'parallel_sum__sliding_block_cached__dense_activation_silu__decode'

def setup_inputs():

    _w = (lambda a: (lambda t: t.to(torch.bfloat16) if t.is_floating_point() else t)(torch.as_tensor(a)))
    def _A_setup():
        B, Sq, D = 1, 1, 512
        Hq, Hkv, Sk, Dh = 32, 32, 8192, 128
        assert Hq % Hkv == 0, (Hq, Hkv)
        return {
            "x": _w((lambda *s: torch.randn(*s, dtype=torch.bfloat16) * 0.05)(B, Sq, D)),
            "k_cache": _w((lambda *s: torch.randn(*s, dtype=torch.bfloat16) * 3.2)(B, Hkv, Sk, Dh)),
            "v_cache": _w((lambda *s: torch.randn(*s, dtype=torch.bfloat16) * 0.8)(B, Hkv, Sk, Dh)),
            "wq": _w((lambda *s: torch.randn(*s, dtype=torch.bfloat16) * 3.2)(D, Hq * Dh) * (D ** -0.5)),
            "wo": _w((lambda *s: torch.randn(*s, dtype=torch.bfloat16) * 0.8)(Hq * Dh, D) * ((Hq * Dh) ** -0.5)),
        }
    _A_in = _A_setup()

    def _B_setup():
        B, S, D, F = 1, 1, 512, 1376
        return {
            "x": _w((lambda *s: torch.randn(*s, dtype=torch.bfloat16) * 0.05)(B, S, D)),
            "w1": _w((lambda *s: torch.randn(*s, dtype=torch.bfloat16) * 3.2)(D, F) * (D ** -0.5)),
            "w2": _w((lambda *s: torch.randn(*s, dtype=torch.bfloat16) * 0.2)(F, D) * (F ** -0.5)),
        }
    _B_in = _B_setup()

    return {
        "A_x": _A_in["x"],
        "A_k_cache": _A_in["k_cache"],
        "A_v_cache": _A_in["v_cache"],
        "A_wq": _A_in["wq"],
        "A_wo": _A_in["wo"],
        "B_x": _B_in["x"],
        "B_w1": _B_in["w1"],
        "B_w2": _B_in["w2"],
    }

def reference(A_x, A_k_cache, A_v_cache, A_wq, A_wo, B_x, B_w1, B_w2):
    def _A_ref(x, k_cache, v_cache, wq, wo):
        B, Sq, D = x.shape
        Hq, Dh = 32, 128
        Hkv, Sk = k_cache.shape[1], k_cache.shape[2]
        W = min(4096, max(256, Sk // 4))
        rep = Hq // Hkv
        q = (lambda x, *d: x.permute(*d))((x @ wq).reshape(B, Sq, Hq, Dh), 0, 2, 1, 3)
        k = (lambda x, n, axis: torch.repeat_interleave(x, n, dim=axis))(k_cache[:, :, Sk - W:, :], rep, axis=1)
        v = (lambda x, n, axis: torch.repeat_interleave(x, n, dim=axis))(v_cache[:, :, Sk - W:, :], rep, axis=1)
        scores = torch.einsum("bhqd,bhkd->bhqk", q, k) * (Dh ** -0.5)
        p = _softmax(scores, axis=-1)
        o = torch.einsum("bhqk,bhkd->bhqd", p, v)
        return (lambda x, *d: x.permute(*d))(o, 0, 2, 1, 3).reshape(B, Sq, Hq * Dh) @ wo

    def _B_ref(x, w1, w2):
        h = torch.einsum("bsd,df->bsf", x, w1)
        h = _silu(h)
        out = torch.einsum("bsf,fd->bsd", h, w2)
        return out

    x = A_x
    xn = _layernorm(x, axis=-1)
    return x + _A_ref(xn, A_k_cache, A_v_cache, A_wq, A_wo) + _B_ref(xn, B_w1, B_w2)
```

```python
import re
NAME = "parallel_sum__sliding_block_cached__dense_activation_silu__decode"
KNAME = NAME + "_kernel"
HEADER = open("cdna_kernels/" + NAME + ".s.ref").read().split("; Override launch")[0]

TRANS = ("v_exp_f32", "v_log_f32", "v_rcp_f32", "v_rsq_f32", "v_sqrt_f32", "v_sin_f32", "v_cos_f32", "v_rcp_iflag_f32")

def regs_of(tok):
    tok = tok.strip()
    neg = tok.lstrip("-")
    if neg.startswith("abs(") and neg.endswith(")"): neg = neg[4:-1]
    if neg.startswith("|") and neg.endswith("|"): neg = neg[1:-1]
    m = re.fullmatch(r"([vsa])(\d+)", neg)
    if m: return [(m.group(1), int(m.group(2)))]
    m = re.fullmatch(r"([vsa])\[(\d+):(\d+)\]", neg)
    if m: return [(m.group(1), i) for i in range(int(m.group(2)), int(m.group(3)) + 1)]
    if neg == "vcc": return [("s", "vcc")]
    if neg in ("vcc_lo", "vcc_hi"): return [("s", "vcc")]
    if neg == "exec": return [("s", "exec")]
    if neg == "m0": return [("s", "m0")]
    return []

class Ins:
    def __init__(self, text):
        self.text = text
        t = text.split(";")[0].strip()
        parts = t.split(None, 1)
        self.mn = parts[0]
        rest = parts[1] if len(parts) > 1 else ""
        ops, depth, cur = [], 0, ""
        for ch in rest:
            if ch == "[": depth += 1
            if ch == "]": depth -= 1
            if ch == "," and depth == 0: ops.append(cur); cur = ""
            else: cur += ch
        if cur.strip(): ops.append(cur)
        toks = []
        self.mods = ""
        for i, o in enumerate(ops):
            o = o.strip()
            if i == len(ops) - 1:
                sp = o.split(None, 1)
                if sp and "[" in sp[0] and "]" not in sp[0]:
                    toks.append(o)
                else:
                    toks.append(sp[0] if sp else "")
                    self.mods = sp[1] if len(sp) > 1 else ""
            else:
                toks.append(o)
        self.ops = toks
        mn = self.mn
        self.is_mfma = mn.startswith("v_mfma")
        self.is_valu = mn.startswith("v_") and not self.is_mfma
        self.is_dpp = "_dpp" in mn or any(k in (self.mods + " " + " ".join(toks)) for k in ("quad_perm", "row_", "wave_"))
        base = re.sub(r"_(e32|e64|dpp|sdwa)$", "", mn)
        self.base = base
        self.is_trans = base in TRANS
        self.is_ds = mn.startswith("ds_")
        self.is_vmem = mn.startswith(("buffer_", "global_", "flat_", "scratch_"))
        self.is_salu = mn.startswith("s_")
        self.vw, self.vr, self.sw, self.sr = set(), set(), set(), set()
        self.srcC = set(); self.ab = set()
        R = [regs_of(t) for t in toks]
        def addr(lst):
            for r in lst:
                (self.vr if r[0] in "va" else self.sr).add(r)
        def addw(lst):
            for r in lst:
                (self.vw if r[0] in "va" else self.sw).add(r)
        if self.is_mfma:
            addw(R[0]); addr(R[1]); addr(R[2]); addr(R[3])
            self.srcC = set(R[3]); self.ab = set(R[1]) | set(R[2])
        elif self.is_valu:
            if base.startswith("v_cmp"):
                addw(R[0]); [addr(x) for x in R[1:]]
                if base.startswith("v_cmpx"): self.sw.add(("s", "exec"))
            elif base in ("v_readfirstlane_b32", "v_readlane_b32"):
                addw(R[0]); [addr(x) for x in R[1:]]
            elif base.startswith("v_permlane") and "swap" in base:
                addw(R[0]); addw(R[1]); addr(R[0]); addr(R[1])
            elif "_co_" in base or base in ("v_div_scale_f32", "v_mad_u64_u32"):
                addw(R[0]); addw(R[1]); [addr(x) for x in R[2:]]
            else:
                addw(R[0]); [addr(x) for x in R[1:]]
                if base in ("v_fmac_f32", "v_dot2c_f32_bf16", "v_writelane_b32", "v_pk_fmac_f16") or self.is_dpp:
                    addr(R[0])
                if base == "v_div_fmas_f32": self.sr.add(("s", "vcc"))
        elif self.is_ds:
            if mn.startswith(("ds_read", "ds_bpermute", "ds_permute", "ds_swizzle")):
                addw(R[0]); [addr(x) for x in R[1:]]
            else:
                [addr(x) for x in R]
        elif self.is_vmem:
            if "_load" in mn and " lds" not in (" " + self.mods):
                addw(R[0]); [addr(x) for x in R[1:]]
            elif "atomic" in mn and "sc0" in self.mods:
                addw(R[0]); [addr(x) for x in R]
            else:
                [addr(x) for x in R]
        elif self.is_salu:
            if mn.startswith(("s_cmp", "s_cbranch", "s_branch", "s_waitcnt", "s_barrier", "s_nop", "s_endpgm", "s_sleep", "s_setprio", "s_bitcmp")):
                [addr(x) for x in R]
            else:
                if R: addw(R[0])
                [addr(x) for x in R[1:]]
                if "saveexec" in mn: self.sw.add(("s", "exec")); self.sr.add(("s", "exec"))
        self.wide_store = self.is_vmem and ("store_dwordx3" in mn or "store_dwordx4" in mn)
        self.store_data = set(R[0]) if (self.wide_store and mn.startswith("buffer_")) else (set(R[1]) if self.wide_store else set())
        if self.is_mfma:
            self.passes = 8 if "32x32x16" in mn else 4
            if "f32_16x16x4_f32" in mn or "32x32x2_f32" in mn: raise NotImplementedError(mn)

BIG = 100
def need_waits(ins, st):
    need = 0
    def req(key, n):
        nonlocal need
        if key in st: need = max(need, n - st[key])
    if ins.is_mfma:
        for r in ins.vr: req(("vw", r), 2)
        req(("sw", ("s", "exec")), 4)
    if ins.is_valu:
        if ins.is_dpp:
            for r in ins.vr: req(("vw", r), 2)
            req(("sw", ("s", "exec")), 5)
        if ins.base in ("v_readfirstlane_b32", "v_readlane_b32"):
            for r in ins.vr: req(("vw", r), 1)
        if ins.base.startswith("v_permlane"):
            for r in ins.vr: req(("vw", r), 2)
            req(("sw", ("s", "exec")), 4)
        if ins.base in ("v_readlane_b32", "v_writelane_b32", "v_readfirstlane_b32"):
            req(("sw", ("s", "exec")), 4)
        for r in ins.sr:
            if ins.base in ("v_readlane_b32", "v_writelane_b32"): req(("sw", r), 4)
            elif ins.base == "v_div_fmas_f32": req(("sw", r), 4)
            else: req(("sw", r), 2)
        if not ins.is_trans:
            for r in ins.vr: req(("tw", r), 1)
        for r in ins.vw: req(("sd", r), 2)
    if ins.is_vmem:
        for r in ins.sr: req(("sw", r), 5)
    if ins.is_vmem or ins.is_ds:
        for r in ins.vw: req(("sd", r), 1)
    for key, age in st.items():
        if key[0] == "mw":
            _, r, p, D = key
            lat = {4: 8, 8: 12}[p]
            if ins.is_mfma:
                if r in ins.ab: need = max(need, lat - age)
                if r in ins.srcC:
                    if set(D) == ins.srcC and ins.passes == p: pass
                    else: need = max(need, {4: 6, 8: 10}[p] - age)
                elif r in ins.vw:
                    need = max(need, lat - age)
            elif (ins.is_valu or ins.is_vmem or ins.is_ds) and (r in ins.vr or r in ins.vw):
                need = max(need, lat - age)
        if key[0] == "mc":
            _, r, p = key
            if ins.is_valu and r in ins.vw: need = max(need, {4: 3, 8: 7}[p] - age)
    return max(need, 0)

def advance(st, n):
    for k in list(st):
        st[k] += n
        if st[k] > 24: del st[k]

def record(ins, st):
    if ins.is_valu:
        for r in ins.vw:
            st[("vw", r)] = 0
            if ins.is_trans: st[("tw", r)] = 0
            else: st.pop(("tw", r), None)
        for r in ins.sw: st[("sw", r)] = 0
    if ins.is_mfma:
        D = tuple(sorted(ins.vw, key=lambda x: x[1]))
        for r in ins.vw:
            for k in [k for k in st if k[0] == "mw" and k[1] == r]: del st[k]
            st[("mw", r, ins.passes, D)] = 0
        for r in ins.srcC: st[("mc", r, ins.passes)] = 0
    if ins.wide_store:
        for r in ins.store_data: st[("sd", r)] = 0

def merge(a, b):
    out = dict(a)
    for k, v in b.items():
        out[k] = min(out.get(k, BIG), v)
    return out

def pad_hazards(lines):
    label_state = {}
    for it in range(3):
        out = []
        st = {}
        dead = False
        new_label_state = {}
        for ln in lines:
            s = ln.strip()
            if not s or s.startswith(";") or s.startswith("."):
                out.append(ln); continue
            if s.endswith(":"):
                lab = s[:-1]
                inc = label_state.get(lab, {})
                st = dict(inc) if dead else merge(st, inc)
                dead = False
                out.append(ln); continue
            ins = Ins(s)
            if ins.mn == "s_nop":
                advance(st, int(ins.ops[0], 0) + 1); out.append(ln); continue
            n = need_waits(ins, st)
            tot = n
            while n > 0:
                k = min(n, 16)
                out.append(f"    s_nop {k-1}")
                n -= k
            advance(st, tot)
            out.append(ln)
            advance(st, 1)
            record(ins, st)
            if ins.mn.startswith(("s_cbranch", "s_branch")):
                lab = ins.ops[0]
                new_label_state[lab] = merge(new_label_state.get(lab, {}), st)
                if ins.mn == "s_branch": dead = True
            if ins.mn == "s_endpgm": dead = True
        done = (new_label_state == label_state)
        label_state = new_label_state
        lines_out = out
        if done: break
    return lines_out

class Asm:
    def __init__(self):
        self.lines = []
        self._lab = 0
        self.vm = []
    def __call__(self, s):
        for l in s.strip("\n").split("\n"):
            l = l.strip()
            if l: self.lines.append("    " + l)
    def c(self, s): self.lines.append("    ; " + s)
    def label(self, name): self.lines.append(name + ":")
    def newlabel(self, base="L"):
        self._lab += 1
        return f"{base}_{self._lab}"
    def vmem(self, name, text):
        self(text); self.vm.append(name)
    def wait(self, name):
        i = len(self.vm) - 1 - self.vm[::-1].index(name)
        n = len(self.vm) - 1 - i
        assert n <= 63
        self(f"s_waitcnt vmcnt({n})")
    def text(self, pad=True):
        ls = pad_hazards(self.lines) if pad else self.lines
        return "\n".join(ls) + "\n"

def wrap(body, grid, block, lds, vgpr=256, sgpr=102, accum=None):
    if accum is None: accum = min(256, (vgpr + 3) // 4 * 4)
    return (HEADER +
f"""; Override launch geometry by editing the next line (default: block=256,
; grid=ceil(out_elems/256), lds=0). Harness parses it; keep it on one line.
; @launch grid=({grid},1,1) block=({block},1,1) lds={lds}
.amdgcn_target "amdgcn-amd-amdhsa--gfx950"
.text
.globl {KNAME}
.p2align 8
.type {KNAME},@function
{KNAME}:
{body}
.section .rodata,"a"
.p2align 6
.amdhsa_kernel {KNAME}
  .amdhsa_next_free_vgpr {vgpr}
  .amdhsa_next_free_sgpr {sgpr}
  .amdhsa_accum_offset {accum}
  .amdhsa_group_segment_fixed_size 0
  .amdhsa_kernarg_size 88
  .amdhsa_user_sgpr_count 2
  .amdhsa_user_sgpr_kernarg_segment_ptr 1
  .amdhsa_system_sgpr_workgroup_id_x 1
.end_amdhsa_kernel
""")
```

```python
import sys
from asmlib import *

QP0, HP0, OP0, ML0, YP0, WSLIM = 0x1000, 0x42000, 0x60000, 0xA0000, 0xB0000, 0xD0000
HP_STRIDE = 1408 * 8
STAMP0 = 0x100000
OOB = 0x10000000
TAGC = 0x9E3779B9

L_RQ, L_RH, L_QB, L_MX, L_LS, L_RO, L_RY = 0, 4096, 8192, 8448, 8512, 8704, 12800
LDS_TOTAL = 98304

sW, sG, sS, sTAG = 26, 27, 28, 29
SK, SV, SWQ, SWO, SW1, SW2, SWS, SX, SOUT = 32, 36, 40, 44, 48, 52, 56, 60, 64
s4K, s8K, s12K, s16K, s24K = 68, 69, 70, 71, 93
sM4 = [72, 74, 76, 78]
sC = [None, 80, 82, 84]
sSCALE, sLOG2E = 86, 87
sT0, sT1, sT2, sT3 = 30, 31, 88, 89
sEX = 90
sRETRY = 92
sHV = 94
sBLK, sSROW = 96, 97
sCQ = 98

def srd(r): return f"s[{r}:{r+3}]"

def gen(W=9, stamps=False, g1_after=None, sleep_poll=0):
    a = Asm()
    vL, vI, vG4, vC, vR8 = 1, 2, 3, 4, 5
    vKo, vVo, vWQo, vW1o, vWOo, vW2o = 6, 7, 8, 9, 10, 11
    vGq, vGm, vGh, vPub, vRQ, vRY = 12, 13, 14, 15, 16, 17
    vM = [20, 21, 22, 23]
    vTAG = 24
    vXA, vXB, vXC, vXD = 28, 32, 34, 35
    vWQ, vW1 = 36, 52
    vK, vV = 60, 124
    vW2, vWO = 188, 196
    vBq = 212
    vD = 228
    vB0, vB1 = 244, 248
    vT = [25, 26, 27, 18, 19, 252, 253, 254, 255]
    vDq, vDh = 228, 232
    vDo, vDy = 232, 236
    vGa = 36
    vPP = 52

    st_idx = [0]
    ST_BASE = 4
    def stamp():
        if stamps:
            i = st_idx[0]; st_idx[0] += 1
            assert i < 10
            a(f"s_memrealtime s[{ST_BASE+2*i}:{ST_BASE+2*i+1}]")

    a("s_cmp_ge_u32 s2, 256\ns_cbranch_scc1 L_end")
    if stamps: a("s_memrealtime s[100:101]")
    a("s_load_dwordx16 s[4:19], s[0:1], 0")
    a("s_load_dwordx4 s[20:23], s[0:1], 64")
    a("s_load_dwordx2 s[24:25], s[0:1], 80")
    a(f"v_lshrrev_b32 v{vT[0]}, 6, v0")
    a(f"v_and_b32 v{vL}, 63, v0")
    a(f"v_readfirstlane_b32 s{sW}, v{vT[0]}")
    a(f"s_and_b32 s{sT0}, s2, 7\ns_lshl_b32 s{sG}, s{sT0}, 2\ns_lshr_b32 s{sT1}, s2, 3\ns_and_b32 s{sT2}, s{sT1}, 3\ns_add_u32 s{sG}, s{sG}, s{sT2}")
    a(f"s_lshr_b32 s{sS}, s2, 5")
    a(f"s_mul_i32 s{sT0}, s{sT0}, 22\ns_add_u32 s{sT0}, s{sT0}, s{sT1}\ns_lshr_b32 s{sBLK}, s{sT0}, 3\ns_and_b32 s{sSROW}, s{sT0}, 7")
    a(f"s_cmp_lt_u32 s{sT1}, 22\ns_cselect_b32 s99, 1, 0")
    a(f"s_lshr_b32 s{sCQ}, s{sG}, 1")
    a(f"v_and_b32 v{vI}, 15, v{vL}\nv_lshrrev_b32 v{vG4}, 4, v{vL}\nv_and_b32 v{vC}, 7, v{vL}\nv_lshrrev_b32 v{vR8}, 3, v{vL}")
    a(f"v_lshrrev_b32 v{vKo}, 2, v{vI}\nv_lshlrev_b32 v{vKo}, 8, v{vKo}\nv_and_b32 v{vT[0]}, 3, v{vI}\nv_lshl_add_u32 v{vT[0]}, v{vG4}, 2, v{vT[0]}\nv_lshl_add_u32 v{vKo}, v{vT[0]}, 4, v{vKo}")
    a(f"v_lshlrev_b32 v{vVo}, 4, v{vL}")
    a(f"v_lshlrev_b32 v{vWQo}, 15, v{vG4}\nv_lshl_add_u32 v{vWQo}, v{vI}, 4, v{vWQo}")
    a(f"v_mul_u32_u24 v{vW1o}, 5504, v{vR8}\nv_lshl_add_u32 v{vW1o}, v{vC}, 4, v{vW1o}")
    a(f"v_lshlrev_b32 v{vWOo}, 12, v{vR8}\nv_lshl_add_u32 v{vWOo}, v{vC}, 4, v{vWOo}")
    a(f"v_lshlrev_b32 v{vW2o}, 11, v{vR8}\nv_lshl_add_u32 v{vW2o}, v{vC}, 4, v{vW2o}")
    a(f"s_lshl_b32 s{sT0}, s{sS}, 7\ns_lshl_b32 s{sT1}, s{sW}, 5\ns_add_u32 s{sT0}, s{sT0}, s{sT1}")
    a(f"v_lshlrev_b32 v{vT[1]}, 3, v{vG4}\nv_add_u32 v{vT[1]}, s{sT0}, v{vT[1]}")
    a(f"s_lshl_b32 s{sT0}, s{sSROW}, 7\ns_add_u32 s{sT0}, s{sT0}, s{sT1}")
    a(f"v_lshlrev_b32 v{vT[2]}, 2, v{vR8}\nv_add_u32 v{vT[2]}, s{sT0}, v{vT[2]}")
    a(f"s_lshl_b32 s{sT0}, s{sS}, 7\ns_lshl_b32 s{sT1}, s{sCQ}, 3\ns_add_u32 s{sT0}, s{sT0}, s{sT1}")
    a(f"v_and_b32 v{vT[3]}, 1, v{vL}\nv_lshlrev_b32 v{vT[3]}, 2, v{vT[3]}\nv_add_u32 v{vT[3]}, s{sT0}, v{vT[3]}")
    a(f"s_cmp_eq_u32 s{sBLK}, 21\ns_cselect_b32 s{sT0}, 4, 8\nv_cmp_le_u32 vcc, s{sT0}, v{vC}\nv_mov_b32 v{vT[4]}, {OOB}\nv_cndmask_b32 v{vW1o}, v{vW1o}, v{vT[4]}, vcc")
    a(f"s_lshl_b32 s{sT0}, s{sG}, 21\ns_add_u32 s{sT0}, s{sT0}, 0x180000\ns_lshl_b32 s{sT1}, s{sS}, 16\ns_add_u32 s{sT0}, s{sT0}, s{sT1}\ns_lshl_b32 s{sT1}, s{sW}, 14\ns_add_u32 s{SK+2}, s{sT0}, s{sT1}")
    a(f"s_lshl_b32 s{sT0}, s{sS}, 6\ns_lshl_b32 s{sT1}, s{sW}, 4\ns_add_u32 s{sT0}, s{sT0}, s{sT1}\ns_lshl_b32 s{sT0}, s{sT0}, 13\ns_lshl_b32 s{sT1}, s{sG}, 8\ns_add_u32 s{SWQ+2}, s{sT0}, s{sT1}")
    a(f"s_lshl_b32 s{sT0}, s{sSROW}, 6\ns_lshl_b32 s{sT1}, s{sW}, 4\ns_add_u32 s{sT0}, s{sT0}, s{sT1}\ns_mul_i32 s{sT0}, s{sT0}, 2752\ns_lshl_b32 s{sT1}, s{sBLK}, 7\ns_add_u32 s{SW1+2}, s{sT0}, s{sT1}")
    a(f"s_lshl_b32 s{sT0}, s{sG}, 7\ns_lshl_b32 s{sT1}, s{sW}, 5\ns_add_u32 s{sT0}, s{sT0}, s{sT1}\ns_lshl_b32 s{sT0}, s{sT0}, 10\ns_lshl_b32 s{sT1}, s{sS}, 7\ns_add_u32 s{SWO+2}, s{sT0}, s{sT1}")
    a(f"s_mul_i32 s{sT0}, s{sCQ}, 86\ns_and_b32 s{sT1}, s{sG}, 1\ns_mul_i32 s{sT2}, s{sT1}, 44\ns_add_u32 s{sT0}, s{sT0}, s{sT2}\ns_mul_i32 s{sT2}, s{sW}, 12\ns_add_u32 s{sT0}, s{sT0}, s{sT2}")
    a(f"s_lshl_b32 s{sT1}, s{sT1}, 1\ns_sub_u32 s{sT1}, 44, s{sT1}\ns_sub_u32 s{sT1}, s{sT1}, s{sT2}\ns_min_u32 s{sT3}, s{sT1}, 12")
    a(f"v_mul_u32_u24 v{vGh}, {HP_STRIDE}, v{vC}\nv_lshl_add_u32 v{vGh}, v{vR8}, 4, v{vGh}\ns_lshl_b32 s{sT1}, s{sT0}, 3\ns_add_u32 s{sT1}, s{sT1}, {HP0}\nv_add_u32 v{vGh}, s{sT1}, v{vGh}")
    a(f"v_lshlrev_b32 v{vT[5]}, 1, v{vR8}\nv_cmp_gt_u32 s[{sHV}:{sHV+1}], s{sT3}, v{vT[5]}\nv_cndmask_b32 v{vGh}, v{vT[4]}, v{vGh}, s[{sHV}:{sHV+1}]")
    a(f"s_lshl_b32 s{sT0}, s{sT0}, 10\ns_lshl_b32 s{sT1}, s{sS}, 7\ns_add_u32 s{SW2+2}, s{sT0}, s{sT1}")
    a(f"s_sub_u32 s{sT3}, s{sT3}, 1\ns_lshl_b32 s{sT3}, s{sT3}, 10\ns_add_u32 s{sT3}, s{sT3}, 128")
    a(f"s_mov_b32 s{s4K}, 4096\ns_mov_b32 s{s8K}, 8192\ns_mov_b32 s{s12K}, 12288\ns_mov_b32 s{s16K}, 16384\ns_mov_b32 s{s24K}, 24576")
    a("s_waitcnt lgkmcnt(0)")
    a(f"s_load_dword s{sTAG}, s[24:25], 0")
    def mk(r, p, nrec, off=True):
        if off:
            a(f"s_add_u32 s{r}, s{p}, s{r+2}\ns_addc_u32 s{r+1}, s{p+1}, 0")
        else:
            a(f"s_mov_b32 s{r}, s{p}\ns_mov_b32 s{r+1}, s{p+1}")
        a(f"s_mov_b32 s{r+2}, {nrec}\ns_mov_b32 s{r+3}, 0x20000")
    mk(SX, 4, 1024, off=False)
    a.vmem("xa", f"buffer_load_dwordx4 v[{vXA}:{vXA+3}], v{vVo}, {srd(SX)}, 0 offen")
    a.vmem("xb", f"buffer_load_dwordx2 v[{vXB}:{vXB+1}], v{vT[1]}, {srd(SX)}, 0 offen")
    a.vmem("xc", f"buffer_load_dword v{vXC}, v{vT[2]}, {srd(SX)}, 0 offen")
    mk(SWQ, 10, 15 * 8192 + 256)
    so_wq = ["0", f"s{s8K}", f"s{s16K}", f"s{s24K}"]
    for t in range(4):
        a.vmem(f"wq{t}", f"buffer_load_dwordx4 v[{vWQ+4*t}:{vWQ+4*t+3}], v{vWQo}, {srd(SWQ)}, {so_wq[t]} offen nt")
    a(f"s_add_u32 s{SW1}, s16, s{SW1+2}\ns_addc_u32 s{SW1+1}, s17, 0\ns_sub_u32 s{sT0}, 1409024, s{SW1+2}\ns_cmp_eq_u32 s99, 1\ns_cselect_b32 s{SW1+2}, s{sT0}, 0\ns_mov_b32 s{SW1+3}, 0x20000")
    for t in range(2):
        a.vmem(f"w1{t}", f"buffer_load_dwordx4 v[{vW1+4*t}:{vW1+4*t+3}], v{vW1o}, {srd(SW1)}, 0 offen offset:{2752*t} nt")
    a(f"s_mov_b32 s{SV+2}, s{SK+2}")
    mk(SK, 6, 16384); mk(SV, 8, 16384)
    so4 = ["0", f"s{s4K}", f"s{s8K}", f"s{s12K}"]
    def ldK(t): a.vmem(f"K{t}", f"buffer_load_dwordx4 v[{vK+4*t}:{vK+4*t+3}], v{vKo}, {srd(SK)}, {so4[t//4]} offen offset:{(t%4)*1024} nt")
    def ldV(t): a.vmem(f"V{t}", f"buffer_load_dwordx4 v[{vV+4*t}:{vV+4*t+3}], v{vVo}, {srd(SV)}, {so4[t//4]} offen offset:{(t%4)*1024} nt")
    def ldWO(t): a.vmem(f"wo{t}", f"buffer_load_dwordx4 v[{vWO+4*t}:{vWO+4*t+3}], v{vWOo}, {srd(SWO)}, 0 offen offset:{t*1024} nt")
    def ldW2(t): a.vmem(f"w2{t}", f"buffer_load_dwordx4 v[{vW2+4*t}:{vW2+4*t+3}], v{vW2o}, {srd(SW2)}, 0 offen offset:{t*1024} nt")
    def ldG1():
        a.vmem("G1a", f"buffer_load_dwordx4 v[{vGa}:{vGa+3}], v{vGq}, {srd(SWS)}, 0 offen sc1")
        a.vmem("G1b", f"buffer_load_dwordx4 v[{vGa+4}:{vGa+7}], v{vGq}, {srd(SWS)}, 0 offen offset:16 sc1")
    def ldG2(): a.vmem("G2", f"buffer_load_dwordx4 v[{vGa+8}:{vGa+11}], v{vGh}, {srd(SWS)}, 0 offen sc1")
    queue = [("K", t) for t in range(16)] + [("G1", 0)] + [("V", t) for t in range(16)] + [("G2", 0), ("W2", 0), ("W2", 1)] + [("WO", t) for t in range(4)]
    def nxt(n=1):
        for _ in range(n):
            if not queue: return
            k, t = queue.pop(0)
            {"K": lambda: ldK(t), "V": lambda: ldV(t), "G1": ldG1, "G2": ldG2, "W2": lambda: ldW2(t), "WO": lambda: ldWO(t)}[k]()
    n0 = W - 9 + 2
    nxt(n0)
    a.vmem("xd", f"buffer_load_dword v{vXD}, v{vT[3]}, {srd(SX)}, 0 offen")
    mk(SWO, 12, 31 * 1024 + 128)
    a(f"s_add_u32 s{SW2}, s18, s{SW2+2}\ns_addc_u32 s{SW2+1}, s19, 0\ns_mov_b32 s{SW2+2}, s{sT3}\ns_mov_b32 s{SW2+3}, 0x20000")
    mk(SWS, 24, WSLIM if not stamps else 0x200000, off=False)
    mk(SOUT, 20, 1024, off=False)
    a(f"v_mov_b32 v19, v{vT[3]}")
    for tt in range(4):
        m = 0x000F000F << (4 * tt)
        a(f"s_mov_b32 s{sM4[tt]}, {m:#x}\ns_mov_b32 s{sM4[tt]+1}, {m:#x}")
    for c in range(1, 4):
        m = 0x11111111 << c
        a(f"s_mov_b32 s{sC[c]}, {m:#x}\ns_mov_b32 s{sC[c]+1}, {m:#x}")
    a(f"s_mov_b32 s{sSCALE}, 0x3db504f3\ns_mov_b32 s{sLOG2E}, 0x3fb8aa3b\ns_mov_b32 s{sRETRY}, 100000")
    a(f"v_and_b32 v{vT[0]}, 1, v{vL}\nv_lshlrev_b32 v{vT[0]}, 4, v{vT[0]}\nv_mov_b32 v{vT[1]}, 0xffff\nv_lshlrev_b32 v{vT[0]}, v{vT[0]}, v{vT[1]}")
    for w in range(4):
        m = 0x03030303 << (2 * w)
        a(f"s_mov_b32 s{sEX}, {m:#x}\ns_mov_b32 s{sEX+1}, {m:#x}\nv_cndmask_b32 v{vM[w]}, 0, v{vT[0]}, s[{sEX}:{sEX+1}]")
    a(f"s_lshl_b32 s{sT0}, s{sG}, 13\ns_lshl_b32 s{sT1}, s{sW}, 8\ns_add_u32 s{sT0}, s{sT0}, s{sT1}\ns_add_u32 s{sT0}, s{sT0}, {QP0}")
    a(f"v_lshlrev_b32 v{vGq}, 10, v{vC}\nv_lshl_add_u32 v{vGq}, v{vR8}, 5, v{vGq}\nv_add_u32 v{vGq}, s{sT0}, v{vGq}")
    a(f"s_lshl_b32 s{sT0}, s{sG}, 7\ns_add_u32 s{sT0}, s{sT0}, {ML0}\nv_lshlrev_b32 v{vGm}, 4, v{vC}\nv_add_u32 v{vGm}, s{sT0}, v{vGm}")
    a(f"v_and_b32 v{vT[0]}, 127, v0\nv_lshrrev_b32 v{vT[1]}, 5, v{vT[0]}\nv_lshlrev_b32 v{vRQ}, 6, v{vT[1]}\nv_and_b32 v{vT[1]}, 7, v{vT[0]}\nv_lshl_add_u32 v{vRQ}, v{vT[1]}, 2, v{vRQ}\nv_bfe_u32 v{vT[1]}, v{vT[0]}, 3, 2\nv_add_lshl_u32 v{vRQ}, v{vRQ}, v{vT[1]}, 2")
    a(f"v_lshrrev_b32 v{vT[1]}, 5, v{vL}\nv_lshlrev_b32 v{vRY}, 6, v{vT[1]}\nv_lshl_add_u32 v{vRY}, v{vC}, 2, v{vRY}\nv_bfe_u32 v{vT[1]}, v{vL}, 3, 2\nv_add_lshl_u32 v{vRY}, v{vRY}, v{vT[1]}, 2")
    HALF1 = (2 * 64 + 8 * 4) * 4
    stamp()

    f = [vK + 0] * 0
    vF = [244, 245, 246, 247, 248, 249, 250, 251]
    a.wait("xa"); nxt()
    a(f"s_waitcnt lgkmcnt(0)")
    a(f"s_add_u32 s{sTAG}, s{sTAG}, {TAGC:#x}\nv_mov_b32 v{vTAG}, s{sTAG}")
    for j in range(4):
        a(f"v_lshlrev_b32 v{vF[2*j]}, 16, v{vXA+j}\nv_and_b32 v{vF[2*j+1]}, 0xffff0000, v{vXA+j}")
    def wave_sum(v, sdst):
        for m in ("quad_perm:[1,0,3,2]", "quad_perm:[2,3,0,1]", "row_half_mirror", "row_mirror"):
            a(f"v_add_f32_dpp v{v}, v{v}, v{v} {m} row_mask:0xf bank_mask:0xf")
        a(f"v_add_f32_dpp v{v}, v{v}, v{v} row_bcast:15 row_mask:0xa bank_mask:0xf")
        a(f"v_add_f32_dpp v{v}, v{v}, v{v} row_bcast:31 row_mask:0xc bank_mask:0xf")
        a(f"v_readlane_b32 s{sdst}, v{v}, 63")
    t0, t1, t2, t3 = vT[5], vT[6], vT[7], vT[8]
    a(f"v_add_f32 v{t0}, v{vF[0]}, v{vF[1]}\nv_add_f32 v{t1}, v{vF[2]}, v{vF[3]}\nv_add_f32 v{t2}, v{vF[4]}, v{vF[5]}\nv_add_f32 v{t3}, v{vF[6]}, v{vF[7]}")
    a(f"v_add_f32 v{t0}, v{t0}, v{t1}\nv_add_f32 v{t2}, v{t2}, v{t3}\nv_add_f32 v{t0}, v{t0}, v{t2}")
    wave_sum(t0, sT0)
    vMU, vSD, vR = vXA, vXA + 1, vXA + 2
    a(f"v_mov_b32 v{t1}, 0x3b000000\nv_mul_f32 v{vMU}, s{sT0}, v{t1}")
    nxt()
    for j in range(8):
        a(f"v_sub_f32 v{vF[j]}, v{vF[j]}, v{vMU}")
    a(f"v_mul_f32 v{t0}, v{vF[0]}, v{vF[0]}\nv_mul_f32 v{t2}, v{vF[1]}, v{vF[1]}")
    for j in range(2, 8, 2):
        a(f"v_fmac_f32 v{t0}, v{vF[j]}, v{vF[j]}\nv_fmac_f32 v{t2}, v{vF[j+1]}, v{vF[j+1]}")
    a(f"v_add_f32 v{t0}, v{t0}, v{t2}")
    wave_sum(t0, sT0)
    a(f"v_mul_f32 v{t0}, s{sT0}, v{t1}")
    def rbf(v, tmp=None):
        a(f"v_cvt_pk_bf16_f32 v{v}, v{v}, v{v}\nv_and_b32 v{v}, 0xffff0000, v{v}")
    rbf(vMU); rbf(t0)
    a(f"v_add_f32 v{t0}, 0x3727c5ac, v{t0}")
    rbf(t0)
    a(f"v_sqrt_f32 v{vSD}, v{t0}")
    rbf(vSD)
    a(f"v_rcp_f32 v{vR}, v{vSD}")
    nxt()
    y = vF[:6]
    src = [vXB, vXB, vXB + 1, vXB + 1, vXC, vXC]
    a.wait("xc")
    for j in range(6):
        if j % 2 == 0: a(f"v_lshlrev_b32 v{y[j]}, 16, v{src[j]}")
        else: a(f"v_and_b32 v{y[j]}, 0xffff0000, v{src[j]}")
    for j in range(6): a(f"v_sub_f32 v{y[j]}, v{y[j]}, v{vMU}")
    for j in range(0, 6, 2):
        a(f"v_cvt_pk_bf16_f32 v{t0}, v{y[j]}, v{y[j+1]}\nv_lshlrev_b32 v{y[j]}, 16, v{t0}\nv_and_b32 v{y[j+1]}, 0xffff0000, v{t0}")
    qq = [vBq + j for j in range(6)]; ee = [vBq + 6 + j for j in range(6)]
    for j in range(6): a(f"v_mul_f32 v{qq[j]}, v{y[j]}, v{vR}")
    for j in range(6): a(f"v_fma_f32 v{ee[j]}, -v{qq[j]}, v{vSD}, v{y[j]}")
    for j in range(6): a(f"v_fma_f32 v{qq[j]}, v{ee[j]}, v{vR}, v{qq[j]}")
    for j in range(6): a(f"v_cvt_pk_bf16_f32 v{qq[j]}, v{qq[j]}, v{qq[j]}")
    stamp()
    Bs = [vB0, vB1]
    def build(dst, pp, dpp=None):
        for w in range(4):
            if dpp is None: a(f"v_and_b32 v{dst+w}, v{pp}, v{vM[w]}")
            else: a(f"v_and_b32_dpp v{dst+w}, v{pp}, v{vM[w]} {dpp} row_mask:0xf bank_mask:0xf")
    def mfma(D, A, B, first):
        a(f"v_mfma_f32_16x16x32_bf16 v[{D}:{D+3}], v[{A}:{A+3}], v[{B}:{B+3}], " + ("0" if first else f"v[{D}:{D+3}]"))
    build(Bs[0], qq[0])
    for t in range(4):
        build(Bs[(t + 1) % 2], qq[t + 1])
        a.wait(f"wq{t}"); mfma(vDq, vWQ + 4 * t, Bs[t % 2], t == 0); nxt()
    build(Bs[1], qq[5])
    a.wait("w10"); mfma(vDh, vW1, Bs[0], True); nxt()
    a.wait("w11"); mfma(vDh, vW1 + 4, Bs[1], False); nxt()
    a(f"s_lshl_b32 s{sT0}, s{sW}, 10\nv_lshlrev_b32 v{t0}, 4, v{vL}\nv_add_u32 v{t0}, s{sT0}, v{t0}")
    vRAW = vT[2]
    a(f"v_mov_b32 v{vRAW}, v{t0}")
    a(f"ds_write_b128 v{vRAW}, v[{vDq}:{vDq+3}] offset:{L_RQ}\nds_write_b128 v{vRAW}, v[{vDh}:{vDh+3}] offset:{L_RH}")
    lq, lh, ln_, lpub = a.newlabel("Lq"), a.newlabel("Lh"), a.newlabel("Ln"), a.newlabel("Lpub")
    a("s_waitcnt lgkmcnt(0)\ns_barrier")
    vVal = vXA
    a(f"s_cmp_lt_u32 s{sW}, 2\ns_cbranch_scc1 {lq}\ns_cmp_eq_u32 s{sW}, 2\ns_cbranch_scc1 {lh}")
    a(f"v_mov_b32 v{vPub}, {OOB}\ns_branch {lpub}")
    a.label(lq)
    a(f"ds_read2st64_b32 v[{vF[0]}:{vF[1]}], v{vRQ} offset0:{L_RQ//256} offset1:{L_RQ//256+4}\nds_read2st64_b32 v[{vF[2]}:{vF[3]}], v{vRQ} offset0:{L_RQ//256+8} offset1:{L_RQ//256+12}")
    a(f"s_lshl_b32 s{sT0}, s{sG}, 3\ns_add_u32 s{sT0}, s{sT0}, s{sS}\ns_lshl_b32 s{sT0}, s{sT0}, 10\ns_add_u32 s{sT0}, s{sT0}, {QP0}")
    a(f"v_lshlrev_b32 v{vPub}, 3, v0\nv_add_u32 v{vPub}, s{sT0}, v{vPub}")
    a(f"s_waitcnt lgkmcnt(0)\nv_add_f32 v{vF[0]}, v{vF[0]}, v{vF[1]}\nv_add_f32 v{vF[2]}, v{vF[2]}, v{vF[3]}\nv_add_f32 v{vVal}, v{vF[0]}, v{vF[2]}")
    a(f"s_branch {lpub}")
    a.label(lh)
    def read8(base, addr):
        o = base // 256
        a(f"ds_read2st64_b32 v[{vF[0]}:{vF[1]}], v{addr} offset0:{o} offset1:{o+4}\nds_read2st64_b32 v[{vF[2]}:{vF[3]}], v{addr} offset0:{o+8} offset1:{o+12}")
        a(f"v_add_u32 v{t0}, {HALF1}, v{addr}")
        a(f"ds_read2st64_b32 v[{vF[4]}:{vF[5]}], v{t0} offset0:{o} offset1:{o+4}\nds_read2st64_b32 v[{vF[6]}:{vF[7]}], v{t0} offset0:{o+8} offset1:{o+12}")
    def sum8(dst):
        a("s_waitcnt lgkmcnt(0)")
        a(f"v_add_f32 v{vF[0]}, v{vF[0]}, v{vF[1]}\nv_add_f32 v{vF[2]}, v{vF[2]}, v{vF[3]}\nv_add_f32 v{vF[4]}, v{vF[4]}, v{vF[5]}\nv_add_f32 v{vF[6]}, v{vF[6]}, v{vF[7]}")
        a(f"v_add_f32 v{vF[0]}, v{vF[0]}, v{vF[2]}\nv_add_f32 v{vF[4]}, v{vF[4]}, v{vF[6]}\nv_add_f32 v{dst}, v{vF[0]}, v{vF[4]}")
    read8(L_RH, vRY)
    a(f"s_mul_i32 s{sT0}, s{sSROW}, {HP_STRIDE}\ns_lshl_b32 s{sT1}, s{sBLK}, 9\ns_add_u32 s{sT0}, s{sT0}, s{sT1}\ns_add_u32 s{sT0}, s{sT0}, {HP0}\ns_cmp_eq_u32 s99, 1\ns_cselect_b32 s{sT0}, s{sT0}, {OOB}")
    a(f"v_lshlrev_b32 v{vPub}, 3, v{vL}\nv_add_u32 v{vPub}, s{sT0}, v{vPub}")
    sum8(vVal)
    a.label(lpub)
    a(f"v_mov_b32 v{vVal+1}, s{sTAG}")
    a.vmem("S1", f"buffer_store_dwordx2 v[{vVal}:{vVal+1}], v{vPub}, {srd(SWS)}, 0 offen sc1")
    stamp()
    ki = 0
    while queue and queue[0][0] == "K":
        a.wait(f"K{ki}"); nxt(); ki += 1
    while ki < 16:
        a.wait(f"K{ki}"); nxt(); ki += 1
    def tagcheck(regs, mask=None):
        xs = []
        for i, r in enumerate(regs):
            a(f"v_xor_b32 v{vF[i]}, s{sTAG}, v{r}"); xs.append(vF[i])
        while len(xs) > 1:
            if len(xs) >= 3:
                a(f"v_or3_b32 v{xs[0]}, v{xs[0]}, v{xs[1]}, v{xs[2]}"); xs = [xs[0]] + xs[3:]
            else:
                a(f"v_or_b32 v{xs[0]}, v{xs[0]}, v{xs[1]}"); xs = [xs[0]]
        a(f"v_cmp_ne_u32 vcc, 0, v{xs[0]}")
        if mask is not None: a(f"s_and_b64 vcc, vcc, s[{mask}:{mask+1}]")
    def poll(name, waitname, regs, reissue, mask=None):
        ok, rt = a.newlabel("Lok"), a.newlabel("Lrt")
        if waitname: a.wait(waitname)
        else: a("s_waitcnt vmcnt(0)")
        tagcheck(regs, mask)
        a(f"s_cbranch_vccz {ok}")
        a.label(rt)
        if sleep_poll: a(f"s_sleep {sleep_poll}")
        a(reissue)
        a("s_waitcnt vmcnt(0)")
        tagcheck(regs, mask)
        a(f"s_cbranch_vccz {ok}\ns_sub_u32 s{sRETRY}, s{sRETRY}, 1\ns_cmp_gt_i32 s{sRETRY}, 0\ns_cbranch_scc1 {rt}")
        a.label(ok)
    g1txt = (f"buffer_load_dwordx4 v[{vGa}:{vGa+3}], v{vGq}, {srd(SWS)}, 0 offen sc1\n"
             f"buffer_load_dwordx4 v[{vGa+4}:{vGa+7}], v{vGq}, {srd(SWS)}, 0 offen offset:16 sc1")
    poll("G1", "G1b", [vGa + 1, vGa + 3, vGa + 5, vGa + 7], g1txt)
    stamp()
    nxt()
    def red8(vals, op="add"):
        for m in ("quad_perm:[1,0,3,2]", "quad_perm:[2,3,0,1]", "row_half_mirror"):
            for v in vals:
                a(f"v_{op}_f32_dpp v{v}, v{v}, v{v} {m} row_mask:0xf bank_mask:0xf")
    qv = [vGa, vGa + 2, vGa + 4, vGa + 6]
    red8(qv)
    a(f"v_cvt_pk_bf16_f32 v{vGa}, v{qv[0]}, v{qv[1]}\nv_cvt_pk_bf16_f32 v{vGa+1}, v{qv[2]}, v{qv[3]}")
    a(f"s_lshl_b32 s{sT0}, s{sW}, 6\nv_lshlrev_b32 v{t0}, 3, v{vR8}\nv_add_u32 v{t0}, s{sT0}, v{t0}")
    a(f"s_mov_b64 s[{sEX}:{sEX+1}], exec\ns_mov_b32 exec_lo, 0x01010101\ns_mov_b32 exec_hi, 0x01010101")
    a(f"ds_write_b64 v{t0}, v[{vGa}:{vGa+1}] offset:{L_QB}")
    a(f"s_mov_b64 exec, s[{sEX}:{sEX+1}]")
    a(f"v_and_b32 v{t1}, 3, v{vI}\nv_lshl_add_u32 v{t1}, v{vG4}, 2, v{t1}\nv_lshlrev_b32 v{t1}, 4, v{t1}")
    a("s_waitcnt lgkmcnt(0)\ns_barrier")
    a(f"ds_read_b128 v[{vGa}:{vGa+3}], v{t1} offset:{L_QB}")
    nxt()
    a("s_waitcnt lgkmcnt(0)")
    for tt in range(4):
        for j in range(4):
            a(f"v_cndmask_b32 v{vBq+4*tt+j}, 0, v{vGa+j}, s[{sM4[tt]}:{sM4[tt]+1}]")
    for tt in range(4):
        for u in range(4):
            mfma(vD + 4 * u, vK + 4 * (4 * u + tt), vBq + 4 * tt, tt == 0)
    nxt()
    sc = [vF[0], vF[1], vF[2], vF[3]]
    for u in range(4):
        a(f"v_cndmask_b32 v{sc[u]}, v{vD+4*u}, v{vD+4*u+1}, s[{sC[1]}:{sC[1]+1}]")
    for u in range(4):
        a(f"v_cndmask_b32 v{sc[u]}, v{sc[u]}, v{vD+4*u+2}, s[{sC[2]}:{sC[2]+1}]")
    for u in range(4):
        a(f"v_cndmask_b32 v{sc[u]}, v{sc[u]}, v{vD+4*u+3}, s[{sC[3]}:{sC[3]+1}]")
    for m in ("quad_perm:[1,0,3,2]", "quad_perm:[2,3,0,1]"):
        for u in range(4):
            a(f"v_add_f32_dpp v{sc[u]}, v{sc[u]}, v{sc[u]} {m} row_mask:0xf bank_mask:0xf")
    for u in (0, 2):
        a(f"v_cvt_pk_bf16_f32 v{t0}, v{sc[u]}, v{sc[u+1]}\nv_lshlrev_b32 v{sc[u]}, 16, v{t0}\nv_and_b32 v{sc[u+1]}, 0xffff0000, v{t0}")
    for u in range(4): a(f"v_mul_f32 v{sc[u]}, s{sSCALE}, v{sc[u]}")
    for u in (0, 2):
        a(f"v_cvt_pk_bf16_f32 v{t0}, v{sc[u]}, v{sc[u+1]}\nv_lshlrev_b32 v{sc[u]}, 16, v{t0}\nv_and_b32 v{sc[u+1]}, 0xffff0000, v{t0}")
    a(f"v_max3_f32 v{t0}, v{sc[0]}, v{sc[1]}, v{sc[2]}\nv_max_f32 v{t0}, v{t0}, v{sc[3]}")
    for m in ("row_ror:4", "row_ror:8"):
        a(f"v_max_f32_dpp v{t0}, v{t0}, v{t0} {m} row_mask:0xf bank_mask:0xf")
    vSL = vT[1]
    a(f"s_lshl_b32 s{sT0}, s{sW}, 4\nv_lshlrev_b32 v{vSL}, 2, v{vG4}\nv_add_u32 v{vSL}, s{sT0}, v{vSL}")
    a(f"ds_write_b32 v{vSL}, v{t0} offset:{L_MX}")
    nxt()
    a("s_waitcnt lgkmcnt(0)\ns_barrier")
    a(f"v_mov_b32 v{t1}, 0")
    mx = vD
    for i in range(4): a(f"ds_read_b128 v[{mx+4*i}:{mx+4*i+3}], v{t1} offset:{L_MX+16*i}")
    a("s_waitcnt lgkmcnt(0)")
    vMX = vT[0]
    a(f"v_max3_f32 v{mx}, v{mx}, v{mx+1}, v{mx+2}\nv_max3_f32 v{mx+3}, v{mx+3}, v{mx+4}, v{mx+5}\nv_max3_f32 v{mx+6}, v{mx+6}, v{mx+7}, v{mx+8}\nv_max3_f32 v{mx+9}, v{mx+9}, v{mx+10}, v{mx+11}\nv_max3_f32 v{mx+12}, v{mx+12}, v{mx+13}, v{mx+14}")
    a(f"v_max3_f32 v{mx}, v{mx}, v{mx+3}, v{mx+6}\nv_max3_f32 v{mx+9}, v{mx+9}, v{mx+12}, v{mx+15}\nv_max_f32 v{vMX}, v{mx}, v{mx+9}")
    for u in range(4): a(f"v_sub_f32 v{sc[u]}, v{sc[u]}, v{vMX}")
    for u in range(4): a(f"v_mul_f32 v{sc[u]}, s{sLOG2E}, v{sc[u]}")
    for u in range(4): a(f"v_exp_f32 v{sc[u]}, v{sc[u]}")
    for u in range(4): a(f"v_cvt_pk_bf16_f32 v{vPP+u}, v{sc[u]}, v{sc[u]}")
    a(f"v_add_f32 v{t0}, v{sc[0]}, v{sc[1]}\nv_add_f32 v{t1}, v{sc[2]}, v{sc[3]}\nv_add_f32 v{t0}, v{t0}, v{t1}")
    for m in ("row_ror:4", "row_ror:8"):
        a(f"v_add_f32_dpp v{t0}, v{t0}, v{t0} {m} row_mask:0xf bank_mask:0xf")
    a(f"ds_write_b32 v{vSL}, v{t0} offset:{L_LS}")
    stamp()
    build(Bs[0], vPP, "row_newbcast:0")
    for t in range(16):
        if t + 1 < 16: build(Bs[(t + 1) % 2], vPP + (t + 1) // 4, f"row_newbcast:{4*((t+1)%4)}")
        a.wait(f"V{t}"); mfma(vDo, vV + 4 * t, Bs[t % 2], t == 0); nxt()
    nxt(10)
    stamp()
    a(f"ds_write_b128 v{vRAW}, v[{vDo}:{vDo+3}] offset:{L_RO}")
    lq, lh, lpub = a.newlabel("Lq"), a.newlabel("Lh"), a.newlabel("Lpub")
    a("s_waitcnt lgkmcnt(0)\ns_barrier")
    a(f"s_cmp_lt_u32 s{sW}, 2\ns_cbranch_scc1 {lq}\ns_cmp_eq_u32 s{sW}, 2\ns_cbranch_scc1 {lh}")
    a(f"v_mov_b32 v{vPub}, {OOB}\ns_branch {lpub}")
    a.label(lq)
    o = L_RO // 256
    assert L_RO % 256 == 0
    a(f"ds_read2st64_b32 v[{vF[0]}:{vF[1]}], v{vRQ} offset0:{o} offset1:{o+4}\nds_read2st64_b32 v[{vF[2]}:{vF[3]}], v{vRQ} offset0:{o+8} offset1:{o+12}")
    a(f"s_lshl_b32 s{sT0}, s{sG}, 3\ns_add_u32 s{sT0}, s{sT0}, s{sS}\ns_lshl_b32 s{sT0}, s{sT0}, 10\ns_add_u32 s{sT0}, s{sT0}, {OP0}")
    a(f"v_lshlrev_b32 v{vPub}, 3, v0\nv_add_u32 v{vPub}, s{sT0}, v{vPub}")
    a(f"s_waitcnt lgkmcnt(0)\nv_add_f32 v{vF[0]}, v{vF[0]}, v{vF[1]}\nv_add_f32 v{vF[2]}, v{vF[2]}, v{vF[3]}\nv_add_f32 v{vVal}, v{vF[0]}, v{vF[2]}")
    a(f"s_branch {lpub}")
    a.label(lh)
    a(f"v_mov_b32 v{t1}, 0")
    for i in range(4): a(f"ds_read_b128 v[{mx+4*i}:{mx+4*i+3}], v{t1} offset:{L_LS+16*i}") if not (mx <= vDo < mx + 16) else None
    ls = vBq
    for i in range(4): a(f"ds_read_b128 v[{ls+4*i}:{ls+4*i+3}], v{t1} offset:{L_LS+16*i}")
    a(f"s_lshl_b32 s{sT0}, s{sG}, 7\ns_lshl_b32 s{sT1}, s{sS}, 4\ns_add_u32 s{sT0}, s{sT0}, s{sT1}\ns_add_u32 s{sT0}, s{sT0}, {ML0}")
    a(f"v_lshlrev_b32 v{vPub}, 3, v{vL}\nv_add_u32 v{vPub}, s{sT0}, v{vPub}\nv_cmp_gt_u32 vcc, 2, v{vL}\nv_mov_b32 v{t0}, {OOB}\nv_cndmask_b32 v{vPub}, v{t0}, v{vPub}, vcc")
    a("s_waitcnt lgkmcnt(0)")
    for st in (1, 2, 4, 8):
        for i in range(0, 16, 2 * st): a(f"v_add_f32 v{ls+i}, v{ls+i}, v{ls+i+st}")
    a(f"v_cmp_eq_u32 vcc, 0, v{vL}\nv_cndmask_b32 v{vVal}, v{ls}, v{vMX}, vcc")
    a.label(lpub)
    a(f"v_mov_b32 v{vVal+1}, s{sTAG}")
    a.vmem("S2", f"buffer_store_dwordx2 v[{vVal}:{vVal+1}], v{vPub}, {srd(SWS)}, 0 offen sc1")
    stamp()
    g2txt = f"buffer_load_dwordx4 v[{vGa+8}:{vGa+11}], v{vGh}, {srd(SWS)}, 0 offen sc1"
    poll("G2", "G2", [vGa + 9, vGa + 11], g2txt, mask=sHV)
    hv = [vGa + 8, vGa + 10]
    red8(hv)
    a(f"v_cvt_pk_bf16_f32 v{t0}, v{hv[0]}, v{hv[1]}\nv_lshlrev_b32 v{hv[0]}, 16, v{t0}\nv_and_b32 v{hv[1]}, 0xffff0000, v{t0}")
    ev = [vF[0], vF[1]]
    for j in range(2): a(f"v_mul_f32 v{ev[j]}, s{sLOG2E}, v{hv[j]}")
    for j in range(2): a(f"v_exp_f32 v{ev[j]}, -v{ev[j]}")
    for j in range(2): a(f"v_add_f32 v{ev[j]}, 1.0, v{ev[j]}")
    for j in range(2): a(f"v_rcp_f32 v{ev[j]}, v{ev[j]}")
    for j in range(2): a(f"v_mul_f32 v{hv[j]}, v{hv[j]}, v{ev[j]}")
    for j in range(2): a(f"v_cvt_pk_bf16_f32 v{hv[j]}, v{hv[j]}, v{hv[j]}")
    for j in range(2): a(f"v_cndmask_b32 v{hv[j]}, 0, v{hv[j]}, s[{sHV}:{sHV+1}]")
    build(Bs[0], hv[0]); build(Bs[1], hv[1])
    a.wait("w20"); mfma(vDy, vW2, Bs[0], True)
    a.wait("w21"); mfma(vDy, vW2 + 4, Bs[1], False)
    stamp()
    a(f"v_add_u32 v{vGq}, {OP0 - QP0}, v{vGq}")
    g3txt = (f"buffer_load_dwordx4 v[{vGa}:{vGa+3}], v{vGq}, {srd(SWS)}, 0 offen sc1\n"
             f"buffer_load_dwordx4 v[{vGa+4}:{vGa+7}], v{vGq}, {srd(SWS)}, 0 offen offset:16 sc1\n"
             f"buffer_load_dwordx4 v[{vGa+8}:{vGa+11}], v{vGm}, {srd(SWS)}, 0 offen sc1")
    a(g3txt)
    poll("G3", None, [vGa + 1, vGa + 3, vGa + 5, vGa + 7, vGa + 9, vGa + 11], g3txt)
    stamp()
    vm_, vl_ = vGa + 8, vGa + 10
    a(f"v_mov_b32 v{t0}, v{vm_}")
    red8([t0], "max")
    a(f"v_sub_f32 v{t0}, v{vm_}, v{t0}\nv_mul_f32 v{t0}, s{sLOG2E}, v{t0}\nv_exp_f32 v{t0}, v{t0}")
    ov = [vGa, vGa + 2, vGa + 4, vGa + 6]
    a(f"v_mul_f32 v{vl_}, v{vl_}, v{t0}")
    for v in ov: a(f"v_mul_f32 v{v}, v{v}, v{t0}")
    red8([vl_] + ov)
    a(f"v_rcp_f32 v{vl_}, v{vl_}")
    for v in ov: a(f"v_mul_f32 v{v}, v{v}, v{vl_}")
    for v in ov: a(f"v_cvt_pk_bf16_f32 v{v}, v{v}, v{v}")
    build(Bs[0], ov[0])
    for t in range(4):
        if t + 1 < 4: build(Bs[(t + 1) % 2], ov[t + 1])
        mfma(vDy, vWO + 4 * t, Bs[t % 2], False)
    a(f"ds_write_b128 v{vRAW}, v[{vDy}:{vDy+3}] offset:{L_RY}")
    a("s_waitcnt lgkmcnt(0)\ns_barrier")
    lfin, lred = a.newlabel("Lfin"), a.newlabel("Lred")
    a(f"s_cmp_eq_u32 s{sW}, 1\ns_cbranch_scc1 {lred}\ns_cmp_eq_u32 s{sW}, 0\ns_cbranch_scc0 {lfin}")
    assert L_RY % 256 == 0
    read8(L_RY, vRY)
    a(f"s_lshl_b32 s{sT0}, s{sS}, 5\ns_add_u32 s{sT0}, s{sT0}, s{sG}\ns_lshl_b32 s{sT0}, s{sT0}, 9\ns_add_u32 s{sT0}, s{sT0}, {YP0}")
    a(f"v_lshlrev_b32 v{vPub}, 3, v{vL}\nv_add_u32 v{vPub}, s{sT0}, v{vPub}")
    sum8(vVal)
    a(f"v_mov_b32 v{vVal+1}, s{sTAG}")
    a(f"buffer_store_dwordx2 v[{vVal}:{vVal+1}], v{vPub}, {srd(SWS)}, 0 offen sc1")
    a(f"s_branch {lfin}")
    a.label(lred)
    a(f"s_and_b32 s{sT0}, s{sG}, 1\ns_cmp_eq_u32 s{sT0}, 0\ns_cbranch_scc0 {lfin}")
    a(f"s_lshl_b32 s{sT0}, s{sS}, 14\ns_lshl_b32 s{sT1}, s{sCQ}, 5\ns_add_u32 s{sT0}, s{sT0}, s{sT1}\ns_add_u32 s{sT0}, s{sT0}, {YP0}")
    a(f"v_lshrrev_b32 v{t0}, 1, v{vL}\nv_lshlrev_b32 v{t0}, 9, v{t0}\nv_and_b32 v{t1}, 1, v{vL}\nv_lshl_add_u32 v{t0}, v{t1}, 4, v{t0}\nv_add_u32 v{vGq}, s{sT0}, v{t0}")
    g4txt = f"buffer_load_dwordx4 v[{vGa}:{vGa+3}], v{vGq}, {srd(SWS)}, 0 offen sc1"
    a(g4txt)
    poll("G4", None, [vGa + 1, vGa + 3], g4txt)
    yv = [vGa, vGa + 2]
    for m in ("quad_perm:[2,3,0,1]", "row_ror:4", "row_ror:8"):
        for v in yv: a(f"v_add_f32_dpp v{v}, v{v}, v{v} {m} row_mask:0xf bank_mask:0xf")
    for sw in ("v_permlane16_swap_b32", "v_permlane32_swap_b32"):
        a(f"v_mov_b32 v{vF[0]}, v{yv[0]}\nv_mov_b32 v{vF[1]}, v{yv[1]}")
        a(f"{sw} v{yv[0]}, v{vF[0]}\n{sw} v{yv[1]}, v{vF[1]}")
        a(f"v_add_f32 v{yv[0]}, v{yv[0]}, v{vF[0]}\nv_add_f32 v{yv[1]}, v{yv[1]}, v{vF[1]}")
    a(f"v_lshlrev_b32 v{vF[0]}, 16, v{vXD}\nv_and_b32 v{vF[1]}, 0xffff0000, v{vXD}")
    a(f"v_add_f32 v{yv[0]}, v{yv[0]}, v{vF[0]}\nv_add_f32 v{yv[1]}, v{yv[1]}, v{vF[1]}\nv_cvt_pk_bf16_f32 v{yv[0]}, v{yv[0]}, v{yv[1]}")
    a("s_mov_b64 exec, 3")
    a(f"buffer_store_dword v{yv[0]}, v19, {srd(SOUT)}, 0 offen")
    a(f"s_or_b32 s{sT0}, s{sS}, s{sG}\ns_cmp_eq_u32 s{sT0}, 0\ns_cbranch_scc0 {lfin}")
    a(f"s_mov_b64 exec, 1\nv_mov_b32 v{t0}, 0\nbuffer_store_dword v{vTAG}, v{t0}, {srd(SWS)}, 0 offen sc1")
    a.label(lfin)
    if stamps:
        stamp()
        n = st_idx[0]
        a("s_mov_b64 exec, 1\ns_waitcnt lgkmcnt(0) vmcnt(0)")
        a(f"s_lshl_b32 s{sT0}, s2, 2\ns_add_u32 s{sT0}, s{sT0}, s{sW}\ns_lshl_b32 s{sT0}, s{sT0}, 7\ns_add_u32 s{sT0}, s{sT0}, {STAMP0}\nv_mov_b32 v{t0}, s{sT0}")
        a(f"v_mov_b32 v{vF[0]}, s100\nbuffer_store_dword v{vF[0]}, v{t0}, {srd(SWS)}, 0 offen")
        a(f"v_mov_b32 v{vF[1]}, {n}\nbuffer_store_dword v{vF[1]}, v{t0}, {srd(SWS)}, 0 offen offset:4")
        for i in range(n):
            a(f"v_mov_b32 v{vK+i}, s{ST_BASE+2*i}\nbuffer_store_dword v{vK+i}, v{t0}, {srd(SWS)}, 0 offen offset:{8+4*i}")
        a(f"v_mov_b32 v{vF[2]}, s{sRETRY}\nbuffer_store_dword v{vF[2]}, v{t0}, {srd(SWS)}, 0 offen offset:64")
    a.label("L_end")
    a("s_endpgm")
    return wrap(a.text(), 256, 256, LDS_TOTAL, vgpr=256, sgpr=102)

if __name__ == "__main__":
    out = sys.argv[1]
    kw = {}
    for arg in sys.argv[2:]:
        k, v = arg.split("=")
        kw[k] = int(v) if v.lstrip("-").isdigit() else v
    open(out, "w").write(gen(**kw))
```

```python
import sys
from asmlib import *

QP0, HP0, OP0, ML0, YP0, WSLIM = 0x1000, 0x42000, 0x60000, 0xA0000, 0xB0000, 0xD0000
HP_STRIDE = 1408 * 8
STAMP0 = 0x100000
OOB = 0x10000000
TAGC = 0x9E3779B9

L_RQ, L_RH, L_QB, L_MX, L_LS, L_RO, L_RY = 0, 4096, 8192, 8448, 8512, 8704, 12800
LDS_TOTAL = 98304

sW, sG, sS, sTAG = 26, 27, 28, 29
SK, SV, SWQ, SWO, SW1, SW2, SWS, SX, SOUT = 32, 36, 40, 44, 48, 52, 56, 60, 64
s4K, s8K, s12K, s16K, s24K = 68, 69, 70, 71, 93
sM4 = [72, 74, 76, 78]
sC = [None, 80, 82, 84]
sSCALE, sLOG2E = 86, 87
sT0, sT1, sT2, sT3 = 30, 31, 88, 89
sEX = 90
sRETRY = 92
sHV = 94
sBLK, sSROW = 96, 97
sCQ = 98

def srd(r): return f"s[{r}:{r+3}]"

def gen(W=9, stamps=False, g1_after=None, sleep_poll=0):
    a = Asm()
    vL, vI, vG4, vC, vR8 = 1, 2, 3, 4, 5
    vKo, vVo, vWQo, vW1o, vWOo, vW2o = 6, 7, 8, 9, 10, 11
    vGq, vGm, vGh, vPub, vRQ, vRY = 12, 13, 14, 15, 16, 17
    vM = [20, 21, 22, 23]
    vTAG = 24
    vXA, vXB, vXC, vXD = 28, 32, 34, 35
    vWQ, vW1 = 36, 52
    vK, vV = 60, 124
    vW2, vWO = 188, 196
    vBq = 212
    vD = 228
    vB0, vB1 = 244, 248
    vT = [25, 26, 27, 18, 19, 252, 253, 254, 255]
    vDq, vDh = 228, 232
    vDo, vDy = 232, 236
    vGa = 36
    vPP = 52

    st_idx = [0]
    RT = {'G1': 24, 'G2': 25, 'G3': 99, 'G4': 98}
    ST_BASE = 4
    def stamp():
        if stamps:
            i = st_idx[0]; st_idx[0] += 1
            assert i < 10
            a(f"s_memrealtime s[{ST_BASE+2*i}:{ST_BASE+2*i+1}]")

    a("s_cmp_ge_u32 s2, 256\ns_cbranch_scc1 L_end")
    if stamps: a("s_memrealtime s[100:101]")
    a("s_load_dwordx16 s[4:19], s[0:1], 0")
    a("s_load_dwordx4 s[20:23], s[0:1], 64")
    a("s_load_dwordx2 s[24:25], s[0:1], 80")
    a(f"v_lshrrev_b32 v{vT[0]}, 6, v0")
    a(f"v_and_b32 v{vL}, 63, v0")
    a(f"v_readfirstlane_b32 s{sW}, v{vT[0]}")
    a(f"s_and_b32 s{sT0}, s2, 7\ns_lshl_b32 s{sG}, s{sT0}, 2\ns_lshr_b32 s{sT1}, s2, 3\ns_and_b32 s{sT2}, s{sT1}, 3\ns_add_u32 s{sG}, s{sG}, s{sT2}")
    a(f"s_lshr_b32 s{sS}, s2, 5")
    a(f"s_mul_i32 s{sT0}, s{sT0}, 22\ns_add_u32 s{sT0}, s{sT0}, s{sT1}\ns_lshr_b32 s{sBLK}, s{sT0}, 3\ns_and_b32 s{sSROW}, s{sT0}, 7")
    a(f"s_cmp_lt_u32 s{sT1}, 22\ns_cselect_b32 s99, 1, 0")
    a(f"s_lshr_b32 s{sCQ}, s{sG}, 1")
    a(f"v_and_b32 v{vI}, 15, v{vL}\nv_lshrrev_b32 v{vG4}, 4, v{vL}\nv_and_b32 v{vC}, 7, v{vL}\nv_lshrrev_b32 v{vR8}, 3, v{vL}")
    a(f"v_lshrrev_b32 v{vKo}, 2, v{vI}\nv_lshlrev_b32 v{vKo}, 12, v{vKo}\nv_and_b32 v{vT[0]}, 3, v{vI}\nv_lshl_add_u32 v{vT[0]}, v{vG4}, 2, v{vT[0]}\nv_lshl_add_u32 v{vKo}, v{vT[0]}, 4, v{vKo}")
    a(f"v_lshlrev_b32 v{vVo}, 12, v{vG4}\nv_lshl_add_u32 v{vVo}, v{vI}, 4, v{vVo}")
    a(f"v_lshlrev_b32 v{vM[0]}, 4, v{vL}")
    a(f"v_lshlrev_b32 v{vWQo}, 15, v{vG4}\nv_lshl_add_u32 v{vWQo}, v{vI}, 4, v{vWQo}")
    a(f"v_mul_u32_u24 v{vW1o}, 5504, v{vR8}\nv_lshl_add_u32 v{vW1o}, v{vC}, 4, v{vW1o}")
    a(f"v_lshlrev_b32 v{vWOo}, 12, v{vR8}\nv_lshl_add_u32 v{vWOo}, v{vC}, 4, v{vWOo}")
    a(f"v_lshlrev_b32 v{vW2o}, 11, v{vR8}\nv_lshl_add_u32 v{vW2o}, v{vC}, 4, v{vW2o}")
    a(f"s_lshl_b32 s{sT0}, s{sS}, 7\ns_lshl_b32 s{sT1}, s{sW}, 5\ns_add_u32 s{sT0}, s{sT0}, s{sT1}")
    a(f"v_lshlrev_b32 v{vT[1]}, 3, v{vG4}\nv_add_u32 v{vT[1]}, s{sT0}, v{vT[1]}")
    a(f"s_lshl_b32 s{sT0}, s{sSROW}, 7\ns_add_u32 s{sT0}, s{sT0}, s{sT1}")
    a(f"v_lshlrev_b32 v{vT[2]}, 2, v{vR8}\nv_add_u32 v{vT[2]}, s{sT0}, v{vT[2]}")
    a(f"s_lshl_b32 s{sT0}, s{sS}, 7\ns_lshl_b32 s{sT1}, s{sCQ}, 3\ns_add_u32 s{sT0}, s{sT0}, s{sT1}")
    a(f"v_and_b32 v{vT[3]}, 1, v{vL}\nv_lshlrev_b32 v{vT[3]}, 2, v{vT[3]}\nv_add_u32 v{vT[3]}, s{sT0}, v{vT[3]}")
    a(f"s_cmp_eq_u32 s{sBLK}, 21\ns_cselect_b32 s{sT0}, 4, 8\nv_cmp_le_u32 vcc, s{sT0}, v{vC}\nv_mov_b32 v{vT[4]}, {OOB}\nv_cndmask_b32 v{vW1o}, v{vW1o}, v{vT[4]}, vcc")
    a(f"s_lshl_b32 s{sT0}, s{sG}, 21\ns_add_u32 s{sT0}, s{sT0}, 0x180000\ns_lshl_b32 s{sT1}, s{sS}, 16\ns_add_u32 s{sT0}, s{sT0}, s{sT1}\ns_lshl_b32 s{sT1}, s{sW}, 10\ns_add_u32 s{SK+2}, s{sT0}, s{sT1}")
    a(f"s_lshl_b32 s{sT0}, s{sS}, 6\ns_lshl_b32 s{sT1}, s{sW}, 4\ns_add_u32 s{sT0}, s{sT0}, s{sT1}\ns_lshl_b32 s{sT0}, s{sT0}, 13\ns_lshl_b32 s{sT1}, s{sG}, 8\ns_add_u32 s{SWQ+2}, s{sT0}, s{sT1}")
    a(f"s_lshl_b32 s{sT0}, s{sSROW}, 6\ns_lshl_b32 s{sT1}, s{sW}, 4\ns_add_u32 s{sT0}, s{sT0}, s{sT1}\ns_mul_i32 s{sT0}, s{sT0}, 2752\ns_lshl_b32 s{sT1}, s{sBLK}, 7\ns_add_u32 s{SW1+2}, s{sT0}, s{sT1}")
    a(f"s_lshl_b32 s{sT0}, s{sG}, 7\ns_lshl_b32 s{sT1}, s{sW}, 5\ns_add_u32 s{sT0}, s{sT0}, s{sT1}\ns_lshl_b32 s{sT0}, s{sT0}, 10\ns_lshl_b32 s{sT1}, s{sS}, 7\ns_add_u32 s{SWO+2}, s{sT0}, s{sT1}")
    a(f"s_mul_i32 s{sT0}, s{sCQ}, 86\ns_and_b32 s{sT1}, s{sG}, 1\ns_mul_i32 s{sT2}, s{sT1}, 44\ns_add_u32 s{sT0}, s{sT0}, s{sT2}\ns_mul_i32 s{sT2}, s{sW}, 12\ns_add_u32 s{sT0}, s{sT0}, s{sT2}")
    a(f"s_lshl_b32 s{sT1}, s{sT1}, 1\ns_sub_u32 s{sT1}, 44, s{sT1}\ns_sub_u32 s{sT1}, s{sT1}, s{sT2}\ns_min_u32 s{sT3}, s{sT1}, 12")
    a(f"v_mul_u32_u24 v{vGh}, {HP_STRIDE}, v{vC}\nv_lshl_add_u32 v{vGh}, v{vR8}, 4, v{vGh}\ns_lshl_b32 s{sT1}, s{sT0}, 3\ns_add_u32 s{sT1}, s{sT1}, {HP0}\nv_add_u32 v{vGh}, s{sT1}, v{vGh}")
    a(f"v_lshlrev_b32 v{vT[5]}, 1, v{vR8}\nv_cmp_gt_u32 s[{sHV}:{sHV+1}], s{sT3}, v{vT[5]}\nv_cndmask_b32 v{vGh}, v{vT[4]}, v{vGh}, s[{sHV}:{sHV+1}]")
    a(f"s_lshl_b32 s{sT0}, s{sT0}, 10\ns_lshl_b32 s{sT1}, s{sS}, 7\ns_add_u32 s{SW2+2}, s{sT0}, s{sT1}")
    a(f"s_sub_u32 s{sT3}, s{sT3}, 1\ns_lshl_b32 s{sT3}, s{sT3}, 10\ns_add_u32 s{sT3}, s{sT3}, 128")
    a(f"s_mov_b32 s{s4K}, 32768\ns_mov_b32 s{s8K}, 8192\ns_mov_b32 s{s12K}, 49152\ns_mov_b32 s{s16K}, 16384\ns_mov_b32 s{s24K}, 24576")
    a("s_waitcnt lgkmcnt(0)")
    a(f"s_load_dword s{sTAG}, s[24:25], 0")
    def mk(r, p, nrec, off=True):
        if off:
            a(f"s_add_u32 s{r}, s{p}, s{r+2}\ns_addc_u32 s{r+1}, s{p+1}, 0")
        else:
            a(f"s_mov_b32 s{r}, s{p}\ns_mov_b32 s{r+1}, s{p+1}")
        a(f"s_mov_b32 s{r+2}, {nrec}\ns_mov_b32 s{r+3}, 0x20000")
    mk(SX, 4, 1024, off=False)
    a.vmem("xa", f"buffer_load_dwordx4 v[{vXA}:{vXA+3}], v{vM[0]}, {srd(SX)}, 0 offen")
    a.vmem("xb", f"buffer_load_dwordx2 v[{vXB}:{vXB+1}], v{vT[1]}, {srd(SX)}, 0 offen")
    a.vmem("xc", f"buffer_load_dword v{vXC}, v{vT[2]}, {srd(SX)}, 0 offen")
    mk(SWQ, 10, 15 * 8192 + 256)
    so_wq = ["0", f"s{s8K}", f"s{s16K}", f"s{s24K}"]
    for t in range(4):
        a.vmem(f"wq{t}", f"buffer_load_dwordx4 v[{vWQ+4*t}:{vWQ+4*t+3}], v{vWQo}, {srd(SWQ)}, {so_wq[t]} offen nt")
    a(f"s_add_u32 s{SW1}, s16, s{SW1+2}\ns_addc_u32 s{SW1+1}, s17, 0\ns_sub_u32 s{sT0}, 1409024, s{SW1+2}\ns_cmp_eq_u32 s99, 1\ns_cselect_b32 s{SW1+2}, s{sT0}, 0\ns_mov_b32 s{SW1+3}, 0x20000")
    for t in range(2):
        a.vmem(f"w1{t}", f"buffer_load_dwordx4 v[{vW1+4*t}:{vW1+4*t+3}], v{vW1o}, {srd(SW1)}, 0 offen offset:{2752*t} nt")
    a(f"s_mov_b32 s{SV+2}, s{SK+2}")
    mk(SK, 6, 62464); mk(SV, 8, 62464)
    so4 = ["0", f"s{s16K}", f"s{s4K}", f"s{s12K}"]
    def ldK(t): a.vmem(f"K{t}", f"buffer_load_dwordx4 v[{vK+4*t}:{vK+4*t+3}], v{vKo}, {srd(SK)}, {so4[t%4]} offen offset:{(t//4)*256} nt")
    def ldV(t): a.vmem(f"V{t}", f"buffer_load_dwordx4 v[{vV+4*t}:{vV+4*t+3}], v{vVo}, {srd(SV)}, {so4[t%4]} offen offset:{(t//4)*256} nt")
    def ldWO(t): a.vmem(f"wo{t}", f"buffer_load_dwordx4 v[{vWO+4*t}:{vWO+4*t+3}], v{vWOo}, {srd(SWO)}, 0 offen offset:{t*1024} nt")
    def ldW2(t): a.vmem(f"w2{t}", f"buffer_load_dwordx4 v[{vW2+4*t}:{vW2+4*t+3}], v{vW2o}, {srd(SW2)}, 0 offen offset:{t*1024} nt")
    def ldG1():
        a.vmem("G1a", f"buffer_load_dwordx4 v[{vGa}:{vGa+3}], v{vGq}, {srd(SWS)}, 0 offen sc1")
        a.vmem("G1b", f"buffer_load_dwordx4 v[{vGa+4}:{vGa+7}], v{vGq}, {srd(SWS)}, 0 offen offset:16 sc1")
    def ldG2(): a.vmem("G2", f"buffer_load_dwordx4 v[{vGa+8}:{vGa+11}], v{vGh}, {srd(SWS)}, 0 offen sc1")
    queue = [("K", t) for t in range(16)] + [("G1", 0)] + [("V", t) for t in range(16)] + [("G2", 0), ("W2", 0), ("W2", 1)] + [("WO", t) for t in range(4)]
    def nxt(n=1):
        for _ in range(n):
            if not queue: return
            k, t = queue.pop(0)
            {"K": lambda: ldK(t), "V": lambda: ldV(t), "G1": ldG1, "G2": ldG2, "W2": lambda: ldW2(t), "WO": lambda: ldWO(t)}[k]()
    n0 = W - 9 + 2
    nxt(n0)
    a.vmem("xd", f"buffer_load_dword v{vXD}, v{vT[3]}, {srd(SX)}, 0 offen")
    mk(SWO, 12, 31 * 1024 + 128)
    a(f"s_add_u32 s{SW2}, s18, s{SW2+2}\ns_addc_u32 s{SW2+1}, s19, 0\ns_mov_b32 s{SW2+2}, s{sT3}\ns_mov_b32 s{SW2+3}, 0x20000")
    mk(SWS, 24, WSLIM if not stamps else 0x200000, off=False)
    mk(SOUT, 20, 1024, off=False)
    a(f"v_mov_b32 v19, v{vT[3]}")
    for tt in range(4):
        m = 0x000F000F << (4 * tt)
        a(f"s_mov_b32 s{sM4[tt]}, {m:#x}\ns_mov_b32 s{sM4[tt]+1}, {m:#x}")
    for c in range(1, 4):
        m = 0x11111111 << c
        a(f"s_mov_b32 s{sC[c]}, {m:#x}\ns_mov_b32 s{sC[c]+1}, {m:#x}")
    a(f"s_mov_b32 s{sSCALE}, 0x3db504f3\ns_mov_b32 s{sLOG2E}, 0x3fb8aa3b\ns_mov_b32 s{sRETRY}, 100000")
    a(f"v_and_b32 v{vT[0]}, 1, v{vL}\nv_lshlrev_b32 v{vT[0]}, 4, v{vT[0]}\nv_mov_b32 v{vT[1]}, 0xffff\nv_lshlrev_b32 v{vT[0]}, v{vT[0]}, v{vT[1]}")
    for w in range(4):
        m = 0x03030303 << (2 * w)
        a(f"s_mov_b32 s{sEX}, {m:#x}\ns_mov_b32 s{sEX+1}, {m:#x}\nv_cndmask_b32 v{vM[w]}, 0, v{vT[0]}, s[{sEX}:{sEX+1}]")
    a(f"s_lshl_b32 s{sT0}, s{sG}, 13\ns_lshl_b32 s{sT1}, s{sW}, 8\ns_add_u32 s{sT0}, s{sT0}, s{sT1}\ns_add_u32 s{sT0}, s{sT0}, {QP0}")
    a(f"v_lshlrev_b32 v{vGq}, 10, v{vC}\nv_lshl_add_u32 v{vGq}, v{vR8}, 5, v{vGq}\nv_add_u32 v{vGq}, s{sT0}, v{vGq}")
    a(f"s_lshl_b32 s{sT0}, s{sG}, 7\ns_add_u32 s{sT0}, s{sT0}, {ML0}\nv_lshlrev_b32 v{vGm}, 4, v{vC}\nv_add_u32 v{vGm}, s{sT0}, v{vGm}")
    a(f"v_and_b32 v{vT[0]}, 127, v0\nv_lshrrev_b32 v{vT[1]}, 5, v{vT[0]}\nv_lshlrev_b32 v{vRQ}, 6, v{vT[1]}\nv_and_b32 v{vT[1]}, 7, v{vT[0]}\nv_lshl_add_u32 v{vRQ}, v{vT[1]}, 2, v{vRQ}\nv_bfe_u32 v{vT[1]}, v{vT[0]}, 3, 2\nv_add_lshl_u32 v{vRQ}, v{vRQ}, v{vT[1]}, 2")
    a(f"v_lshrrev_b32 v{vT[1]}, 5, v{vL}\nv_lshlrev_b32 v{vRY}, 6, v{vT[1]}\nv_lshl_add_u32 v{vRY}, v{vC}, 2, v{vRY}\nv_bfe_u32 v{vT[1]}, v{vL}, 3, 2\nv_add_lshl_u32 v{vRY}, v{vRY}, v{vT[1]}, 2")
    HALF1 = (2 * 64 + 8 * 4) * 4
    stamp()

    f = [vK + 0] * 0
    vF = [244, 245, 246, 247, 248, 249, 250, 251]
    a.wait("xa"); nxt()
    a(f"s_waitcnt lgkmcnt(0)")
    a(f"s_add_u32 s{sTAG}, s{sTAG}, {TAGC:#x}\nv_mov_b32 v{vTAG}, s{sTAG}")
    for j in range(4):
        a(f"v_lshlrev_b32 v{vF[2*j]}, 16, v{vXA+j}\nv_and_b32 v{vF[2*j+1]}, 0xffff0000, v{vXA+j}")
    def wave_sum(v, sdst):
        for m in ("quad_perm:[1,0,3,2]", "quad_perm:[2,3,0,1]", "row_half_mirror", "row_mirror"):
            a(f"v_add_f32_dpp v{v}, v{v}, v{v} {m} row_mask:0xf bank_mask:0xf")
        a(f"v_add_f32_dpp v{v}, v{v}, v{v} row_bcast:15 row_mask:0xa bank_mask:0xf")
        a(f"v_add_f32_dpp v{v}, v{v}, v{v} row_bcast:31 row_mask:0xc bank_mask:0xf")
        a(f"v_readlane_b32 s{sdst}, v{v}, 63")
    t0, t1, t2, t3 = vT[5], vT[6], vT[7], vT[8]
    a(f"v_add_f32 v{t0}, v{vF[0]}, v{vF[1]}\nv_add_f32 v{t1}, v{vF[2]}, v{vF[3]}\nv_add_f32 v{t2}, v{vF[4]}, v{vF[5]}\nv_add_f32 v{t3}, v{vF[6]}, v{vF[7]}")
    a(f"v_add_f32 v{t0}, v{t0}, v{t1}\nv_add_f32 v{t2}, v{t2}, v{t3}\nv_add_f32 v{t0}, v{t0}, v{t2}")
    wave_sum(t0, sT0)
    vMU, vSD, vR = vXA, vXA + 1, vXA + 2
    a(f"v_mov_b32 v{t1}, 0x3b000000\nv_mul_f32 v{vMU}, s{sT0}, v{t1}")
    nxt()
    for j in range(8):
        a(f"v_sub_f32 v{vF[j]}, v{vF[j]}, v{vMU}")
    a(f"v_mul_f32 v{t0}, v{vF[0]}, v{vF[0]}\nv_mul_f32 v{t2}, v{vF[1]}, v{vF[1]}")
    for j in range(2, 8, 2):
        a(f"v_fmac_f32 v{t0}, v{vF[j]}, v{vF[j]}\nv_fmac_f32 v{t2}, v{vF[j+1]}, v{vF[j+1]}")
    a(f"v_add_f32 v{t0}, v{t0}, v{t2}")
    wave_sum(t0, sT0)
    a(f"v_mul_f32 v{t0}, s{sT0}, v{t1}")
    def rbf(v, tmp=None):
        a(f"v_cvt_pk_bf16_f32 v{v}, v{v}, v{v}\nv_and_b32 v{v}, 0xffff0000, v{v}")
    rbf(vMU); rbf(t0)
    a(f"v_add_f32 v{t0}, 0x3727c5ac, v{t0}")
    rbf(t0)
    a(f"v_sqrt_f32 v{vSD}, v{t0}")
    rbf(vSD)
    a(f"v_rcp_f32 v{vR}, v{vSD}")
    nxt()
    y = vF[:6]
    src = [vXB, vXB, vXB + 1, vXB + 1, vXC, vXC]
    a.wait("xc")
    for j in range(6):
        if j % 2 == 0: a(f"v_lshlrev_b32 v{y[j]}, 16, v{src[j]}")
        else: a(f"v_and_b32 v{y[j]}, 0xffff0000, v{src[j]}")
    for j in range(6): a(f"v_sub_f32 v{y[j]}, v{y[j]}, v{vMU}")
    for j in range(0, 6, 2):
        a(f"v_cvt_pk_bf16_f32 v{t0}, v{y[j]}, v{y[j+1]}\nv_lshlrev_b32 v{y[j]}, 16, v{t0}\nv_and_b32 v{y[j+1]}, 0xffff0000, v{t0}")
    qq = [vBq + j for j in range(6)]; ee = [vBq + 6 + j for j in range(6)]
    for j in range(6): a(f"v_mul_f32 v{qq[j]}, v{y[j]}, v{vR}")
    for j in range(6): a(f"v_fma_f32 v{ee[j]}, -v{qq[j]}, v{vSD}, v{y[j]}")
    for j in range(6): a(f"v_fma_f32 v{qq[j]}, v{ee[j]}, v{vR}, v{qq[j]}")
    for j in range(6): a(f"v_cvt_pk_bf16_f32 v{qq[j]}, v{qq[j]}, v{qq[j]}")
    stamp()
    Bs = [vB0, vB1]
    def build(dst, pp, dpp=None):
        for w in range(4):
            if dpp is None: a(f"v_and_b32 v{dst+w}, v{pp}, v{vM[w]}")
            else: a(f"v_and_b32_dpp v{dst+w}, v{pp}, v{vM[w]} {dpp} row_mask:0xf bank_mask:0xf")
    def mfma(D, A, B, first):
        a(f"v_mfma_f32_16x16x32_bf16 v[{D}:{D+3}], v[{A}:{A+3}], v[{B}:{B+3}], " + ("0" if first else f"v[{D}:{D+3}]"))
    build(Bs[0], qq[0])
    for t in range(4):
        build(Bs[(t + 1) % 2], qq[t + 1])
        a.wait(f"wq{t}"); mfma(vDq, vWQ + 4 * t, Bs[t % 2], t == 0); nxt()
    build(Bs[1], qq[5])
    a.wait("w10"); mfma(vDh, vW1, Bs[0], True); nxt()
    a.wait("w11"); mfma(vDh, vW1 + 4, Bs[1], False); nxt()
    a(f"s_lshl_b32 s{sT0}, s{sW}, 10\nv_lshlrev_b32 v{t0}, 4, v{vL}\nv_add_u32 v{t0}, s{sT0}, v{t0}")
    vRAW = vT[2]
    a(f"v_mov_b32 v{vRAW}, v{t0}")
    a(f"ds_write_b128 v{vRAW}, v[{vDq}:{vDq+3}] offset:{L_RQ}\nds_write_b128 v{vRAW}, v[{vDh}:{vDh+3}] offset:{L_RH}")
    lq, lh, ln_, lpub = a.newlabel("Lq"), a.newlabel("Lh"), a.newlabel("Ln"), a.newlabel("Lpub")
    a("s_waitcnt lgkmcnt(0)\ns_barrier")
    vVal = vXA
    a(f"s_cmp_lt_u32 s{sW}, 2\ns_cbranch_scc1 {lq}\ns_cmp_eq_u32 s{sW}, 2\ns_cbranch_scc1 {lh}")
    a(f"v_mov_b32 v{vPub}, {OOB}\ns_branch {lpub}")
    a.label(lq)
    a(f"ds_read2st64_b32 v[{vF[0]}:{vF[1]}], v{vRQ} offset0:{L_RQ//256} offset1:{L_RQ//256+4}\nds_read2st64_b32 v[{vF[2]}:{vF[3]}], v{vRQ} offset0:{L_RQ//256+8} offset1:{L_RQ//256+12}")
    a(f"s_lshl_b32 s{sT0}, s{sG}, 3\ns_add_u32 s{sT0}, s{sT0}, s{sS}\ns_lshl_b32 s{sT0}, s{sT0}, 10\ns_add_u32 s{sT0}, s{sT0}, {QP0}")
    a(f"v_lshlrev_b32 v{vPub}, 3, v0\nv_add_u32 v{vPub}, s{sT0}, v{vPub}")
    a(f"s_waitcnt lgkmcnt(0)\nv_add_f32 v{vF[0]}, v{vF[0]}, v{vF[1]}\nv_add_f32 v{vF[2]}, v{vF[2]}, v{vF[3]}\nv_add_f32 v{vVal}, v{vF[0]}, v{vF[2]}")
    a(f"s_branch {lpub}")
    a.label(lh)
    def read8(base, addr):
        o = base // 256
        a(f"ds_read2st64_b32 v[{vF[0]}:{vF[1]}], v{addr} offset0:{o} offset1:{o+4}\nds_read2st64_b32 v[{vF[2]}:{vF[3]}], v{addr} offset0:{o+8} offset1:{o+12}")
        a(f"v_add_u32 v{t0}, {HALF1}, v{addr}")
        a(f"ds_read2st64_b32 v[{vF[4]}:{vF[5]}], v{t0} offset0:{o} offset1:{o+4}\nds_read2st64_b32 v[{vF[6]}:{vF[7]}], v{t0} offset0:{o+8} offset1:{o+12}")
    def sum8(dst):
        a("s_waitcnt lgkmcnt(0)")
        a(f"v_add_f32 v{vF[0]}, v{vF[0]}, v{vF[1]}\nv_add_f32 v{vF[2]}, v{vF[2]}, v{vF[3]}\nv_add_f32 v{vF[4]}, v{vF[4]}, v{vF[5]}\nv_add_f32 v{vF[6]}, v{vF[6]}, v{vF[7]}")
        a(f"v_add_f32 v{vF[0]}, v{vF[0]}, v{vF[2]}\nv_add_f32 v{vF[4]}, v{vF[4]}, v{vF[6]}\nv_add_f32 v{dst}, v{vF[0]}, v{vF[4]}")
    read8(L_RH, vRY)
    a(f"s_mul_i32 s{sT0}, s{sSROW}, {HP_STRIDE}\ns_lshl_b32 s{sT1}, s{sBLK}, 9\ns_add_u32 s{sT0}, s{sT0}, s{sT1}\ns_add_u32 s{sT0}, s{sT0}, {HP0}\ns_cmp_eq_u32 s99, 1\ns_cselect_b32 s{sT0}, s{sT0}, {OOB}")
    a(f"v_lshlrev_b32 v{vPub}, 3, v{vL}\nv_add_u32 v{vPub}, s{sT0}, v{vPub}")
    sum8(vVal)
    a.label(lpub)
    a(f"v_mov_b32 v{vVal+1}, s{sTAG}")
    a.vmem("S1", f"buffer_store_dwordx2 v[{vVal}:{vVal+1}], v{vPub}, {srd(SWS)}, 0 offen sc1")
    stamp()
    ki = 0
    while queue and queue[0][0] == "K":
        a.wait(f"K{ki}"); nxt(); ki += 1
    while ki < 16:
        a.wait(f"K{ki}"); nxt(); ki += 1
    def tagcheck(regs, mask=None):
        xs = []
        for i, r in enumerate(regs):
            a(f"v_xor_b32 v{vF[i]}, s{sTAG}, v{r}"); xs.append(vF[i])
        while len(xs) > 1:
            if len(xs) >= 3:
                a(f"v_or3_b32 v{xs[0]}, v{xs[0]}, v{xs[1]}, v{xs[2]}"); xs = [xs[0]] + xs[3:]
            else:
                a(f"v_or_b32 v{xs[0]}, v{xs[0]}, v{xs[1]}"); xs = [xs[0]]
        a(f"v_cmp_ne_u32 vcc, 0, v{xs[0]}")
        if mask is not None: a(f"s_and_b64 vcc, vcc, s[{mask}:{mask+1}]")
    def poll(name, waitname, regs, reissue, mask=None):
        ok, rt = a.newlabel("Lok"), a.newlabel("Lrt")
        if waitname: a.wait(waitname)
        else: a("s_waitcnt vmcnt(0)")
        tagcheck(regs, mask)
        a(f"s_cbranch_vccz {ok}")
        a.label(rt)
        if sleep_poll: a(f"s_sleep {sleep_poll}")
        a(reissue)
        a("s_waitcnt vmcnt(0)")
        tagcheck(regs, mask)
        a(f"s_cbranch_vccz {ok}\ns_sub_u32 s{sRETRY}, s{sRETRY}, 1\ns_cmp_gt_i32 s{sRETRY}, 0\ns_cbranch_scc1 {rt}")
        a.label(ok)
        if stamps:
            a(f"s_mov_b32 s{RT[name]}, s{sRETRY}")
    g1txt = (f"buffer_load_dwordx4 v[{vGa}:{vGa+3}], v{vGq}, {srd(SWS)}, 0 offen sc1\n"
             f"buffer_load_dwordx4 v[{vGa+4}:{vGa+7}], v{vGq}, {srd(SWS)}, 0 offen offset:16 sc1")
    poll("G1", "G1b", [vGa + 1, vGa + 3, vGa + 5, vGa + 7], g1txt)
    stamp()
    nxt()
    def red8(vals, op="add"):
        for m in ("quad_perm:[1,0,3,2]", "quad_perm:[2,3,0,1]", "row_half_mirror"):
            for v in vals:
                a(f"v_{op}_f32_dpp v{v}, v{v}, v{v} {m} row_mask:0xf bank_mask:0xf")
    qv = [vGa, vGa + 2, vGa + 4, vGa + 6]
    red8(qv)
    a(f"v_cvt_pk_bf16_f32 v{vGa}, v{qv[0]}, v{qv[1]}\nv_cvt_pk_bf16_f32 v{vGa+1}, v{qv[2]}, v{qv[3]}")
    a(f"s_lshl_b32 s{sT0}, s{sW}, 6\nv_lshlrev_b32 v{t0}, 3, v{vR8}\nv_add_u32 v{t0}, s{sT0}, v{t0}")
    a(f"s_mov_b64 s[{sEX}:{sEX+1}], exec\ns_mov_b32 exec_lo, 0x01010101\ns_mov_b32 exec_hi, 0x01010101")
    a(f"ds_write_b64 v{t0}, v[{vGa}:{vGa+1}] offset:{L_QB}")
    a(f"s_mov_b64 exec, s[{sEX}:{sEX+1}]")
    a(f"v_and_b32 v{t1}, 3, v{vI}\nv_lshl_add_u32 v{t1}, v{vG4}, 2, v{t1}\nv_lshlrev_b32 v{t1}, 4, v{t1}")
    a("s_waitcnt lgkmcnt(0)\ns_barrier")
    a(f"ds_read_b128 v[{vGa}:{vGa+3}], v{t1} offset:{L_QB}")
    nxt()
    a("s_waitcnt lgkmcnt(0)")
    for tt in range(4):
        for j in range(4):
            a(f"v_cndmask_b32 v{vBq+4*tt+j}, 0, v{vGa+j}, s[{sM4[tt]}:{sM4[tt]+1}]")
    for tt in range(4):
        for u in range(4):
            mfma(vD + 4 * u, vK + 4 * (4 * u + tt), vBq + 4 * tt, tt == 0)
    nxt()
    sc = [vF[0], vF[1], vF[2], vF[3]]
    for u in range(4):
        a(f"v_cndmask_b32 v{sc[u]}, v{vD+4*u}, v{vD+4*u+1}, s[{sC[1]}:{sC[1]+1}]")
    for u in range(4):
        a(f"v_cndmask_b32 v{sc[u]}, v{sc[u]}, v{vD+4*u+2}, s[{sC[2]}:{sC[2]+1}]")
    for u in range(4):
        a(f"v_cndmask_b32 v{sc[u]}, v{sc[u]}, v{vD+4*u+3}, s[{sC[3]}:{sC[3]+1}]")
    for m in ("quad_perm:[1,0,3,2]", "quad_perm:[2,3,0,1]"):
        for u in range(4):
            a(f"v_add_f32_dpp v{sc[u]}, v{sc[u]}, v{sc[u]} {m} row_mask:0xf bank_mask:0xf")
    for u in (0, 2):
        a(f"v_cvt_pk_bf16_f32 v{t0}, v{sc[u]}, v{sc[u+1]}\nv_lshlrev_b32 v{sc[u]}, 16, v{t0}\nv_and_b32 v{sc[u+1]}, 0xffff0000, v{t0}")
    for u in range(4): a(f"v_mul_f32 v{sc[u]}, s{sSCALE}, v{sc[u]}")
    for u in (0, 2):
        a(f"v_cvt_pk_bf16_f32 v{t0}, v{sc[u]}, v{sc[u+1]}\nv_lshlrev_b32 v{sc[u]}, 16, v{t0}\nv_and_b32 v{sc[u+1]}, 0xffff0000, v{t0}")
    a(f"v_max3_f32 v{t0}, v{sc[0]}, v{sc[1]}, v{sc[2]}\nv_max_f32 v{t0}, v{t0}, v{sc[3]}")
    for m in ("row_ror:4", "row_ror:8"):
        a(f"v_max_f32_dpp v{t0}, v{t0}, v{t0} {m} row_mask:0xf bank_mask:0xf")
    vSL = vT[1]
    a(f"s_lshl_b32 s{sT0}, s{sW}, 4\nv_lshlrev_b32 v{vSL}, 2, v{vG4}\nv_add_u32 v{vSL}, s{sT0}, v{vSL}")
    a(f"ds_write_b32 v{vSL}, v{t0} offset:{L_MX}")
    nxt()
    a("s_waitcnt lgkmcnt(0)\ns_barrier")
    a(f"v_mov_b32 v{t1}, 0")
    mx = vD
    for i in range(4): a(f"ds_read_b128 v[{mx+4*i}:{mx+4*i+3}], v{t1} offset:{L_MX+16*i}")
    a("s_waitcnt lgkmcnt(0)")
    vMX = vT[0]
    a(f"v_max3_f32 v{mx}, v{mx}, v{mx+1}, v{mx+2}\nv_max3_f32 v{mx+3}, v{mx+3}, v{mx+4}, v{mx+5}\nv_max3_f32 v{mx+6}, v{mx+6}, v{mx+7}, v{mx+8}\nv_max3_f32 v{mx+9}, v{mx+9}, v{mx+10}, v{mx+11}\nv_max3_f32 v{mx+12}, v{mx+12}, v{mx+13}, v{mx+14}")
    a(f"v_max3_f32 v{mx}, v{mx}, v{mx+3}, v{mx+6}\nv_max3_f32 v{mx+9}, v{mx+9}, v{mx+12}, v{mx+15}\nv_max_f32 v{vMX}, v{mx}, v{mx+9}")
    for u in range(4): a(f"v_sub_f32 v{sc[u]}, v{sc[u]}, v{vMX}")
    for u in range(4): a(f"v_mul_f32 v{sc[u]}, s{sLOG2E}, v{sc[u]}")
    for u in range(4): a(f"v_exp_f32 v{sc[u]}, v{sc[u]}")
    for u in range(4): a(f"v_cvt_pk_bf16_f32 v{vPP+u}, v{sc[u]}, v{sc[u]}")
    a(f"v_add_f32 v{t0}, v{sc[0]}, v{sc[1]}\nv_add_f32 v{t1}, v{sc[2]}, v{sc[3]}\nv_add_f32 v{t0}, v{t0}, v{t1}")
    for m in ("row_ror:4", "row_ror:8"):
        a(f"v_add_f32_dpp v{t0}, v{t0}, v{t0} {m} row_mask:0xf bank_mask:0xf")
    a(f"ds_write_b32 v{vSL}, v{t0} offset:{L_LS}")
    stamp()
    build(Bs[0], vPP, "row_newbcast:0")
    for t in range(16):
        if t + 1 < 16: build(Bs[(t + 1) % 2], vPP + (t + 1) // 4, f"row_newbcast:{4*((t+1)%4)}")
        a.wait(f"V{t}"); mfma(vDo, vV + 4 * t, Bs[t % 2], t == 0); nxt()
    nxt(10)
    stamp()
    a(f"ds_write_b128 v{vRAW}, v[{vDo}:{vDo+3}] offset:{L_RO}")
    lq, lh, lpub = a.newlabel("Lq"), a.newlabel("Lh"), a.newlabel("Lpub")
    a("s_waitcnt lgkmcnt(0)\ns_barrier")
    a(f"s_cmp_lt_u32 s{sW}, 2\ns_cbranch_scc1 {lq}\ns_cmp_eq_u32 s{sW}, 2\ns_cbranch_scc1 {lh}")
    a(f"v_mov_b32 v{vPub}, {OOB}\ns_branch {lpub}")
    a.label(lq)
    o = L_RO // 256
    assert L_RO % 256 == 0
    a(f"ds_read2st64_b32 v[{vF[0]}:{vF[1]}], v{vRQ} offset0:{o} offset1:{o+4}\nds_read2st64_b32 v[{vF[2]}:{vF[3]}], v{vRQ} offset0:{o+8} offset1:{o+12}")
    a(f"s_lshl_b32 s{sT0}, s{sG}, 3\ns_add_u32 s{sT0}, s{sT0}, s{sS}\ns_lshl_b32 s{sT0}, s{sT0}, 10\ns_add_u32 s{sT0}, s{sT0}, {OP0}")
    a(f"v_lshlrev_b32 v{vPub}, 3, v0\nv_add_u32 v{vPub}, s{sT0}, v{vPub}")
    a(f"s_waitcnt lgkmcnt(0)\nv_add_f32 v{vF[0]}, v{vF[0]}, v{vF[1]}\nv_add_f32 v{vF[2]}, v{vF[2]}, v{vF[3]}\nv_add_f32 v{vVal}, v{vF[0]}, v{vF[2]}")
    a(f"s_branch {lpub}")
    a.label(lh)
    a(f"v_mov_b32 v{t1}, 0")
    ls = vBq
    for i in range(4): a(f"ds_read_b128 v[{ls+4*i}:{ls+4*i+3}], v{t1} offset:{L_LS+16*i}")
    a(f"s_lshl_b32 s{sT0}, s{sG}, 7\ns_lshl_b32 s{sT1}, s{sS}, 4\ns_add_u32 s{sT0}, s{sT0}, s{sT1}\ns_add_u32 s{sT0}, s{sT0}, {ML0}")
    a(f"v_lshlrev_b32 v{vPub}, 3, v{vL}\nv_add_u32 v{vPub}, s{sT0}, v{vPub}\nv_cmp_gt_u32 vcc, 2, v{vL}\nv_mov_b32 v{t0}, {OOB}\nv_cndmask_b32 v{vPub}, v{t0}, v{vPub}, vcc")
    a("s_waitcnt lgkmcnt(0)")
    for st in (1, 2, 4, 8):
        for i in range(0, 16, 2 * st): a(f"v_add_f32 v{ls+i}, v{ls+i}, v{ls+i+st}")
    a(f"v_cmp_eq_u32 vcc, 0, v{vL}\nv_cndmask_b32 v{vVal}, v{ls}, v{vMX}, vcc")
    a.label(lpub)
    a(f"v_mov_b32 v{vVal+1}, s{sTAG}")
    a.vmem("S2", f"buffer_store_dwordx2 v[{vVal}:{vVal+1}], v{vPub}, {srd(SWS)}, 0 offen sc1")
    stamp()
    g2txt = f"buffer_load_dwordx4 v[{vGa+8}:{vGa+11}], v{vGh}, {srd(SWS)}, 0 offen sc1"
    poll("G2", "G2", [vGa + 9, vGa + 11], g2txt, mask=sHV)
    hv = [vGa + 8, vGa + 10]
    red8(hv)
    a(f"v_cvt_pk_bf16_f32 v{t0}, v{hv[0]}, v{hv[1]}\nv_lshlrev_b32 v{hv[0]}, 16, v{t0}\nv_and_b32 v{hv[1]}, 0xffff0000, v{t0}")
    ev = [vF[0], vF[1]]
    for j in range(2): a(f"v_mul_f32 v{ev[j]}, s{sLOG2E}, v{hv[j]}")
    for j in range(2): a(f"v_exp_f32 v{ev[j]}, -v{ev[j]}")
    for j in range(2): a(f"v_add_f32 v{ev[j]}, 1.0, v{ev[j]}")
    for j in range(2): a(f"v_rcp_f32 v{ev[j]}, v{ev[j]}")
    for j in range(2): a(f"v_mul_f32 v{hv[j]}, v{hv[j]}, v{ev[j]}")
    for j in range(2): a(f"v_cvt_pk_bf16_f32 v{hv[j]}, v{hv[j]}, v{hv[j]}")
    for j in range(2): a(f"v_cndmask_b32 v{hv[j]}, 0, v{hv[j]}, s[{sHV}:{sHV+1}]")
    build(Bs[0], hv[0]); build(Bs[1], hv[1])
    a.wait("w20"); mfma(vDy, vW2, Bs[0], True)
    a.wait("w21"); mfma(vDy, vW2 + 4, Bs[1], False)
    stamp()
    a(f"v_add_u32 v{vGq}, {OP0 - QP0}, v{vGq}")
    g3txt = (f"buffer_load_dwordx4 v[{vGa}:{vGa+3}], v{vGq}, {srd(SWS)}, 0 offen sc1\n"
             f"buffer_load_dwordx4 v[{vGa+4}:{vGa+7}], v{vGq}, {srd(SWS)}, 0 offen offset:16 sc1\n"
             f"buffer_load_dwordx4 v[{vGa+8}:{vGa+11}], v{vGm}, {srd(SWS)}, 0 offen sc1")
    a(g3txt)
    poll("G3", None, [vGa + 1, vGa + 3, vGa + 5, vGa + 7, vGa + 9, vGa + 11], g3txt)
    stamp()
    vm_, vl_ = vGa + 8, vGa + 10
    a(f"v_mov_b32 v{t0}, v{vm_}")
    red8([t0], "max")
    a(f"v_sub_f32 v{t0}, v{vm_}, v{t0}\nv_mul_f32 v{t0}, s{sLOG2E}, v{t0}\nv_exp_f32 v{t0}, v{t0}")
    ov = [vGa, vGa + 2, vGa + 4, vGa + 6]
    a(f"v_mul_f32 v{vl_}, v{vl_}, v{t0}")
    for v in ov: a(f"v_mul_f32 v{v}, v{v}, v{t0}")
    red8([vl_] + ov)
    a(f"v_rcp_f32 v{vl_}, v{vl_}")
    for v in ov: a(f"v_mul_f32 v{v}, v{v}, v{vl_}")
    for v in ov: a(f"v_cvt_pk_bf16_f32 v{v}, v{v}, v{v}")
    build(Bs[0], ov[0])
    for t in range(4):
        if t + 1 < 4: build(Bs[(t + 1) % 2], ov[t + 1])
        mfma(vDy, vWO + 4 * t, Bs[t % 2], False)
    a(f"ds_write_b128 v{vRAW}, v[{vDy}:{vDy+3}] offset:{L_RY}")
    a("s_waitcnt lgkmcnt(0)\ns_barrier")
    lfin, lred = a.newlabel("Lfin"), a.newlabel("Lred")
    a(f"s_cmp_eq_u32 s{sW}, 1\ns_cbranch_scc1 {lred}\ns_cmp_eq_u32 s{sW}, 0\ns_cbranch_scc0 {lfin}")
    assert L_RY % 256 == 0
    read8(L_RY, vRY)
    a(f"s_lshl_b32 s{sT0}, s{sS}, 5\ns_add_u32 s{sT0}, s{sT0}, s{sG}\ns_lshl_b32 s{sT0}, s{sT0}, 9\ns_add_u32 s{sT0}, s{sT0}, {YP0}")
    a(f"v_lshlrev_b32 v{vPub}, 3, v{vL}\nv_add_u32 v{vPub}, s{sT0}, v{vPub}")
    sum8(vVal)
    a(f"v_mov_b32 v{vVal+1}, s{sTAG}")
    a(f"buffer_store_dwordx2 v[{vVal}:{vVal+1}], v{vPub}, {srd(SWS)}, 0 offen sc1")
    a(f"s_branch {lfin}")
    a.label(lred)
    a(f"s_and_b32 s{sT0}, s{sG}, 1\ns_cmp_eq_u32 s{sT0}, 0\ns_cbranch_scc0 {lfin}")
    a(f"s_lshl_b32 s{sT0}, s{sS}, 14\ns_lshl_b32 s{sT1}, s{sCQ}, 5\ns_add_u32 s{sT0}, s{sT0}, s{sT1}\ns_add_u32 s{sT0}, s{sT0}, {YP0}")
    a(f"v_lshrrev_b32 v{t0}, 1, v{vL}\nv_lshlrev_b32 v{t0}, 9, v{t0}\nv_and_b32 v{t1}, 1, v{vL}\nv_lshl_add_u32 v{t0}, v{t1}, 4, v{t0}\nv_add_u32 v{vGq}, s{sT0}, v{t0}")
    g4txt = f"buffer_load_dwordx4 v[{vGa}:{vGa+3}], v{vGq}, {srd(SWS)}, 0 offen sc1"
    a(g4txt)
    poll("G4", None, [vGa + 1, vGa + 3], g4txt)
    yv = [vGa, vGa + 2]
    for m in ("quad_perm:[2,3,0,1]", "row_ror:4", "row_ror:8"):
        for v in yv: a(f"v_add_f32_dpp v{v}, v{v}, v{v} {m} row_mask:0xf bank_mask:0xf")
    for sw in ("v_permlane16_swap_b32", "v_permlane32_swap_b32"):
        a(f"v_mov_b32 v{vF[0]}, v{yv[0]}\nv_mov_b32 v{vF[1]}, v{yv[1]}")
        a(f"{sw} v{yv[0]}, v{vF[0]}\n{sw} v{yv[1]}, v{vF[1]}")
        a(f"v_add_f32 v{yv[0]}, v{yv[0]}, v{vF[0]}\nv_add_f32 v{yv[1]}, v{yv[1]}, v{vF[1]}")
    a(f"v_lshlrev_b32 v{vF[0]}, 16, v{vXD}\nv_and_b32 v{vF[1]}, 0xffff0000, v{vXD}")
    a(f"v_add_f32 v{yv[0]}, v{yv[0]}, v{vF[0]}\nv_add_f32 v{yv[1]}, v{yv[1]}, v{vF[1]}\nv_cvt_pk_bf16_f32 v{yv[0]}, v{yv[0]}, v{yv[1]}")
    a("s_mov_b64 exec, 3")
    a(f"buffer_store_dword v{yv[0]}, v19, {srd(SOUT)}, 0 offen")
    a(f"s_or_b32 s{sT0}, s{sS}, s{sG}\ns_cmp_eq_u32 s{sT0}, 0\ns_cbranch_scc0 {lfin}")
    a(f"s_mov_b64 exec, 1\nv_mov_b32 v{t0}, 0\nbuffer_store_dword v{vTAG}, v{t0}, {srd(SWS)}, 0 offen sc1")
    a.label(lfin)
    if stamps:
        stamp()
        n = st_idx[0]
        a("s_mov_b64 exec, 1\ns_waitcnt lgkmcnt(0) vmcnt(0)")
        a(f"s_lshl_b32 s{sT0}, s2, 2\ns_add_u32 s{sT0}, s{sT0}, s{sW}\ns_lshl_b32 s{sT0}, s{sT0}, 7\ns_add_u32 s{sT0}, s{sT0}, {STAMP0}\nv_mov_b32 v{t0}, s{sT0}")
        a(f"v_mov_b32 v{vF[0]}, s100\nbuffer_store_dword v{vF[0]}, v{t0}, {srd(SWS)}, 0 offen")
        a(f"v_mov_b32 v{vF[1]}, {n}\nbuffer_store_dword v{vF[1]}, v{t0}, {srd(SWS)}, 0 offen offset:4")
        for i in range(n):
            a(f"v_mov_b32 v{vK+i}, s{ST_BASE+2*i}\nbuffer_store_dword v{vK+i}, v{t0}, {srd(SWS)}, 0 offen offset:{8+4*i}")
        for i, r in enumerate([24, 25, 99, sRETRY]):
            a(f"v_mov_b32 v{vK+16+i}, s{r}\nbuffer_store_dword v{vK+16+i}, v{t0}, {srd(SWS)}, 0 offen offset:{64+4*i}")
    a.label("L_end")
    a("s_endpgm")
    return wrap(a.text(), 256, 256, LDS_TOTAL, vgpr=256, sgpr=102)

if __name__ == "__main__":
    out = sys.argv[1]
    kw = {}
    for arg in sys.argv[2:]:
        k, v = arg.split("=")
        kw[k] = int(v) if v.lstrip("-").isdigit() else v
    open(out, "w").write(gen(**kw))
```

```python
import sys, re
from asmlib import *

QP0, HP0, OP0, ML0, YP0, WSLIM = 0x1000, 0x42000, 0x60000, 0xA0000, 0xB0000, 0x120000
FASTD = 0x70000
HP_STRIDE = 1408 * 8
STAMP0 = 0x180000
OOB = 0x10000000
TAGC = 0x9E3779B9

L_RO, L_RY = 0, 4096
L_XN0, L_XN1, L_RQ, L_RH = 8192, 9216, 10240, 11264
L_QB, L_ZB, L_FLAG, L_MX, L_LS = 12288, 12544, 12560, 12608, 12672
LDS_TOTAL = 98304

sW, sG, sS, sTAG = 26, 27, 28, 29
SA, SB, SC_, SD, SWS, SX, SOUT = 32, 36, 40, 44, 48, 52, 56
sT0, sT1, sT2, sT3 = 30, 31, 60, 61
sO1, sO2, sO3 = 62, 63, 64
sC = [None, 66, 68, 70]
sSCALE, sLOG2E = 72, 73
sEX = 74
sRETRY = 76
sHV = 78
sCQ = 80
sBLK, sSROW, sHAS = 81, 82, 83
sMK = 84
sOFF = 86
sTAGQ, sREG = 87, 91
def srd(r): return f"s[{r}:{r+3}]"

def gen(stamps=False, kpre=0, W=9, prefetch=True, sleep_poll=0, b1=1, stf='sc1', ldf='sc1', wsbase=0, prio=0, fast=1, touch=0):
    a = Asm()
    ST = [92, 4, 6, 8, 10, 12, 14, 16, 18, 20]
    RT = {'G1': 88, 'G2': 89, 'G3': 90, 'G4': 90}
    class St:
        n = 0
    def stamp():
        if stamps:
            i = St.n; St.n += 1
            assert i < 10
            a(f"s_memrealtime s[{ST[i]}:{ST[i]+1}]")
    def dump_stamps(lab):
        if stamps:
            n = St.n
            a("s_mov_b64 exec, 1\ns_waitcnt lgkmcnt(0) vmcnt(0)")
            a(f"s_lshl_b32 s{sT0}, s2, 3\ns_add_u32 s{sT0}, s{sT0}, s{sW}\ns_lshl_b32 s{sT0}, s{sT0}, 7\ns_add_u32 s{sT0}, s{sT0}, {STAMP0}\nv_mov_b32 v2, s{sT0}")
            a(f"v_mov_b32 v3, s100\nbuffer_store_dword v3, v2, {srd(SWS)}, 0 offen")
            a(f"v_mov_b32 v4, {n}\nbuffer_store_dword v4, v2, {srd(SWS)}, 0 offen offset:4")
            for i in range(n):
                a(f"v_mov_b32 v{30+i}, s{ST[i]}\nbuffer_store_dword v{30+i}, v2, {srd(SWS)}, 0 offen offset:{8+4*i}")
            for i, r in enumerate([88, 89, 90, sRETRY]):
                a(f"v_mov_b32 v{50+i}, s{r}\nbuffer_store_dword v{50+i}, v2, {srd(SWS)}, 0 offen offset:{64+4*i}")
        St.n = 0

    vL, vI, vG4, vC, vR8 = 1, 2, 3, 4, 5
    def mk(r, p, nrec, offreg=None):
        if offreg is not None:
            a(f"s_add_u32 s{r}, s{p}, s{offreg}\ns_addc_u32 s{r+1}, s{p+1}, 0")
        else:
            a(f"s_mov_b32 s{r}, s{p}\ns_mov_b32 s{r+1}, s{p+1}")
        a(f"s_mov_b32 s{r+2}, {nrec}\ns_mov_b32 s{r+3}, 0x20000")
    def mfma(D, A, B, first):
        a(f"v_mfma_f32_16x16x32_bf16 v[{D}:{D+3}], v[{A}:{A+3}], v[{B}:{B+3}], " + ("0" if first else f"v[{D}:{D+3}]"))
    def dpp(op, v, m, src=None):
        src = v if src is None else src
        a(f"v_{op}_dpp v{v}, v{src}, v{v} {m} row_mask:0xf bank_mask:0xf")
    def tagcheck(regs, tmp, mask=None, q=False):
        sT = sTAGQ if q else sTAG
        xs = []
        regs = list(regs)
        k = 0
        while regs:
            if len(regs) >= 2:
                a(f"v_bitop3_b32 v{tmp[k]}, v{regs[0]}, v{regs[1]}, s{sT} bitop3:0x7e"); regs = regs[2:]
            else:
                a(f"v_xor_b32 v{tmp[k]}, s{sT}, v{regs[0]}"); regs = regs[1:]
            xs.append(tmp[k]); k += 1
        while len(xs) > 1:
            if len(xs) >= 3:
                a(f"v_or3_b32 v{xs[0]}, v{xs[0]}, v{xs[1]}, v{xs[2]}"); xs = xs[3:] + [xs[0]]
            else:
                a(f"v_or_b32 v{xs[0]}, v{xs[0]}, v{xs[1]}"); xs = [xs[0]]
        if q:
            a(f"v_and_b32 v{tmp[7]}, 0xfffffff0, v{xs[0]}\nv_cmp_ne_u32 vcc, 0, v{tmp[7]}")
            return xs[0]
        a(f"v_cmp_ne_u32 vcc, 0, v{xs[0]}")
        if mask is not None: a(f"s_and_b64 vcc, vcc, s[{mask}:{mask+1}]")
    def poll(name, waitname, regs, tmp, reissue, mask=None, q=False):
        ok, rt = a.newlabel("Lok"), a.newlabel("Lrt")
        if waitname: a.wait(waitname)
        else: a("s_waitcnt vmcnt(0)")
        xr = tagcheck(regs, tmp, mask, q)
        a(f"s_cbranch_vccz {ok}")
        a.label(rt)
        if sleep_poll: a(f"s_sleep {sleep_poll}")
        a(reissue)
        a("s_waitcnt vmcnt(0)")
        tagcheck(regs, tmp, mask, q)
        a(f"s_cbranch_vccz {ok}\ns_sub_u32 s{sRETRY}, s{sRETRY}, 1\ns_cmp_gt_i32 s{sRETRY}, 0\ns_cbranch_scc1 {rt}")
        a.label(ok)
        if stamps: a(f"s_mov_b32 s{RT[name]}, s{sRETRY}")
        return xr
    def red8(vals, op="add_f32"):
        for m in ("quad_perm:[1,0,3,2]", "quad_perm:[2,3,0,1]", "row_half_mirror"):
            for v in vals: dpp(op, v, m)
    def get_tag():
        if wsbase:
            a(f"s_add_u32 s24, s24, {wsbase:#x}\ns_addc_u32 s25, s25, 0")
        a(f"s_load_dword s{sTAG}, s[24:25], 0")
    def fin_tag():
        a(f"s_getreg_b32 s{sTAGQ}, hwreg(HW_REG_XCC_ID, 0, 4)")
        a(f"s_waitcnt lgkmcnt(0)\ns_add_u32 s{sTAG}, s{sTAG}, {TAGC:#x}\ns_and_b32 s{sREG}, s{sTAG}, 0xfffffff0\ns_or_b32 s{sTAGQ}, s{sTAGQ}, s{sREG}")
    ws_lim = WSLIM if not stamps else 0x200000

    a("s_cmp_ge_u32 s2, 256\ns_cbranch_scc1 L_end")
    if stamps: a("s_memrealtime s[100:101]")
    a("s_load_dwordx16 s[4:19], s[0:1], 0")
    a("s_load_dwordx4 s[20:23], s[0:1], 64")
    a("s_load_dwordx2 s[24:25], s[0:1], 80")
    a(f"v_lshrrev_b32 v{vI}, 6, v0\nv_and_b32 v{vL}, 63, v0\nv_readfirstlane_b32 s{sW}, v{vI}")
    a(f"s_and_b32 s{sT0}, s2, 7\ns_lshr_b32 s{sT1}, s2, 3\ns_lshl_b32 s{sG}, s{sT0}, 2\ns_and_b32 s{sT2}, s{sT1}, 3\ns_add_u32 s{sG}, s{sG}, s{sT2}\ns_lshr_b32 s{sS}, s2, 5")
    a(f"v_and_b32 v{vI}, 15, v{vL}\nv_lshrrev_b32 v{vG4}, 4, v{vL}")
    a(f"s_mov_b32 s{sRETRY}, 100000")
    if stamps: a(f"s_mov_b32 s88, 100000\ns_mov_b32 s89, 100000\ns_mov_b32 s90, 100000")
    a(f"s_cmp_ge_u32 s{sW}, 4\ns_cbranch_scc1 L_aux")

    vKo, vVo, vWOo, vW2o, vGq, vGm, vGh, vRAW, vSL = 6, 7, 8, 9, 10, 11, 12, 13, 14
    vQA = [15, 16, 17, 18]
    vOUT = 19
    vM = [20, 21, 22, 23]
    vXD = 24
    vMX = 25
    vG1 = 26
    vK, vV, vW2, vWO, vBq, vD = 28, 92, 156, 164, 180, 196
    vB0, vB1 = 212, 216
    vGa, vPP = 220, 232
    vF = list(range(236, 244))
    t0, t1, t2, t3 = 244, 245, 246, 247
    vDo, vDy = 200, 204
    SK, SV, SWO, SW2 = SA, SB, SC_, SD
    a.vm = []
    a(f"v_lshrrev_b32 v{vKo}, 2, v{vI}\nv_and_b32 v{t0}, 3, v{vI}\nv_lshlrev_b32 v{vKo}, 12, v{vKo}\nv_lshl_add_u32 v{t0}, v{vG4}, 2, v{t0}\nv_lshl_add_u32 v{vKo}, v{t0}, 4, v{vKo}")
    a(f"s_lshl_b32 s{sT0}, s{sG}, 21\ns_lshl_b32 s{sT1}, s{sS}, 16\ns_add_u32 s{sT0}, s{sT0}, s{sT1}\ns_lshl_b32 s{sT1}, s{sW}, 10\ns_add_u32 s{sT0}, s{sT0}, s{sT1}\ns_add_u32 s{sOFF}, s{sT0}, 0x180000")
    a(f"s_mov_b32 s{sO1}, 16384\ns_mov_b32 s{sO2}, 32768\ns_mov_b32 s{sO3}, 49152")
    a(f"v_lshlrev_b32 v{vVo}, 12, v{vG4}\nv_lshl_add_u32 v{vVo}, v{vI}, 4, v{vVo}")
    a("s_waitcnt lgkmcnt(0)")
    mk(SK, 6, 62464, sOFF)
    so4 = ["0", f"s{sO1}", f"s{sO2}", f"s{sO3}"]
    def ldK(t): a.vmem(f"K{t}", f"buffer_load_dwordx4 v[{vK+4*t}:{vK+4*t+3}], v{vKo}, {srd(SK)}, {so4[t%4]} offen offset:{(t//4)*256} nt")
    def ldV(t): a.vmem(f"V{t}", f"buffer_load_dwordx4 v[{vV+4*t}:{vV+4*t+3}], v{vVo}, {srd(SV)}, {so4[t%4]} offen offset:{(t//4)*256} nt")
    def ldWO(t): a.vmem(f"wo{t}", f"buffer_load_dwordx4 v[{vWO+4*t}:{vWO+4*t+3}], v{vWOo}, {srd(SWO)}, 0 offen offset:{t*1024} nt")
    def ldW2(t): a.vmem(f"w2{t}", f"buffer_load_dwordx4 v[{vW2+4*t}:{vW2+4*t+3}], v{vW2o}, {srd(SW2)}, 0 offen offset:{t*1024} nt")
    g2txt = f"buffer_load_dwordx4 v[{vGa+8}:{vGa+11}], v{vGh}, {srd(SWS)}, 0 offen {ldf}"
    def ldG2(): a.vmem("G2", g2txt)
    g1txt = (f"buffer_load_dwordx4 v[{vGa}:{vGa+3}], v{vG1}, {srd(SWS)}, 0 offen {ldf}\n"
             f"buffer_load_dwordx4 v[{vGa+4}:{vGa+7}], v{vG1}, {srd(SWS)}, 0 offen offset:16 {ldf}")
    def ldG1():
        t_ = g1txt.split("\n")
        a.vmem("G1a", t_[0]); a.vmem("G1b", t_[1])
    queue = [("K", t) for t in range(16)] + [("G1", 0)] + [("V", t) for t in range(16)] + [("G2", 0), ("W2", 0), ("W2", 1)] + [("WO", t) for t in range(4)]
    def nxt(n=1):
        for _ in range(n):
            if not queue: return
            k, t = queue.pop(0)
            {"K": lambda: ldK(t), "V": lambda: ldV(t), "G1": ldG1, "G2": ldG2, "W2": lambda: ldW2(t), "WO": lambda: ldWO(t)}[k]()
    nxt(kpre)
    get_tag()
    mk(SV, 8, 62464, sOFF)
    stamp()
    a(f"v_and_b32 v{vC}, 7, v{vL}\nv_lshrrev_b32 v{vR8}, 3, v{vL}")
    a(f"s_lshr_b32 s{sCQ}, s{sG}, 1")
    a(f"v_lshlrev_b32 v{vWOo}, 12, v{vR8}\nv_lshl_add_u32 v{vWOo}, v{vC}, 4, v{vWOo}")
    a(f"v_lshlrev_b32 v{vW2o}, 11, v{vR8}\nv_lshl_add_u32 v{vW2o}, v{vC}, 4, v{vW2o}")
    a(f"s_lshl_b32 s{sT0}, s{sG}, 7\ns_lshl_b32 s{sT1}, s{sW}, 5\ns_add_u32 s{sT0}, s{sT0}, s{sT1}\ns_lshl_b32 s{sT0}, s{sT0}, 10\ns_lshl_b32 s{sT1}, s{sS}, 7\ns_add_u32 s{sT0}, s{sT0}, s{sT1}")
    mk(SWO, 12, 31 * 1024 + 128, sT0)
    a(f"s_mul_i32 s{sT0}, s{sCQ}, 86\ns_and_b32 s{sT1}, s{sG}, 1\ns_mul_i32 s{sT2}, s{sT1}, 44\ns_add_u32 s{sT0}, s{sT0}, s{sT2}\ns_mul_i32 s{sT2}, s{sW}, 12\ns_add_u32 s{sT0}, s{sT0}, s{sT2}")
    a(f"s_lshl_b32 s{sT1}, s{sT1}, 1\ns_sub_u32 s{sT1}, 44, s{sT1}\ns_sub_u32 s{sT1}, s{sT1}, s{sT2}\ns_min_u32 s{sT3}, s{sT1}, 12")
    a(f"v_mul_u32_u24 v{vGh}, {HP_STRIDE}, v{vC}\nv_lshl_add_u32 v{vGh}, v{vR8}, 4, v{vGh}\ns_lshl_b32 s{sT1}, s{sT0}, 3\ns_add_u32 s{sT1}, s{sT1}, {HP0}\nv_add_u32 v{vGh}, s{sT1}, v{vGh}")
    a(f"v_lshlrev_b32 v{t0}, 1, v{vR8}\nv_cmp_gt_u32 s[{sHV}:{sHV+1}], s{sT3}, v{t0}\nv_mov_b32 v{t1}, {OOB}\nv_cndmask_b32 v{vGh}, v{t1}, v{vGh}, s[{sHV}:{sHV+1}]")
    a(f"s_lshl_b32 s{sT0}, s{sT0}, 10\ns_lshl_b32 s{sT1}, s{sS}, 7\ns_add_u32 s{sT0}, s{sT0}, s{sT1}")
    a(f"s_add_u32 s{SW2}, s18, s{sT0}\ns_addc_u32 s{SW2+1}, s19, 0\ns_sub_u32 s{sT3}, s{sT3}, 1\ns_lshl_b32 s{sT3}, s{sT3}, 10\ns_add_u32 s{SW2+2}, s{sT3}, 128\ns_mov_b32 s{SW2+3}, 0x20000")
    mk(SWS, 24, ws_lim); mk(SX, 4, 1024); mk(SOUT, 20, 1024)
    a(f"s_lshl_b32 s{sT0}, s{sS}, 7\ns_lshl_b32 s{sT1}, s{sCQ}, 3\ns_add_u32 s{sT0}, s{sT0}, s{sT1}\nv_and_b32 v{vOUT}, 1, v{vL}\nv_lshlrev_b32 v{vOUT}, 2, v{vOUT}\nv_add_u32 v{vOUT}, s{sT0}, v{vOUT}")
    for c in range(1, 4):
        m = 0x11111111 << c
        a(f"s_mov_b32 s{sC[c]}, {m:#x}\ns_mov_b32 s{sC[c]+1}, {m:#x}")
    a(f"s_mov_b32 s{sSCALE}, 0x3db504f3\ns_mov_b32 s{sLOG2E}, 0x3fb8aa3b")
    a(f"v_and_b32 v{t0}, 1, v{vL}\nv_lshlrev_b32 v{t0}, 4, v{t0}\nv_mov_b32 v{t1}, 0xffff\nv_lshlrev_b32 v{t0}, v{t0}, v{t1}")
    for w in range(4):
        m = 0x03030303 << (2 * w)
        a(f"s_mov_b32 s{sMK}, {m:#x}\ns_mov_b32 s{sMK+1}, {m:#x}\nv_cndmask_b32 v{vM[w]}, 0, v{t0}, s[{sMK}:{sMK+1}]")
    a(f"s_lshl_b32 s{sT0}, s{sG}, 13\ns_lshl_b32 s{sT1}, s{sW}, 8\ns_add_u32 s{sT0}, s{sT0}, s{sT1}\ns_add_u32 s{sT0}, s{sT0}, {OP0}")
    a(f"v_lshlrev_b32 v{vGq}, 10, v{vC}\nv_lshl_add_u32 v{vGq}, v{vR8}, 5, v{vGq}\nv_add_u32 v{vGq}, s{sT0}, v{vGq}\nv_subrev_u32 v{vG1}, {OP0-QP0}, v{vGq}")
    a(f"s_lshl_b32 s{sT0}, s{sG}, 7\ns_add_u32 s{sT0}, s{sT0}, {ML0}\nv_lshlrev_b32 v{vGm}, 4, v{vC}\nv_add_u32 v{vGm}, s{sT0}, v{vGm}")
    a(f"s_lshl_b32 s{sT0}, s{sW}, 10\nv_lshlrev_b32 v{vRAW}, 4, v{vL}\nv_add_u32 v{vRAW}, s{sT0}, v{vRAW}")
    a(f"s_lshl_b32 s{sT0}, s{sW}, 4\nv_lshlrev_b32 v{vSL}, 2, v{vG4}\nv_add_u32 v{vSL}, s{sT0}, v{vSL}")
    a(f"v_and_b32 v{t0}, 3, v{vI}\nv_lshl_add_u32 v{t0}, v{vG4}, 2, v{t0}\nv_lshlrev_b32 v{t0}, 4, v{t0}\nv_add_u32 v{t0}, {L_QB}, v{t0}\nv_mov_b32 v{t1}, {L_ZB}")
    for tt in range(4):
        m = 0x000F000F << (4 * tt)
        a(f"s_mov_b32 s{sMK}, {m:#x}\ns_mov_b32 s{sMK+1}, {m:#x}\nv_cndmask_b32 v{vQA[tt]}, v{t1}, v{t0}, s[{sMK}:{sMK+1}]")
    fin_tag()
    a.vmem("xd", f"buffer_load_dword v{vXD}, v{vOUT}, {srd(SX)}, 0 offen")
    stamp()
    if b1: a("s_barrier")
    nxt(W - kpre)
    ki = 0
    while ki < 16:
        a.wait(f"K{ki}"); nxt(); ki += 1
    stamp()
    xr = poll("G1", "G1b", [vGa + 1, vGa + 3, vGa + 5, vGa + 7], vF, g1txt, q=True)
    a(f"v_cmp_ne_u32 vcc, 0, v{xr}\ns_cmp_eq_u64 vcc, 0\ns_cselect_b32 s{sREG}, {FASTD if fast else 0}, 0")
    nxt()
    qv = [vGa, vGa + 2, vGa + 4, vGa + 6]
    red8(qv)
    a(f"v_cvt_pk_bf16_f32 v{vGa}, v{qv[0]}, v{qv[1]}\nv_cvt_pk_bf16_f32 v{vGa+1}, v{qv[2]}, v{qv[3]}")
    a(f"s_lshl_b32 s{sT0}, s{sW}, 6\nv_lshlrev_b32 v{t0}, 3, v{vR8}\nv_add_u32 v{t0}, s{sT0}, v{t0}")
    a(f"s_mov_b64 s[{sEX}:{sEX+1}], exec\ns_mov_b32 exec_lo, 0x01010101\ns_mov_b32 exec_hi, 0x01010101")
    a(f"ds_write_b64 v{t0}, v[{vGa}:{vGa+1}] offset:{L_QB}")
    a(f"s_mov_b64 exec, s[{sEX}:{sEX+1}]")
    a(f"v_add_u32 v{vGq}, s{sREG}, v{vGq}\nv_add_u32 v{vGm}, s{sREG}, v{vGm}")
    a("s_waitcnt lgkmcnt(0)\ns_barrier")
    for tt in range(4): a(f"ds_read_b128 v[{vBq+4*tt}:{vBq+4*tt+3}], v{vQA[tt]}")
    nxt()
    for tt in range(4):
        a(f"s_waitcnt lgkmcnt({3-tt})")
        for u in range(4):
            mfma(vD + 4 * u, vK + 4 * (4 * u + tt), vBq + 4 * tt, tt == 0)
    nxt()
    sc = [vF[0], vF[1], vF[2], vF[3]]
    for u in range(4): a(f"v_cndmask_b32 v{sc[u]}, v{vD+4*u}, v{vD+4*u+1}, s[{sC[1]}:{sC[1]+1}]")
    for u in range(4): a(f"v_cndmask_b32 v{sc[u]}, v{sc[u]}, v{vD+4*u+2}, s[{sC[2]}:{sC[2]+1}]")
    for u in range(4): a(f"v_cndmask_b32 v{sc[u]}, v{sc[u]}, v{vD+4*u+3}, s[{sC[3]}:{sC[3]+1}]")
    for m in ("quad_perm:[1,0,3,2]", "quad_perm:[2,3,0,1]"):
        for u in range(4): dpp("add_f32", sc[u], m)
    for u in (0, 2):
        a(f"v_cvt_pk_bf16_f32 v{t0+u//2}, v{sc[u]}, v{sc[u+1]}")
    for u in (0, 2):
        a(f"v_lshlrev_b32 v{sc[u]}, 16, v{t0+u//2}\nv_and_b32 v{sc[u+1]}, 0xffff0000, v{t0+u//2}")
    for u in range(4): a(f"v_mul_f32 v{sc[u]}, s{sSCALE}, v{sc[u]}")
    for u in (0, 2):
        a(f"v_cvt_pk_bf16_f32 v{t0+u//2}, v{sc[u]}, v{sc[u+1]}")
    for u in (0, 2):
        a(f"v_lshlrev_b32 v{sc[u]}, 16, v{t0+u//2}\nv_and_b32 v{sc[u+1]}, 0xffff0000, v{t0+u//2}")
    a(f"v_max3_f32 v{t0}, v{sc[0]}, v{sc[1]}, v{sc[2]}\nv_max_f32 v{t0}, v{t0}, v{sc[3]}")
    for m in ("row_ror:4", "row_ror:8"): dpp("max_f32", t0, m)
    a(f"ds_write_b32 v{vSL}, v{t0} offset:{L_MX}")
    nxt()
    a(f"v_mov_b32 v{t1}, 0")
    a("s_waitcnt lgkmcnt(0)\ns_barrier")
    mx = vD
    for i in range(4): a(f"ds_read_b128 v[{mx+4*i}:{mx+4*i+3}], v{t1} offset:{L_MX+16*i}")
    a("s_waitcnt lgkmcnt(0)")
    a(f"v_max3_f32 v{mx}, v{mx}, v{mx+1}, v{mx+2}\nv_max3_f32 v{mx+3}, v{mx+3}, v{mx+4}, v{mx+5}\nv_max3_f32 v{mx+6}, v{mx+6}, v{mx+7}, v{mx+8}\nv_max3_f32 v{mx+9}, v{mx+9}, v{mx+10}, v{mx+11}\nv_max3_f32 v{mx+12}, v{mx+12}, v{mx+13}, v{mx+14}")
    a(f"v_max3_f32 v{mx}, v{mx}, v{mx+3}, v{mx+6}\nv_max3_f32 v{mx+9}, v{mx+9}, v{mx+12}, v{mx+15}\nv_max_f32 v{vMX}, v{mx}, v{mx+9}")
    for u in range(4): a(f"v_sub_f32 v{sc[u]}, v{sc[u]}, v{vMX}")
    for u in range(4): a(f"v_mul_f32 v{sc[u]}, s{sLOG2E}, v{sc[u]}")
    for u in range(4): a(f"v_exp_f32 v{sc[u]}, v{sc[u]}")
    for u in range(4): a(f"v_cvt_pk_bf16_f32 v{vPP+u}, v{sc[u]}, v{sc[u]}")
    a(f"v_add_f32 v{t0}, v{sc[0]}, v{sc[1]}\nv_add_f32 v{t1}, v{sc[2]}, v{sc[3]}\nv_add_f32 v{t0}, v{t0}, v{t1}")
    for m in ("row_ror:4", "row_ror:8"): dpp("add_f32", t0, m)
    a(f"ds_write_b32 v{vSL}, v{t0} offset:{L_LS}")
    a(f"v_mov_b32 v{t1}, 0\nds_write_b32 v{t1}, v{vMX} offset:{L_FLAG+4}")
    stamp()
    Bs = [vB0, vB1]
    def build(dst, pp, d=None):
        for w in range(4):
            if d is None: a(f"v_and_b32 v{dst+w}, v{pp}, v{vM[w]}")
            else: a(f"v_and_b32_dpp v{dst+w}, v{pp}, v{vM[w]} {d} row_mask:0xf bank_mask:0xf")
    build(Bs[0], vPP, "row_newbcast:0")
    for t in range(16):
        if t + 1 < 16: build(Bs[(t + 1) % 2], vPP + (t + 1) // 4, f"row_newbcast:{4*((t+1)%4)}")
        a.wait(f"V{t}"); mfma(vDo, vV + 4 * t, Bs[t % 2], t == 0); nxt()
    nxt(10)
    stamp()
    a(f"ds_write_b128 v{vRAW}, v[{vDo}:{vDo+3}] offset:{L_RO}")
    a("s_waitcnt lgkmcnt(0)\ns_barrier")
    poll("G2", "G2", [vGa + 9, vGa + 11], vF, g2txt, mask=sHV)
    hv = [vGa + 8, vGa + 10]
    red8(hv)
    a(f"v_cvt_pk_bf16_f32 v{t0}, v{hv[0]}, v{hv[1]}\nv_lshlrev_b32 v{hv[0]}, 16, v{t0}\nv_and_b32 v{hv[1]}, 0xffff0000, v{t0}")
    ev = [vF[0], vF[1]]
    for j in range(2): a(f"v_mul_f32 v{ev[j]}, s{sLOG2E}, v{hv[j]}")
    for j in range(2): a(f"v_exp_f32 v{ev[j]}, -v{ev[j]}")
    for j in range(2): a(f"v_add_f32 v{ev[j]}, 1.0, v{ev[j]}")
    for j in range(2): a(f"v_rcp_f32 v{ev[j]}, v{ev[j]}")
    for j in range(2): a(f"v_mul_f32 v{hv[j]}, v{hv[j]}, v{ev[j]}")
    for j in range(2): a(f"v_cvt_pk_bf16_f32 v{hv[j]}, v{hv[j]}, v{hv[j]}")
    for j in range(2): a(f"v_cndmask_b32 v{hv[j]}, 0, v{hv[j]}, s[{sHV}:{sHV+1}]")
    build(Bs[0], hv[0]); build(Bs[1], hv[1])
    g3txt = (f"buffer_load_dwordx4 v[{vGa}:{vGa+3}], v{vGq}, {srd(SWS)}, 0 offen {ldf}\n"
             f"buffer_load_dwordx4 v[{vGa+4}:{vGa+7}], v{vGq}, {srd(SWS)}, 0 offen offset:16 {ldf}\n"
             f"buffer_load_dwordx4 v[{vGa+8}:{vGa+11}], v{vGm}, {srd(SWS)}, 0 offen {ldf}")
    a.wait("w20"); mfma(vDy, vW2, Bs[0], True)
    a.wait("w21"); mfma(vDy, vW2 + 4, Bs[1], False)
    stamp()
    a(g3txt)
    poll("G3", None, [vGa + 1, vGa + 3, vGa + 5, vGa + 7, vGa + 9, vGa + 11], vF, g3txt)
    stamp()
    vm_, vl_ = vGa + 8, vGa + 10
    a(f"v_mov_b32 v{t0}, v{vm_}")
    red8([t0], "max_f32")
    a(f"v_sub_f32 v{t0}, v{vm_}, v{t0}\nv_mul_f32 v{t0}, s{sLOG2E}, v{t0}\nv_exp_f32 v{t0}, v{t0}")
    ov = [vGa, vGa + 2, vGa + 4, vGa + 6]
    a(f"v_mul_f32 v{vl_}, v{vl_}, v{t0}")
    for v in ov: a(f"v_mul_f32 v{v}, v{v}, v{t0}")
    red8([vl_] + ov)
    a(f"v_rcp_f32 v{vl_}, v{vl_}")
    for v in ov: a(f"v_mul_f32 v{v}, v{v}, v{vl_}")
    for v in ov: a(f"v_cvt_pk_bf16_f32 v{v}, v{v}, v{v}")
    build(Bs[0], ov[0])
    for t in range(4):
        if t + 1 < 4: build(Bs[(t + 1) % 2], ov[t + 1])
        mfma(vDy, vWO + 4 * t, Bs[t % 2], False)
    a(f"ds_write_b128 v{vRAW}, v[{vDy}:{vDy+3}] offset:{L_RY}")
    a("s_waitcnt lgkmcnt(0)\ns_barrier")
    stamp()
    lfin = "L_main_fin"
    a(f"s_and_b32 s{sT0}, s{sG}, 1\ns_or_b32 s{sT0}, s{sT0}, s{sW}\ns_cmp_eq_u32 s{sT0}, 0\ns_cbranch_scc0 {lfin}")
    a(f"s_lshl_b32 s{sT0}, s{sS}, 14\ns_lshl_b32 s{sT1}, s{sCQ}, 5\ns_add_u32 s{sT0}, s{sT0}, s{sT1}\ns_add_u32 s{sT0}, s{sT0}, {YP0}")
    a(f"v_lshrrev_b32 v{t0}, 1, v{vL}\nv_lshlrev_b32 v{t0}, 9, v{t0}\nv_and_b32 v{t1}, 1, v{vL}\nv_lshl_add_u32 v{t0}, v{t1}, 4, v{t0}\nv_add_u32 v{vGq}, s{sT0}, v{t0}")
    g4txt = f"buffer_load_dwordx4 v[{vGa}:{vGa+3}], v{vGq}, {srd(SWS)}, 0 offen {ldf}"
    a(g4txt)
    a(f"v_lshlrev_b32 v{t2}, 16, v{vXD}\nv_and_b32 v{t3}, 0xffff0000, v{vXD}")
    poll("G4", None, [vGa + 1, vGa + 3], vF, g4txt)
    yv = [vGa, vGa + 2]
    for m in ("quad_perm:[2,3,0,1]", "row_ror:4", "row_ror:8"):
        for v in yv: dpp("add_f32", v, m)
    for sw in ("v_permlane16_swap_b32", "v_permlane32_swap_b32"):
        a(f"v_mov_b32 v{vF[0]}, v{yv[0]}\nv_mov_b32 v{vF[1]}, v{yv[1]}")
        a(f"{sw} v{yv[0]}, v{vF[0]}\n{sw} v{yv[1]}, v{vF[1]}")
        a(f"v_add_f32 v{yv[0]}, v{yv[0]}, v{vF[0]}\nv_add_f32 v{yv[1]}, v{yv[1]}, v{vF[1]}")
    a(f"v_add_f32 v{yv[0]}, v{yv[0]}, v{t2}\nv_add_f32 v{yv[1]}, v{yv[1]}, v{t3}\nv_cvt_pk_bf16_f32 v{yv[0]}, v{yv[0]}, v{yv[1]}")
    a("s_mov_b64 exec, 3")
    a(f"buffer_store_dword v{yv[0]}, v{vOUT}, {srd(SOUT)}, 0 offen")
    a(f"s_or_b32 s{sT0}, s{sS}, s{sG}\ns_cmp_eq_u32 s{sT0}, 0\ns_cbranch_scc0 {lfin}")
    a(f"s_mov_b64 exec, 1\nv_mov_b32 v{t0}, 0\nv_mov_b32 v{t1}, s{sTAG}\nbuffer_store_dword v{t1}, v{t0}, {srd(SWS)}, 0 offen {stf}")
    a.label(lfin)
    stamp()
    dump_stamps("main")
    a("s_endpgm")

    a.label("L_aux")
    if prio: a(f"s_setprio {prio}")
    a(f"s_cmp_eq_u32 s{sW}, 6\ns_cbranch_scc1 L_gath")
    vXA = 8
    vF = list(range(12, 20)); vE = list(range(20, 28))
    vSel = [[28 + 2 * w + p for p in range(2)] for w in range(4)]
    vPair = 36
    vB = [44, 48]
    vDp = 52
    vWt = 64
    vOff, vRd, vPub, vVal = 6, 7, 56, 60
    u0, u1, u2, u3 = 57, 58, 59, 128
    vMU, vSD, vR = 129, 130, 131
    SWt = SA
    lw1, lld = "L_w1_addr", "L_aux_ld"
    a(f"v_and_b32 v{vC}, 7, v{vL}\nv_lshrrev_b32 v{vR8}, 3, v{vL}\nv_lshlrev_b32 v{u0}, 4, v{vL}")
    a(f"s_cmp_eq_u32 s{sW}, 5\ns_cbranch_scc1 {lw1}")
    a(f"v_lshlrev_b32 v{vOff}, 17, v{vG4}\nv_lshl_add_u32 v{vOff}, v{vI}, 4, v{vOff}")
    a(f"s_lshl_b32 s{sT0}, s{sS}, 19\ns_lshl_b32 s{sT1}, s{sG}, 8\ns_add_u32 s{sOFF}, s{sT0}, s{sT1}")
    a("s_waitcnt lgkmcnt(0)")
    mk(SX, 4, 1024)
    a.vm = []
    a.vmem("xa", f"buffer_load_dwordx4 v[{vXA}:{vXA+3}], v{u0}, {srd(SX)}, 0 offen")
    mk(SWt, 10, 63 * 8192 + 256, sOFF)
    a(f"s_mov_b32 s{sO1}, 0")
    for t in range(16):
        a.vmem(f"w{t}", f"buffer_load_dwordx4 v[{vWt+4*t}:{vWt+4*t+3}], v{vOff}, {srd(SWt)}, s{sO1} offen nt")
        if t < 15: a(f"s_add_u32 s{sO1}, s{sO1}, 8192")
    vm_wq = list(a.vm)
    a(f"s_branch {lld}")
    a.label(lw1)
    a(f"s_and_b32 s{sT0}, s2, 7\ns_lshr_b32 s{sT1}, s2, 3\ns_mul_i32 s{sT0}, s{sT0}, 22\ns_add_u32 s{sT0}, s{sT0}, s{sT1}\ns_lshr_b32 s{sBLK}, s{sT0}, 3\ns_and_b32 s{sSROW}, s{sT0}, 7\ns_cmp_lt_u32 s{sT1}, 22\ns_cselect_b32 s{sHAS}, 1, 0")
    a(f"v_mul_u32_u24 v{vOff}, 22016, v{vR8}\nv_lshl_add_u32 v{vOff}, v{vC}, 4, v{vOff}")
    a(f"s_cmp_eq_u32 s{sBLK}, 21\ns_cselect_b32 s{sT0}, 4, 8\nv_cmp_le_u32 vcc, s{sT0}, v{vC}\nv_mov_b32 v{u1}, {OOB}\nv_cndmask_b32 v{vOff}, v{vOff}, v{u1}, vcc")
    a(f"s_mul_i32 s{sT0}, s{sSROW}, {64*2752}\ns_lshl_b32 s{sT1}, s{sBLK}, 7\ns_add_u32 s{sOFF}, s{sT0}, s{sT1}")
    a("s_waitcnt lgkmcnt(0)")
    mk(SX, 4, 1024)
    a(f"buffer_load_dwordx4 v[{vXA}:{vXA+3}], v{u0}, {srd(SX)}, 0 offen")
    a(f"s_add_u32 s{SWt}, s16, s{sOFF}\ns_addc_u32 s{SWt+1}, s17, 0\ns_sub_u32 s{sT0}, 1409024, s{sOFF}\ns_cmp_eq_u32 s{sHAS}, 1\ns_cselect_b32 s{SWt+2}, s{sT0}, 0\ns_mov_b32 s{SWt+3}, 0x20000")
    a(f"s_mov_b32 s{sO1}, 0")
    for t in range(8):
        a(f"buffer_load_dwordx4 v[{vWt+4*t}:{vWt+4*t+3}], v{vOff}, {srd(SWt)}, s{sO1} offen nt")
        if t < 7: a(f"s_add_u32 s{sO1}, s{sO1}, 2752")
    a.label(lld)
    get_tag()
    mk(SWS, 24, ws_lim)
    stamp()
    if b1: a("s_barrier")
    a(f"v_mov_b32 v{u1}, 0x0c0c0100\nv_mov_b32 v{u2}, 0x01000c0c\ns_mov_b32 s{sMK}, 0xaaaaaaaa\ns_mov_b32 s{sMK+1}, 0xaaaaaaaa\nv_cndmask_b32 v{vE[0]}, v{u1}, v{u2}, s[{sMK}:{sMK+1}]")
    a(f"v_mov_b32 v{u1}, 0x0c0c0302\nv_mov_b32 v{u2}, 0x03020c0c\nv_cndmask_b32 v{vE[1]}, v{u1}, v{u2}, s[{sMK}:{sMK+1}]\nv_mov_b32 v{u1}, 0x0c0c0c0c")
    for w in range(4):
        m = 0x03030303 << (2 * w)
        a(f"s_mov_b32 s{sMK}, {m:#x}\ns_mov_b32 s{sMK+1}, {m:#x}")
        for p in range(2): a(f"v_cndmask_b32 v{vSel[w][p]}, v{u1}, v{vE[p]}, s[{sMK}:{sMK+1}]")
    lx1, lx2 = a.newlabel("Lx"), a.newlabel("Lx")
    a(f"s_cmp_eq_u32 s{sW}, 5\ns_cbranch_scc1 {lx1}\ns_waitcnt vmcnt(16)\ns_branch {lx2}")
    a.label(lx1); a("s_waitcnt vmcnt(8)"); a.label(lx2)
    for j in range(4):
        a(f"v_lshlrev_b32 v{vF[2*j]}, 16, v{vXA+j}\nv_and_b32 v{vF[2*j+1]}, 0xffff0000, v{vXA+j}")
    def wave_sum(v, sdst):
        for m in ("quad_perm:[1,0,3,2]", "quad_perm:[2,3,0,1]", "row_half_mirror", "row_mirror"): dpp("add_f32", v, m)
        a(f"v_add_f32_dpp v{v}, v{v}, v{v} row_bcast:15 row_mask:0xa bank_mask:0xf")
        a(f"v_add_f32_dpp v{v}, v{v}, v{v} row_bcast:31 row_mask:0xc bank_mask:0xf")
        a(f"v_readlane_b32 s{sdst}, v{v}, 63")
    a(f"v_add_f32 v{u0}, v{vF[0]}, v{vF[1]}\nv_add_f32 v{u1}, v{vF[2]}, v{vF[3]}\nv_add_f32 v{u2}, v{vF[4]}, v{vF[5]}\nv_add_f32 v{u3}, v{vF[6]}, v{vF[7]}")
    a(f"v_add_f32 v{u0}, v{u0}, v{u1}\nv_add_f32 v{u2}, v{u2}, v{u3}\nv_add_f32 v{u0}, v{u0}, v{u2}")
    wave_sum(u0, sT0)
    a(f"v_mov_b32 v{u1}, 0x3b000000\nv_mul_f32 v{vMU}, s{sT0}, v{u1}")
    for j in range(8): a(f"v_sub_f32 v{vE[j]}, v{vF[j]}, v{vMU}")
    a(f"v_mul_f32 v{u0}, v{vE[0]}, v{vE[0]}\nv_mul_f32 v{u2}, v{vE[1]}, v{vE[1]}")
    for j in range(2, 8, 2): a(f"v_fmac_f32 v{u0}, v{vE[j]}, v{vE[j]}\nv_fmac_f32 v{u2}, v{vE[j+1]}, v{vE[j+1]}")
    a(f"v_add_f32 v{u0}, v{u0}, v{u2}")
    def rbf(v): a(f"v_cvt_pk_bf16_f32 v{v}, v{v}, v{v}\nv_and_b32 v{v}, 0xffff0000, v{v}")
    rbf(vMU)
    for j in range(8): a(f"v_sub_f32 v{vF[j]}, v{vF[j]}, v{vMU}")
    wave_sum(u0, sT0)
    for j in range(0, 8, 2): a(f"v_cvt_pk_bf16_f32 v{vE[j//2]}, v{vF[j]}, v{vF[j+1]}")
    a(f"v_mul_f32 v{u0}, s{sT0}, v{u1}")
    for j in range(0, 8, 2): a(f"v_lshlrev_b32 v{vF[j]}, 16, v{vE[j//2]}\nv_and_b32 v{vF[j+1]}, 0xffff0000, v{vE[j//2]}")
    rbf(u0)
    a(f"v_add_f32 v{u0}, 0x3727c5ac, v{u0}")
    rbf(u0)
    a(f"v_sqrt_f32 v{vSD}, v{u0}")
    rbf(vSD)
    a(f"v_rcp_f32 v{vR}, v{vSD}")
    for j in range(8): a(f"v_mul_f32 v{vF[j]}, v{vF[j]}, v{vR}")
    for j in range(0, 8, 2): a(f"v_cvt_pk_bf16_f32 v{vXA+j//2}, v{vF[j]}, v{vF[j+1]}")
    a(f"s_sub_u32 s{sT0}, s{sW}, 4\ns_lshl_b32 s{sT0}, s{sT0}, 10\nv_lshlrev_b32 v{u0}, 4, v{vL}\nv_add_u32 v{u0}, s{sT0}, v{u0}")
    a(f"ds_write_b128 v{u0}, v[{vXA}:{vXA+3}] offset:{L_XN0}")
    fin_tag()
    stamp()
    lq1, lq2 = "L_prod_w1", "L_prod_done"
    a(f"s_cmp_eq_u32 s{sW}, 5\ns_cbranch_scc1 {lq1}")
    a(f"s_lshl_b32 s{sT0}, s{sS}, 7\nv_lshlrev_b32 v{u1}, 5, v{vG4}\nv_add_u32 v{u1}, s{sT0}, v{u1}")
    a(f"ds_read_b128 v[{vPair}:{vPair+3}], v{u1} offset:{L_XN0}\nds_read_b128 v[{vPair+4}:{vPair+7}], v{u1} offset:{L_XN0+16}")
    a(f"v_lshrrev_b32 v{vRd}, 4, v{vL}\nv_lshlrev_b32 v{vRd}, 6, v{vRd}\nv_and_b32 v{u2}, 3, v{vL}\nv_lshl_add_u32 v{vRd}, v{u2}, 3, v{vRd}\nv_bfe_u32 v{u2}, v{vL}, 2, 2\nv_add_lshl_u32 v{vRd}, v{vRd}, v{u2}, 2")
    a(f"s_lshl_b32 s{sT0}, s{sG}, 3\ns_add_u32 s{sT0}, s{sT0}, s{sS}\ns_lshl_b32 s{sT0}, s{sT0}, 10\ns_add_u32 s{sT0}, s{sT0}, {QP0}\nv_lshlrev_b32 v{vPub}, 4, v{vL}\nv_add_u32 v{vPub}, s{sT0}, v{vPub}")
    a("s_waitcnt lgkmcnt(0)")
    def pbuild(dst, t):
        for w in range(4): a(f"v_perm_b32 v{dst+w}, v{vPair+t//2}, v{vPair+t//2}, v{vSel[w][t%2]}")
    a.vm = vm_wq
    pbuild(vB[0], 0)
    for t in range(16):
        if t + 1 < 16: pbuild(vB[(t + 1) % 2], t + 1)
        a.wait(f"w{t}"); mfma(vDp, vWt + 4 * t, vB[t % 2], t == 0)
    a(f"v_lshlrev_b32 v{u0}, 4, v{vL}\nv_mov_b32 v{vVal+1}, s{sTAGQ}\nv_mov_b32 v{vVal+3}, s{sTAGQ}")
    a(f"ds_write_b128 v{u0}, v[{vDp}:{vDp+3}] offset:{L_RQ}")
    a(f"ds_read_b32 v{vVal}, v{vRd} offset:{L_RQ}\nds_read_b32 v{vVal+2}, v{vRd} offset:{L_RQ+16}")
    a("s_waitcnt lgkmcnt(0)")
    a(f"buffer_store_dwordx4 v[{vVal}:{vVal+3}], v{vPub}, {srd(SWS)}, 0 offen {stf}")
    a(f"s_branch {lq2}")
    a.label(lq1)
    a(f"s_lshl_b32 s{sT0}, s{sSROW}, 7\nv_lshlrev_b32 v{u1}, 4, v{vR8}\nv_add_u32 v{u1}, s{sT0}, v{u1}")
    a(f"ds_read_b128 v[{vPair}:{vPair+3}], v{u1} offset:{L_XN1}")
    a(f"v_lshrrev_b32 v{vRd}, 5, v{vL}\nv_lshlrev_b32 v{vRd}, 6, v{vRd}\nv_lshl_add_u32 v{vRd}, v{vC}, 2, v{vRd}\nv_bfe_u32 v{u2}, v{vL}, 3, 2\nv_add_lshl_u32 v{vRd}, v{vRd}, v{u2}, 2")
    a(f"s_mul_i32 s{sT0}, s{sSROW}, {HP_STRIDE}\ns_lshl_b32 s{sT1}, s{sBLK}, 9\ns_add_u32 s{sT0}, s{sT0}, s{sT1}\ns_add_u32 s{sT0}, s{sT0}, {HP0}\ns_cmp_eq_u32 s{sHAS}, 1\ns_cselect_b32 s{sT0}, s{sT0}, {OOB}")
    a(f"v_lshlrev_b32 v{vPub}, 3, v{vL}\nv_add_u32 v{vPub}, s{sT0}, v{vPub}")
    a("s_waitcnt lgkmcnt(0)")
    pbuild(vB[0], 0)
    for t in range(8):
        if t + 1 < 8: pbuild(vB[(t + 1) % 2], t + 1)
        a(f"s_waitcnt vmcnt({7-t})"); mfma(vDp, vWt + 4 * t, vB[t % 2], t == 0)
    a(f"v_lshlrev_b32 v{u0}, 4, v{vL}\nv_mov_b32 v{vVal+1}, s{sTAG}")
    a(f"ds_write_b128 v{u0}, v[{vDp}:{vDp+3}] offset:{L_RH}")
    a(f"ds_read_b32 v{vVal}, v{vRd} offset:{L_RH}\nds_read_b32 v{vVal+2}, v{vRd} offset:{L_RH+640}")
    a(f"s_waitcnt lgkmcnt(0)\nv_add_f32 v{vVal}, v{vVal}, v{vVal+2}")
    a(f"buffer_store_dwordx2 v[{vVal}:{vVal+1}], v{vPub}, {srd(SWS)}, 0 offen {stf}")
    a.label(lq2)
    stamp()
    a(f"s_sub_u32 s{sT0}, s{sW}, 4\ns_lshl_b32 s{sT0}, s{sT0}, 6\nv_add_u32 v{u0}, s{sT0}, v{vL}")
    a(f"v_lshrrev_b32 v{vRd}, 5, v{u0}\nv_lshlrev_b32 v{vRd}, 6, v{vRd}\nv_and_b32 v{u2}, 7, v{u0}\nv_lshl_add_u32 v{vRd}, v{u2}, 2, v{vRd}\nv_bfe_u32 v{u2}, v{u0}, 3, 2\nv_add_lshl_u32 v{vRd}, v{vRd}, v{u2}, 2")
    a(f"s_lshl_b32 s{sT0}, s{sG}, 3\ns_add_u32 s{sT0}, s{sT0}, s{sS}\ns_lshl_b32 s{sT0}, s{sT0}, 10\ns_add_u32 s{sT0}, s{sT0}, {OP0}\nv_lshlrev_b32 v{vPub}, 3, v{u0}\nv_add_u32 v{vPub}, s{sT0}, v{vPub}")
    a(f"v_mov_b32 v{vVal+1}, s{sTAG}\ns_mov_b32 s{sREG}, {FASTD}")
    a("s_barrier\ns_barrier\ns_barrier")
    o = L_RO // 256
    a(f"ds_read2st64_b32 v[{vF[0]}:{vF[1]}], v{vRd} offset0:{o} offset1:{o+4}\nds_read2st64_b32 v[{vF[2]}:{vF[3]}], v{vRd} offset0:{o+8} offset1:{o+12}")
    a(f"s_waitcnt lgkmcnt(0)\nv_add_f32 v{vF[0]}, v{vF[0]}, v{vF[1]}\nv_add_f32 v{vF[2]}, v{vF[2]}, v{vF[3]}\nv_add_f32 v{vVal}, v{vF[0]}, v{vF[2]}")
    if fast: a(f"buffer_store_dwordx2 v[{vVal}:{vVal+1}], v{vPub}, {srd(SWS)}, s{sREG} offen")
    a(f"buffer_store_dwordx2 v[{vVal}:{vVal+1}], v{vPub}, {srd(SWS)}, 0 offen {stf}")
    stamp()
    a(f"s_cmp_eq_u32 s{sW}, 5\ns_cbranch_scc0 L_ypub\ns_barrier\ns_branch L_aux_fin")
    a.label("L_ypub")
    a(f"v_lshrrev_b32 v{vRd}, 5, v{vL}\nv_lshlrev_b32 v{vRd}, 6, v{vRd}\nv_lshl_add_u32 v{vRd}, v{vC}, 2, v{vRd}\nv_bfe_u32 v{u2}, v{vL}, 3, 2\nv_add_lshl_u32 v{vRd}, v{vRd}, v{u2}, 2\nv_add_u32 v{u0}, 640, v{vRd}")
    a(f"s_lshl_b32 s{sT0}, s{sS}, 5\ns_add_u32 s{sT0}, s{sT0}, s{sG}\ns_lshl_b32 s{sT0}, s{sT0}, 9\ns_add_u32 s{sT0}, s{sT0}, {YP0}\nv_lshlrev_b32 v{vPub}, 3, v{vL}\nv_add_u32 v{vPub}, s{sT0}, v{vPub}")
    a("s_barrier")
    o = L_RY // 256
    a(f"ds_read2st64_b32 v[{vF[0]}:{vF[1]}], v{vRd} offset0:{o} offset1:{o+4}\nds_read2st64_b32 v[{vF[2]}:{vF[3]}], v{vRd} offset0:{o+8} offset1:{o+12}")
    a(f"ds_read2st64_b32 v[{vF[4]}:{vF[5]}], v{u0} offset0:{o} offset1:{o+4}\nds_read2st64_b32 v[{vF[6]}:{vF[7]}], v{u0} offset0:{o+8} offset1:{o+12}")
    a("s_waitcnt lgkmcnt(0)")
    a(f"v_add_f32 v{vF[0]}, v{vF[0]}, v{vF[1]}\nv_add_f32 v{vF[2]}, v{vF[2]}, v{vF[3]}\nv_add_f32 v{vF[4]}, v{vF[4]}, v{vF[5]}\nv_add_f32 v{vF[6]}, v{vF[6]}, v{vF[7]}")
    a(f"v_add_f32 v{vF[0]}, v{vF[0]}, v{vF[2]}\nv_add_f32 v{vF[4]}, v{vF[4]}, v{vF[6]}\nv_add_f32 v{vVal}, v{vF[0]}, v{vF[4]}")
    a(f"buffer_store_dwordx2 v[{vVal}:{vVal+1}], v{vPub}, {srd(SWS)}, 0 offen {stf}")
    stamp()
    a.label("L_aux_fin")
    dump_stamps("aux")
    a("s_endpgm")

    a.label("L_gath")
    St.n = 0
    vGo, vGd = 6, 64
    tmp = list(range(12, 28))
    if prefetch:
        a("s_getpc_b64 s[84:85]")
        a.label("L_pc")
        a(f"s_sub_u32 s84, s84, L_pc-{KNAME}\ns_subb_u32 s85, s85, 0")
        a(f"v_lshlrev_b32 v12, 7, v{vL}\nv_mov_b32 v9, s85\nv_add_co_u32 v8, vcc, s84, v12\nv_addc_co_u32 v9, vcc, 0, v9, vcc")
        a("global_load_dword v10, v[8:9], off")
        a("v_add_co_u32 v8, vcc, 0x2000, v8\nv_addc_co_u32 v9, vcc, 0, v9, vcc")
        a(f"v_add_u32 v12, 0x2000, v12\nv_cmp_gt_u32 vcc, L_end-{KNAME}, v12\ns_and_saveexec_b64 s[{sEX}:{sEX+1}], vcc\ns_cbranch_execz L_pf_done")
        a("global_load_dword v11, v[8:9], off")
        a.label("L_pf_done")
        a(f"s_mov_b64 exec, s[{sEX}:{sEX+1}]")
    a(f"v_and_b32 v{vC}, 7, v{vL}\nv_lshrrev_b32 v{vR8}, 3, v{vL}")
    a(f"s_lshl_b32 s{sT0}, s{sG}, 13\ns_add_u32 s{sT0}, s{sT0}, {QP0}\nv_lshlrev_b32 v{vGo}, 10, v{vC}\nv_lshl_add_u32 v{vGo}, v{vR8}, 7, v{vGo}\nv_add_u32 v{vGo}, s{sT0}, v{vGo}")
    a(f"v_mov_b32 v28, 0\nv_mov_b32 v29, 0\nv_mov_b32 v30, 0\nv_mov_b32 v31, 0\nds_write_b128 v28, v[28:31] offset:{L_ZB}")
    a("s_waitcnt lgkmcnt(0)")
    get_tag()
    mk(SWS, 24, ws_lim)
    fin_tag()
    stamp()
    if b1: a("s_barrier")
    if touch:
        a(f"s_lshl_b32 s{sT0}, s{sG}, 3\ns_add_u32 s{sT0}, s{sT0}, s{sS}\ns_lshl_b32 s{sT0}, s{sT0}, 10\nv_lshlrev_b32 v40, 4, v{vL}\nv_add_u32 v40, s{sT0}, v40")
        a(f"v_add_u32 v41, {QP0}, v40\nbuffer_load_dwordx4 v[44:47], v41, {srd(SWS)}, 0 offen {ldf}")
        a(f"v_add_u32 v41, {OP0}, v40\nbuffer_load_dwordx4 v[48:51], v41, {srd(SWS)}, 0 offen {ldf}")
        a(f"s_lshl_b32 s{sT0}, s{sS}, 5\ns_add_u32 s{sT0}, s{sT0}, s{sG}\ns_lshl_b32 s{sT0}, s{sT0}, 9\ns_add_u32 s{sT0}, s{sT0}, {YP0}\nv_lshlrev_b32 v41, 3, v{vL}\nv_add_u32 v41, s{sT0}, v41")
        a(f"buffer_load_dwordx2 v[52:53], v41, {srd(SWS)}, 0 offen {ldf}")
    a(f"s_lshl_b32 s{sT0}, s{sG}, 7\ns_lshl_b32 s{sT1}, s{sS}, 4\ns_add_u32 s{sT0}, s{sT0}, s{sT1}\ns_add_u32 s{sT0}, s{sT0}, {ML0}")
    a(f"v_lshlrev_b32 v34, 3, v{vL}\nv_add_u32 v34, s{sT0}, v34\nv_cmp_gt_u32 vcc, 2, v{vL}\nv_mov_b32 v35, {OOB}\nv_cndmask_b32 v34, v35, v34, vcc")
    a(f"v_mov_b32 v37, s{sTAG}")
    a(f"s_mov_b32 s{sREG}, {FASTD}\ns_waitcnt vmcnt(0)")
    a("s_barrier")
    stamp()
    a("s_barrier")
    a("s_barrier")
    ls = 40
    for i in range(4): a(f"ds_read_b128 v[{ls+4*i}:{ls+4*i+3}], v28 offset:{L_LS+16*i}")
    a(f"ds_read_b32 v38, v28 offset:{L_FLAG+4}")
    a("s_waitcnt lgkmcnt(0)")
    for st in (1, 2, 4, 8):
        for i in range(0, 16, 2 * st): a(f"v_add_f32 v{ls+i}, v{ls+i}, v{ls+i+st}")
    a(f"v_cmp_eq_u32 vcc, 0, v{vL}\nv_cndmask_b32 v36, v{ls}, v38, vcc")
    if fast: a(f"buffer_store_dwordx2 v[36:37], v34, {srd(SWS)}, s{sREG} offen")
    a(f"buffer_store_dwordx2 v[36:37], v34, {srd(SWS)}, 0 offen {stf}")
    stamp()
    a("s_barrier")
    dump_stamps("gath")
    a.label("L_end")
    a("s_endpgm")
    return wrap(a.text(), 256, 448, LDS_TOTAL, vgpr=248, sgpr=102)

if __name__ == "__main__":
    out = sys.argv[1]
    kw = {}
    for arg in sys.argv[2:]:
        k, v = arg.split("=")
        kw[k] = int(v, 0) if re.fullmatch(r"-?(0x)?[0-9a-fA-F]+", v) and not v.startswith("sc") else v.replace("+", " ")
    open(out, "w").write(gen(**kw))
```

```python
import sys, re
from asmlib import *

QP0, HP0, OP0, ML0, YP0, WSLIM = 0x1000, 0x42000, 0x60000, 0xA0000, 0xB0000, 0x170000
FASTQ = 0x120000
FASTD = 0x70000
HP_STRIDE = 1408 * 8
STAMP0 = 0x180000
OOB = 0x10000000
TAGC = 0x9E3779B9

L_RO, L_RY = 0, 4096
L_XN0, L_XN1, L_RQ, L_RH = 8192, 9216, 10240, 11264
L_QB, L_ZB, L_FLAG, L_MX, L_LS = 12288, 12544, 12560, 12608, 12672
LDS_TOTAL = 98304

sW, sG, sS, sTAG = 26, 27, 28, 29
SA, SB, SC_, SD, SWS, SX, SOUT = 32, 36, 40, 44, 48, 52, 56
sT0, sT1, sT2, sT3 = 30, 31, 60, 61
sO1, sO2, sO3 = 62, 63, 64
sC = [None, 66, 68, 70]
sSCALE, sLOG2E = 72, 73
sEX = 74
sRETRY = 76
sHV = 78
sCQ = 80
sBLK, sSROW, sHAS = 81, 82, 83
sMK = 84
sOFF = 86
sTAGQ, sREG, sFQ = 87, 91, 77
def srd(r): return f"s[{r}:{r+3}]"

def gen(stamps=False, trace=0, kpre=0, W=9, nv=0, vrest=16, vburst=1, pvn=1, fastq=1, g2early=0, fld='nt', g1free=1, prefetch=True, sleep_poll=0, b1=1, stf='sc1', ldf='sc1', wsbase=0, prio=0, fast=1, touch=0):
    a = Asm()
    ST = [92, 4, 6, 8, 10, 12, 14, 16, 18, 20]
    RT = {'G1': 88, 'G2': 89, 'G3': 90, 'G4': 90}
    class St:
        n = 0
    def stamp():
        if stamps:
            i = St.n; St.n += 1
            assert i < 10
            a(f"s_memrealtime s[{ST[i]}:{ST[i]+1}]")
    def dump_stamps(lab):
        if stamps:
            n = St.n
            a("s_mov_b64 exec, 1\ns_waitcnt lgkmcnt(0) vmcnt(0)")
            a(f"s_lshl_b32 s{sT0}, s2, 3\ns_add_u32 s{sT0}, s{sT0}, s{sW}\ns_lshl_b32 s{sT0}, s{sT0}, 7\ns_add_u32 s{sT0}, s{sT0}, {STAMP0}\nv_mov_b32 v2, s{sT0}")
            a(f"v_mov_b32 v3, s100\nbuffer_store_dword v3, v2, {srd(SWS)}, 0 offen")
            a(f"v_mov_b32 v4, {n}\nbuffer_store_dword v4, v2, {srd(SWS)}, 0 offen offset:4")
            for i in range(n):
                a(f"v_mov_b32 v{30+i}, s{ST[i]}\nbuffer_store_dword v{30+i}, v2, {srd(SWS)}, 0 offen offset:{8+4*i}")
            for i, r in enumerate([88, 89, 90, sRETRY]):
                a(f"v_mov_b32 v{50+i}, s{r}\nbuffer_store_dword v{50+i}, v2, {srd(SWS)}, 0 offen offset:{64+4*i}")
        St.n = 0

    vL, vI, vG4, vC, vR8 = 1, 2, 3, 4, 5
    class Tr:
        n = 0
    def tr(level=1):
        if trace == level:
            a(f"s_memrealtime s[94:95]\ns_waitcnt lgkmcnt(0)\nv_writelane_b32 v27, s94, {Tr.n}")
            Tr.n += 1
    def mk(r, p, nrec, offreg=None):
        if offreg is not None:
            a(f"s_add_u32 s{r}, s{p}, s{offreg}\ns_addc_u32 s{r+1}, s{p+1}, 0")
        else:
            a(f"s_mov_b32 s{r}, s{p}\ns_mov_b32 s{r+1}, s{p+1}")
        a(f"s_mov_b32 s{r+2}, {nrec}\ns_mov_b32 s{r+3}, 0x20000")
    def mfma(D, A, B, first):
        a(f"v_mfma_f32_16x16x32_bf16 v[{D}:{D+3}], v[{A}:{A+3}], v[{B}:{B+3}], " + ("0" if first else f"v[{D}:{D+3}]"))
    def dpp(op, v, m, src=None):
        src = v if src is None else src
        a(f"v_{op}_dpp v{v}, v{src}, v{v} {m} row_mask:0xf bank_mask:0xf")
    def tagcheck(regs, tmp, mask=None, q=False):
        sT = sTAGQ if q else sTAG
        xs = []
        regs = list(regs)
        k = 0
        while regs:
            if len(regs) >= 2:
                a(f"v_bitop3_b32 v{tmp[k]}, v{regs[0]}, v{regs[1]}, s{sT} bitop3:0x7e"); regs = regs[2:]
            else:
                a(f"v_xor_b32 v{tmp[k]}, s{sT}, v{regs[0]}"); regs = regs[1:]
            xs.append(tmp[k]); k += 1
        while len(xs) > 1:
            if len(xs) >= 3:
                a(f"v_or3_b32 v{xs[0]}, v{xs[0]}, v{xs[1]}, v{xs[2]}"); xs = xs[3:] + [xs[0]]
            else:
                a(f"v_or_b32 v{xs[0]}, v{xs[0]}, v{xs[1]}"); xs = [xs[0]]
        if q:
            a(f"v_and_b32 v{tmp[7]}, 0xfffffff0, v{xs[0]}\nv_cmp_ne_u32 vcc, 0, v{tmp[7]}")
            return xs[0]
        a(f"v_cmp_ne_u32 vcc, 0, v{xs[0]}")
        if mask is not None: a(f"s_and_b64 vcc, vcc, s[{mask}:{mask+1}]")
    def poll(name, waitname, regs, tmp, reissue, mask=None, q=False, reissue2=None):
        ok, rt = a.newlabel("Lok"), a.newlabel("Lrt")
        if waitname: a.wait(waitname)
        else: a("s_waitcnt vmcnt(0)")
        xr = tagcheck(regs, tmp, mask, q)
        a(f"s_cbranch_vccz {ok}")
        a.label(rt)
        for txt in ([reissue] if reissue2 is None else [reissue, reissue2]):
            if sleep_poll: a(f"s_sleep {sleep_poll}")
            a(f"s_sub_u32 s{sRETRY}, s{sRETRY}, 1")
            a(txt)
            a("s_waitcnt vmcnt(0)")
            tagcheck(regs, tmp, mask, q)
            a(f"s_cbranch_vccz {ok}")
        a(f"s_cmp_gt_i32 s{sRETRY}, 0\ns_cbranch_scc1 {rt}")
        a.label(ok)
        if stamps: a(f"s_mov_b32 s{RT[name]}, s{sRETRY}")
        return xr
    def red8(vals, op="add_f32"):
        for m in ("quad_perm:[1,0,3,2]", "quad_perm:[2,3,0,1]", "row_half_mirror"):
            for v in vals: dpp(op, v, m)
    def get_tag():
        if wsbase:
            a(f"s_add_u32 s24, s24, {wsbase:#x}\ns_addc_u32 s25, s25, 0")
        a(f"s_load_dword s{sTAG}, s[24:25], 0")
    def fin_tag():
        a(f"s_getreg_b32 s{sTAGQ}, hwreg(HW_REG_XCC_ID, 0, 4)")
        a(f"s_waitcnt lgkmcnt(0)\ns_add_u32 s{sTAG}, s{sTAG}, {TAGC:#x}\ns_and_b32 s{sREG}, s{sTAG}, 0xfffffff0\ns_or_b32 s{sTAGQ}, s{sTAGQ}, s{sREG}")
    ws_lim = WSLIM if not stamps else 0x240000

    a("s_cmp_ge_u32 s2, 256\ns_cbranch_scc1 L_end")
    if stamps: a("s_memrealtime s[100:101]")
    a("s_load_dwordx16 s[4:19], s[0:1], 0")
    a("s_load_dwordx4 s[20:23], s[0:1], 64")
    a("s_load_dwordx2 s[24:25], s[0:1], 80")
    a(f"v_lshrrev_b32 v{vI}, 6, v0\nv_and_b32 v{vL}, 63, v0\nv_readfirstlane_b32 s{sW}, v{vI}")
    a(f"s_and_b32 s{sT0}, s2, 7\ns_lshr_b32 s{sT1}, s2, 3\ns_lshl_b32 s{sG}, s{sT0}, 2\ns_and_b32 s{sT2}, s{sT1}, 3\ns_add_u32 s{sG}, s{sG}, s{sT2}\ns_lshr_b32 s{sS}, s2, 5")
    a(f"v_and_b32 v{vI}, 15, v{vL}\nv_lshrrev_b32 v{vG4}, 4, v{vL}")
    a(f"s_mov_b32 s{sRETRY}, 100000")
    if stamps: a(f"s_mov_b32 s88, 100000\ns_mov_b32 s89, 100000\ns_mov_b32 s90, 100000")
    a(f"s_cmp_ge_u32 s{sW}, 4\ns_cbranch_scc1 L_aux")

    vKo, vVo, vWOo, vW2o, vGq, vGm, vGh, vRAW, vSL = 6, 7, 8, 9, 10, 11, 12, 13, 14
    vQA = [15, 16, 17, 18]
    vOUT = 19
    vM = [20, 21, 22, 23]
    vXD = 24
    vMX = 25
    vG1 = 26
    vK, vV, vW2, vWO, vBq, vD = 28, 92, 156, 164, 180, 196
    vB0, vB1 = 212, 216
    vGa, vPP = 220, 232
    vF = list(range(236, 244))
    t0, t1, t2, t3 = 244, 245, 246, 247
    vDo, vDy = 200, 204
    SK, SV, SWO, SW2 = SA, SB, SC_, SD
    a.vm = []
    a(f"v_lshrrev_b32 v{vKo}, 2, v{vI}\nv_and_b32 v{t0}, 3, v{vI}\nv_lshlrev_b32 v{vKo}, 12, v{vKo}\nv_lshl_add_u32 v{t0}, v{vG4}, 2, v{t0}\nv_lshl_add_u32 v{vKo}, v{t0}, 4, v{vKo}")
    a(f"s_lshl_b32 s{sT0}, s{sG}, 21\ns_lshl_b32 s{sT1}, s{sS}, 16\ns_add_u32 s{sT0}, s{sT0}, s{sT1}\ns_lshl_b32 s{sT1}, s{sW}, 10\ns_add_u32 s{sT0}, s{sT0}, s{sT1}\ns_add_u32 s{sOFF}, s{sT0}, 0x180000")
    a(f"s_mov_b32 s{sO1}, 16384\ns_mov_b32 s{sO2}, 32768\ns_mov_b32 s{sO3}, 49152")
    a(f"v_lshlrev_b32 v{vVo}, 12, v{vG4}\nv_lshl_add_u32 v{vVo}, v{vI}, 4, v{vVo}")
    a("s_waitcnt lgkmcnt(0)")
    mk(SK, 6, 62464, sOFF)
    so4 = ["0", f"s{sO1}", f"s{sO2}", f"s{sO3}"]
    def ldK(t): a.vmem(f"K{t}", f"buffer_load_dwordx4 v[{vK+4*t}:{vK+4*t+3}], v{vKo}, {srd(SK)}, {so4[t%4]} offen offset:{(t//4)*256} nt")
    def ldV(t): a.vmem(f"V{t}", f"buffer_load_dwordx4 v[{vV+4*t}:{vV+4*t+3}], v{vVo}, {srd(SV)}, {so4[t%4]} offen offset:{(t//4)*256} nt")
    def ldWO(t): a.vmem(f"wo{t}", f"buffer_load_dwordx4 v[{vWO+4*t}:{vWO+4*t+3}], v{vWOo}, {srd(SWO)}, 0 offen offset:{t*1024} nt")
    def ldW2(t): a.vmem(f"w2{t}", f"buffer_load_dwordx4 v[{vW2+4*t}:{vW2+4*t+3}], v{vW2o}, {srd(SW2)}, 0 offen offset:{t*1024} nt")
    g2txt = f"buffer_load_dwordx4 v[{vGa+8}:{vGa+11}], v{vGh}, {srd(SWS)}, 0 offen {ldf}"
    def ldG2(): a.vmem("G2", g2txt)
    def g1(so, fl):
        return (f"buffer_load_dwordx4 v[{vGa}:{vGa+3}], v{vG1}, {srd(SWS)}, {so} offen {fl}\n"
                f"buffer_load_dwordx4 v[{vGa+4}:{vGa+7}], v{vG1}, {srd(SWS)}, {so} offen offset:16 {fl}")
    g1txt = g1(f"s{sFQ}", fld) if fastq else g1("0", ldf)
    def ldG1():
        t_ = g1txt.split("\n")
        a.vmem("G1a", t_[0]); a.vmem("G1b", t_[1])
    queue = [("V", t) for t in range(nv)] + [("K", t) for t in range(16)] + [("G1", 0)] + ([("G2", 0)] if g2early else []) + [("V", t) for t in range(nv, 16)] + ([] if g2early else [("G2", 0)]) + [("W2", 0), ("W2", 1)] + [("WO", t) for t in range(4)]
    order = [(f"{k}{t}" if k in "KV" else None) for k, t in queue]
    def nxt(n=1):
        for _ in range(n):
            if not queue: return
            k, t = queue.pop(0)
            {"K": lambda: ldK(t), "V": lambda: ldV(t), "G1": ldG1, "G2": ldG2, "W2": lambda: ldW2(t), "WO": lambda: ldWO(t)}[k]()
    mk(SV, 8, 62464, sOFF)
    nxt(kpre)
    get_tag()
    stamp()
    a(f"v_and_b32 v{vC}, 7, v{vL}\nv_lshrrev_b32 v{vR8}, 3, v{vL}")
    a(f"s_lshr_b32 s{sCQ}, s{sG}, 1")
    a(f"v_lshlrev_b32 v{vWOo}, 12, v{vR8}\nv_lshl_add_u32 v{vWOo}, v{vC}, 4, v{vWOo}")
    a(f"v_lshlrev_b32 v{vW2o}, 11, v{vR8}\nv_lshl_add_u32 v{vW2o}, v{vC}, 4, v{vW2o}")
    a(f"s_lshl_b32 s{sT0}, s{sG}, 7\ns_lshl_b32 s{sT1}, s{sW}, 5\ns_add_u32 s{sT0}, s{sT0}, s{sT1}\ns_lshl_b32 s{sT0}, s{sT0}, 10\ns_lshl_b32 s{sT1}, s{sS}, 7\ns_add_u32 s{sT0}, s{sT0}, s{sT1}")
    mk(SWO, 12, 31 * 1024 + 128, sT0)
    a(f"s_mul_i32 s{sT0}, s{sCQ}, 86\ns_and_b32 s{sT1}, s{sG}, 1\ns_mul_i32 s{sT2}, s{sT1}, 44\ns_add_u32 s{sT0}, s{sT0}, s{sT2}\ns_mul_i32 s{sT2}, s{sW}, 12\ns_add_u32 s{sT0}, s{sT0}, s{sT2}")
    a(f"s_lshl_b32 s{sT1}, s{sT1}, 1\ns_sub_u32 s{sT1}, 44, s{sT1}\ns_sub_u32 s{sT1}, s{sT1}, s{sT2}\ns_min_u32 s{sT3}, s{sT1}, 12")
    a(f"v_mul_u32_u24 v{vGh}, {HP_STRIDE}, v{vC}\nv_lshl_add_u32 v{vGh}, v{vR8}, 4, v{vGh}\ns_lshl_b32 s{sT1}, s{sT0}, 3\ns_add_u32 s{sT1}, s{sT1}, {HP0}\nv_add_u32 v{vGh}, s{sT1}, v{vGh}")
    a(f"v_lshlrev_b32 v{t0}, 1, v{vR8}\nv_cmp_gt_u32 s[{sHV}:{sHV+1}], s{sT3}, v{t0}\nv_mov_b32 v{t1}, {OOB}\nv_cndmask_b32 v{vGh}, v{t1}, v{vGh}, s[{sHV}:{sHV+1}]")
    a(f"s_lshl_b32 s{sT0}, s{sT0}, 10\ns_lshl_b32 s{sT1}, s{sS}, 7\ns_add_u32 s{sT0}, s{sT0}, s{sT1}")
    a(f"s_add_u32 s{SW2}, s18, s{sT0}\ns_addc_u32 s{SW2+1}, s19, 0\ns_sub_u32 s{sT3}, s{sT3}, 1\ns_lshl_b32 s{sT3}, s{sT3}, 10\ns_add_u32 s{SW2+2}, s{sT3}, 128\ns_mov_b32 s{SW2+3}, 0x20000")
    mk(SWS, 24, ws_lim); mk(SX, 4, 1024); mk(SOUT, 20, 1024)
    a(f"s_lshl_b32 s{sT0}, s{sS}, 7\ns_lshl_b32 s{sT1}, s{sCQ}, 3\ns_add_u32 s{sT0}, s{sT0}, s{sT1}\nv_and_b32 v{vOUT}, 1, v{vL}\nv_lshlrev_b32 v{vOUT}, 2, v{vOUT}\nv_add_u32 v{vOUT}, s{sT0}, v{vOUT}")
    for c in range(1, 4):
        m = 0x11111111 << c
        a(f"s_mov_b32 s{sC[c]}, {m:#x}\ns_mov_b32 s{sC[c]+1}, {m:#x}")
    a(f"s_mov_b32 s{sSCALE}, 0x3db504f3\ns_mov_b32 s{sLOG2E}, 0x3fb8aa3b\ns_mov_b32 s{sFQ}, {FASTQ if fastq else 0:#x}")
    a(f"v_and_b32 v{t0}, 1, v{vL}\nv_lshlrev_b32 v{t0}, 4, v{t0}\nv_mov_b32 v{t1}, 0xffff\nv_lshlrev_b32 v{t0}, v{t0}, v{t1}")
    for w in range(4):
        m = 0x03030303 << (2 * w)
        a(f"s_mov_b32 s{sMK}, {m:#x}\ns_mov_b32 s{sMK+1}, {m:#x}\nv_cndmask_b32 v{vM[w]}, 0, v{t0}, s[{sMK}:{sMK+1}]")
    a(f"s_lshl_b32 s{sT0}, s{sG}, 13\ns_lshl_b32 s{sT1}, s{sW}, 8\ns_add_u32 s{sT0}, s{sT0}, s{sT1}\ns_add_u32 s{sT0}, s{sT0}, {OP0}")
    a(f"v_lshlrev_b32 v{vGq}, 10, v{vC}\nv_lshl_add_u32 v{vGq}, v{vR8}, 5, v{vGq}\nv_add_u32 v{vGq}, s{sT0}, v{vGq}\nv_subrev_u32 v{vG1}, {OP0-QP0}, v{vGq}")
    a(f"s_lshl_b32 s{sT0}, s{sG}, 7\ns_add_u32 s{sT0}, s{sT0}, {ML0}\nv_lshlrev_b32 v{vGm}, 4, v{vC}\nv_add_u32 v{vGm}, s{sT0}, v{vGm}")
    a(f"s_lshl_b32 s{sT0}, s{sW}, 10\nv_lshlrev_b32 v{vRAW}, 4, v{vL}\nv_add_u32 v{vRAW}, s{sT0}, v{vRAW}")
    a(f"s_lshl_b32 s{sT0}, s{sW}, 4\nv_lshlrev_b32 v{vSL}, 2, v{vG4}\nv_add_u32 v{vSL}, s{sT0}, v{vSL}")
    a(f"v_and_b32 v{t0}, 3, v{vI}\nv_lshl_add_u32 v{t0}, v{vG4}, 2, v{t0}\nv_lshlrev_b32 v{t0}, 4, v{t0}\nv_add_u32 v{t0}, {L_QB}, v{t0}\nv_mov_b32 v{t1}, {L_ZB}")
    for tt in range(4):
        m = 0x000F000F << (4 * tt)
        a(f"s_mov_b32 s{sMK}, {m:#x}\ns_mov_b32 s{sMK+1}, {m:#x}\nv_cndmask_b32 v{vQA[tt]}, v{t1}, v{t0}, s[{sMK}:{sMK+1}]")
    fin_tag()
    a.vmem("xd", f"buffer_load_dword v{vXD}, v{vOUT}, {srd(SX)}, 0 offen")
    stamp()
    if b1: a("s_barrier")
    npre = nv + 16 + 1 + vrest
    def nxt_free():
        n = 1
        nxt()
        while g1free and queue and queue[0][0] in ("G1",):
            nxt(); n += 1
        return n
    issued = kpre
    while issued < min(W, npre): issued += nxt_free()
    wi = 0
    while issued < npre:
        while order[wi] is None: wi += 1
        a.wait(order[wi]); wi += 1
        tr()
        issued += nxt_free()
    a.wait("K15")
    tr(2)
    stamp()
    xr = poll("G1", "G1b", [vGa + 1, vGa + 3, vGa + 5, vGa + 7], vF, g1("0", ldf), q=True, reissue2=(g1txt if fastq else None))
    tr(2)
    a(f"v_cmp_ne_u32 vcc, 0, v{xr}\ns_cmp_eq_u64 vcc, 0\ns_cselect_b32 s{sREG}, {FASTD if fast else 0}, 0")
    nxt(vburst)
    qv = [vGa, vGa + 2, vGa + 4, vGa + 6]
    red8(qv)
    a(f"v_cvt_pk_bf16_f32 v{vGa}, v{qv[0]}, v{qv[1]}\nv_cvt_pk_bf16_f32 v{vGa+1}, v{qv[2]}, v{qv[3]}")
    a(f"s_lshl_b32 s{sT0}, s{sW}, 6\nv_lshlrev_b32 v{t0}, 3, v{vR8}\nv_add_u32 v{t0}, s{sT0}, v{t0}")
    a(f"s_mov_b64 s[{sEX}:{sEX+1}], exec\ns_mov_b32 exec_lo, 0x01010101\ns_mov_b32 exec_hi, 0x01010101")
    a(f"ds_write_b64 v{t0}, v[{vGa}:{vGa+1}] offset:{L_QB}")
    a(f"s_mov_b64 exec, s[{sEX}:{sEX+1}]")
    a(f"v_add_u32 v{vGq}, s{sREG}, v{vGq}\nv_add_u32 v{vGm}, s{sREG}, v{vGm}")
    tr(2)
    a("s_waitcnt lgkmcnt(0)\ns_barrier")
    tr(2)
    for tt in range(4): a(f"ds_read_b128 v[{vBq+4*tt}:{vBq+4*tt+3}], v{vQA[tt]}")
    nxt()
    for tt in range(4):
        a(f"s_waitcnt lgkmcnt({3-tt})")
        for u in range(4):
            mfma(vD + 4 * u, vK + 4 * (4 * u + tt), vBq + 4 * tt, tt == 0)
    tr(2)
    nxt()
    sc = [vF[0], vF[1], vF[2], vF[3]]
    for u in range(4): a(f"v_cndmask_b32 v{sc[u]}, v{vD+4*u}, v{vD+4*u+1}, s[{sC[1]}:{sC[1]+1}]")
    for u in range(4): a(f"v_cndmask_b32 v{sc[u]}, v{sc[u]}, v{vD+4*u+2}, s[{sC[2]}:{sC[2]+1}]")
    for u in range(4): a(f"v_cndmask_b32 v{sc[u]}, v{sc[u]}, v{vD+4*u+3}, s[{sC[3]}:{sC[3]+1}]")
    for m in ("quad_perm:[1,0,3,2]", "quad_perm:[2,3,0,1]"):
        for u in range(4): dpp("add_f32", sc[u], m)
    for u in (0, 2):
        a(f"v_cvt_pk_bf16_f32 v{t0+u//2}, v{sc[u]}, v{sc[u+1]}")
    for u in (0, 2):
        a(f"v_lshlrev_b32 v{sc[u]}, 16, v{t0+u//2}\nv_and_b32 v{sc[u+1]}, 0xffff0000, v{t0+u//2}")
    for u in range(4): a(f"v_mul_f32 v{sc[u]}, s{sSCALE}, v{sc[u]}")
    for u in (0, 2):
        a(f"v_cvt_pk_bf16_f32 v{t0+u//2}, v{sc[u]}, v{sc[u+1]}")
    for u in (0, 2):
        a(f"v_lshlrev_b32 v{sc[u]}, 16, v{t0+u//2}\nv_and_b32 v{sc[u+1]}, 0xffff0000, v{t0+u//2}")
    a(f"v_max3_f32 v{t0}, v{sc[0]}, v{sc[1]}, v{sc[2]}\nv_max_f32 v{t0}, v{t0}, v{sc[3]}")
    for m in ("row_ror:4", "row_ror:8"): dpp("max_f32", t0, m)
    a(f"ds_write_b32 v{vSL}, v{t0} offset:{L_MX}")
    nxt()
    a(f"v_mov_b32 v{t1}, 0")
    tr(2)
    a("s_waitcnt lgkmcnt(0)\ns_barrier")
    tr(2)
    mx = vD
    for i in range(4): a(f"ds_read_b128 v[{mx+4*i}:{mx+4*i+3}], v{t1} offset:{L_MX+16*i}")
    a("s_waitcnt lgkmcnt(0)")
    a(f"v_max3_f32 v{mx}, v{mx}, v{mx+1}, v{mx+2}\nv_max3_f32 v{mx+3}, v{mx+3}, v{mx+4}, v{mx+5}\nv_max3_f32 v{mx+6}, v{mx+6}, v{mx+7}, v{mx+8}\nv_max3_f32 v{mx+9}, v{mx+9}, v{mx+10}, v{mx+11}\nv_max3_f32 v{mx+12}, v{mx+12}, v{mx+13}, v{mx+14}")
    a(f"v_max3_f32 v{mx}, v{mx}, v{mx+3}, v{mx+6}\nv_max3_f32 v{mx+9}, v{mx+9}, v{mx+12}, v{mx+15}\nv_max_f32 v{vMX}, v{mx}, v{mx+9}")
    for u in range(4): a(f"v_sub_f32 v{sc[u]}, v{sc[u]}, v{vMX}")
    for u in range(4): a(f"v_mul_f32 v{sc[u]}, s{sLOG2E}, v{sc[u]}")
    for u in range(4): a(f"v_exp_f32 v{sc[u]}, v{sc[u]}")
    for u in range(4): a(f"v_cvt_pk_bf16_f32 v{vPP+u}, v{sc[u]}, v{sc[u]}")
    a(f"v_add_f32 v{t0}, v{sc[0]}, v{sc[1]}\nv_add_f32 v{t1}, v{sc[2]}, v{sc[3]}\nv_add_f32 v{t0}, v{t0}, v{t1}")
    for m in ("row_ror:4", "row_ror:8"): dpp("add_f32", t0, m)
    a(f"ds_write_b32 v{vSL}, v{t0} offset:{L_LS}")
    a(f"v_mov_b32 v{t1}, 0\nds_write_b32 v{t1}, v{vMX} offset:{L_FLAG+4}")
    tr(2)
    stamp()
    Bs = [vB0, vB1]
    def build(dst, pp, d=None):
        for w in range(4):
            if d is None: a(f"v_and_b32 v{dst+w}, v{pp}, v{vM[w]}")
            else: a(f"v_and_b32_dpp v{dst+w}, v{pp}, v{vM[w]} {d} row_mask:0xf bank_mask:0xf")
    build(Bs[0], vPP, "row_newbcast:0")
    for t in range(16):
        if t + 1 < 16: build(Bs[(t + 1) % 2], vPP + (t + 1) // 4, f"row_newbcast:{4*((t+1)%4)}")
        a.wait(f"V{t}"); tr(); mfma(vDo, vV + 4 * t, Bs[t % 2], t == 0); nxt(pvn)
    nxt(10)
    tr(2)
    stamp()
    a(f"ds_write_b128 v{vRAW}, v[{vDo}:{vDo+3}] offset:{L_RO}")
    a("s_waitcnt lgkmcnt(0)\ns_barrier")
    tr(2)
    poll("G2", "G2", [vGa + 9, vGa + 11], vF, g2txt, mask=sHV)
    tr(2)
    hv = [vGa + 8, vGa + 10]
    red8(hv)
    a(f"v_cvt_pk_bf16_f32 v{t0}, v{hv[0]}, v{hv[1]}\nv_lshlrev_b32 v{hv[0]}, 16, v{t0}\nv_and_b32 v{hv[1]}, 0xffff0000, v{t0}")
    ev = [vF[0], vF[1]]
    for j in range(2): a(f"v_mul_f32 v{ev[j]}, s{sLOG2E}, v{hv[j]}")
    for j in range(2): a(f"v_exp_f32 v{ev[j]}, -v{ev[j]}")
    for j in range(2): a(f"v_add_f32 v{ev[j]}, 1.0, v{ev[j]}")
    for j in range(2): a(f"v_rcp_f32 v{ev[j]}, v{ev[j]}")
    for j in range(2): a(f"v_mul_f32 v{hv[j]}, v{hv[j]}, v{ev[j]}")
    for j in range(2): a(f"v_cvt_pk_bf16_f32 v{hv[j]}, v{hv[j]}, v{hv[j]}")
    for j in range(2): a(f"v_cndmask_b32 v{hv[j]}, 0, v{hv[j]}, s[{sHV}:{sHV+1}]")
    build(Bs[0], hv[0]); build(Bs[1], hv[1])
    def g3(fl):
        return (f"buffer_load_dwordx4 v[{vGa}:{vGa+3}], v{vGq}, {srd(SWS)}, 0 offen {fl}\n"
                f"buffer_load_dwordx4 v[{vGa+4}:{vGa+7}], v{vGq}, {srd(SWS)}, 0 offen offset:16 {fl}\n"
                f"buffer_load_dwordx4 v[{vGa+8}:{vGa+11}], v{vGm}, {srd(SWS)}, 0 offen {fl}")
    a.wait("w20"); mfma(vDy, vW2, Bs[0], True)
    a.wait("w21"); mfma(vDy, vW2 + 4, Bs[1], False)
    tr(2)
    stamp()
    g3regs = [vGa + 1, vGa + 3, vGa + 5, vGa + 7, vGa + 9, vGa + 11]
    if fast:
        a(f"s_cmp_eq_u32 s{sREG}, 0\ns_cbranch_scc1 L_g3slow")
        a(g3(fld))
        poll("G3", None, g3regs, vF, g3(fld))
        a("s_branch L_g3done")
        a.label("L_g3slow")
    a(g3(ldf))
    poll("G3", None, g3regs, vF, g3(ldf))
    a.label("L_g3done")
    tr(2)
    stamp()
    vm_, vl_ = vGa + 8, vGa + 10
    a(f"v_mov_b32 v{t0}, v{vm_}")
    red8([t0], "max_f32")
    a(f"v_sub_f32 v{t0}, v{vm_}, v{t0}\nv_mul_f32 v{t0}, s{sLOG2E}, v{t0}\nv_exp_f32 v{t0}, v{t0}")
    ov = [vGa, vGa + 2, vGa + 4, vGa + 6]
    a(f"v_mul_f32 v{vl_}, v{vl_}, v{t0}")
    for v in ov: a(f"v_mul_f32 v{v}, v{v}, v{t0}")
    red8([vl_] + ov)
    a(f"v_rcp_f32 v{vl_}, v{vl_}")
    for v in ov: a(f"v_mul_f32 v{v}, v{v}, v{vl_}")
    for v in ov: a(f"v_cvt_pk_bf16_f32 v{v}, v{v}, v{v}")
    build(Bs[0], ov[0])
    for t in range(4):
        if t + 1 < 4: build(Bs[(t + 1) % 2], ov[t + 1])
        mfma(vDy, vWO + 4 * t, Bs[t % 2], False)
    a(f"ds_write_b128 v{vRAW}, v[{vDy}:{vDy+3}] offset:{L_RY}")
    tr(2)
    a("s_waitcnt lgkmcnt(0)\ns_barrier")
    tr(2)
    stamp()
    lfin = "L_main_fin"
    a(f"s_and_b32 s{sT0}, s{sG}, 1\ns_or_b32 s{sT0}, s{sT0}, s{sW}\ns_cmp_eq_u32 s{sT0}, 0\ns_cbranch_scc0 {lfin}")
    a(f"s_lshl_b32 s{sT0}, s{sS}, 14\ns_lshl_b32 s{sT1}, s{sCQ}, 5\ns_add_u32 s{sT0}, s{sT0}, s{sT1}\ns_add_u32 s{sT0}, s{sT0}, {YP0}")
    a(f"v_lshrrev_b32 v{t0}, 1, v{vL}\nv_lshlrev_b32 v{t0}, 9, v{t0}\nv_and_b32 v{t1}, 1, v{vL}\nv_lshl_add_u32 v{t0}, v{t1}, 4, v{t0}\nv_add_u32 v{vGq}, s{sT0}, v{t0}")
    g4txt = f"buffer_load_dwordx4 v[{vGa}:{vGa+3}], v{vGq}, {srd(SWS)}, 0 offen {ldf}"
    a(g4txt)
    a(f"v_lshlrev_b32 v{t2}, 16, v{vXD}\nv_and_b32 v{t3}, 0xffff0000, v{vXD}")
    poll("G4", None, [vGa + 1, vGa + 3], vF, g4txt)
    yv = [vGa, vGa + 2]
    for m in ("quad_perm:[2,3,0,1]", "row_ror:4", "row_ror:8"):
        for v in yv: dpp("add_f32", v, m)
    for sw in ("v_permlane16_swap_b32", "v_permlane32_swap_b32"):
        a(f"v_mov_b32 v{vF[0]}, v{yv[0]}\nv_mov_b32 v{vF[1]}, v{yv[1]}")
        a(f"{sw} v{yv[0]}, v{vF[0]}\n{sw} v{yv[1]}, v{vF[1]}")
        a(f"v_add_f32 v{yv[0]}, v{yv[0]}, v{vF[0]}\nv_add_f32 v{yv[1]}, v{yv[1]}, v{vF[1]}")
    a(f"v_add_f32 v{yv[0]}, v{yv[0]}, v{t2}\nv_add_f32 v{yv[1]}, v{yv[1]}, v{t3}\nv_cvt_pk_bf16_f32 v{yv[0]}, v{yv[0]}, v{yv[1]}")
    a("s_mov_b64 exec, 3")
    a(f"buffer_store_dword v{yv[0]}, v{vOUT}, {srd(SOUT)}, 0 offen")
    a(f"s_or_b32 s{sT0}, s{sS}, s{sG}\ns_cmp_eq_u32 s{sT0}, 0\ns_cbranch_scc0 {lfin}")
    a(f"s_mov_b64 exec, 1\nv_mov_b32 v{t0}, 0\nv_mov_b32 v{t1}, s{sTAG}\nbuffer_store_dword v{t1}, v{t0}, {srd(SWS)}, 0 offen {stf}")
    a.label(lfin)
    stamp()
    if trace:
        a(f"s_mov_b64 exec, -1\ns_lshl_b32 s{sT0}, s2, 2\ns_add_u32 s{sT0}, s{sT0}, s{sW}\ns_lshl_b32 s{sT0}, s{sT0}, 8\ns_add_u32 s{sT0}, s{sT0}, 0x1C0000\nv_lshlrev_b32 v2, 2, v{vL}\nv_add_u32 v2, s{sT0}, v2")
        a(f"buffer_store_dword v27, v2, {srd(SWS)}, 0 offen")
    dump_stamps("main")
    a("s_endpgm")

    a.label("L_aux")
    if prio: a(f"s_setprio {prio}")
    a(f"s_cmp_eq_u32 s{sW}, 6\ns_cbranch_scc1 L_gath")
    vXA = 8
    vF = list(range(12, 20)); vE = list(range(20, 28))
    vSel = [[28 + 2 * w + p for p in range(2)] for w in range(4)]
    vPair = 36
    vB = [44, 48]
    vDp = 52
    vWt = 64
    vOff, vRd, vPub, vVal = 6, 7, 56, 60
    u0, u1, u2, u3 = 57, 58, 59, 128
    vMU, vSD, vR = 129, 130, 131
    SWt = SA
    lw1, lld = "L_w1_addr", "L_aux_ld"
    a(f"v_and_b32 v{vC}, 7, v{vL}\nv_lshrrev_b32 v{vR8}, 3, v{vL}\nv_lshlrev_b32 v{u0}, 4, v{vL}")
    a(f"s_cmp_eq_u32 s{sW}, 5\ns_cbranch_scc1 {lw1}")
    a(f"v_lshlrev_b32 v{vOff}, 17, v{vG4}\nv_lshl_add_u32 v{vOff}, v{vI}, 4, v{vOff}")
    a(f"s_lshl_b32 s{sT0}, s{sS}, 19\ns_lshl_b32 s{sT1}, s{sG}, 8\ns_add_u32 s{sOFF}, s{sT0}, s{sT1}")
    a("s_waitcnt lgkmcnt(0)")
    mk(SX, 4, 1024)
    a.vm = []
    a.vmem("xa", f"buffer_load_dwordx4 v[{vXA}:{vXA+3}], v{u0}, {srd(SX)}, 0 offen")
    mk(SWt, 10, 63 * 8192 + 256, sOFF)
    a(f"s_mov_b32 s{sO1}, 0")
    for t in range(16):
        a.vmem(f"w{t}", f"buffer_load_dwordx4 v[{vWt+4*t}:{vWt+4*t+3}], v{vOff}, {srd(SWt)}, s{sO1} offen nt")
        if t < 15: a(f"s_add_u32 s{sO1}, s{sO1}, 8192")
    vm_wq = list(a.vm)
    a(f"s_branch {lld}")
    a.label(lw1)
    a(f"s_and_b32 s{sT0}, s2, 7\ns_lshr_b32 s{sT1}, s2, 3\ns_mul_i32 s{sT0}, s{sT0}, 22\ns_add_u32 s{sT0}, s{sT0}, s{sT1}\ns_lshr_b32 s{sBLK}, s{sT0}, 3\ns_and_b32 s{sSROW}, s{sT0}, 7\ns_cmp_lt_u32 s{sT1}, 22\ns_cselect_b32 s{sHAS}, 1, 0")
    a(f"v_mul_u32_u24 v{vOff}, 22016, v{vR8}\nv_lshl_add_u32 v{vOff}, v{vC}, 4, v{vOff}")
    a(f"s_cmp_eq_u32 s{sBLK}, 21\ns_cselect_b32 s{sT0}, 4, 8\nv_cmp_le_u32 vcc, s{sT0}, v{vC}\nv_mov_b32 v{u1}, {OOB}\nv_cndmask_b32 v{vOff}, v{vOff}, v{u1}, vcc")
    a(f"s_mul_i32 s{sT0}, s{sSROW}, {64*2752}\ns_lshl_b32 s{sT1}, s{sBLK}, 7\ns_add_u32 s{sOFF}, s{sT0}, s{sT1}")
    a("s_waitcnt lgkmcnt(0)")
    mk(SX, 4, 1024)
    a(f"buffer_load_dwordx4 v[{vXA}:{vXA+3}], v{u0}, {srd(SX)}, 0 offen")
    a(f"s_add_u32 s{SWt}, s16, s{sOFF}\ns_addc_u32 s{SWt+1}, s17, 0\ns_sub_u32 s{sT0}, 1409024, s{sOFF}\ns_cmp_eq_u32 s{sHAS}, 1\ns_cselect_b32 s{SWt+2}, s{sT0}, 0\ns_mov_b32 s{SWt+3}, 0x20000")
    a(f"s_mov_b32 s{sO1}, 0")
    for t in range(8):
        a(f"buffer_load_dwordx4 v[{vWt+4*t}:{vWt+4*t+3}], v{vOff}, {srd(SWt)}, s{sO1} offen nt")
        if t < 7: a(f"s_add_u32 s{sO1}, s{sO1}, 2752")
    a.label(lld)
    get_tag()
    mk(SWS, 24, ws_lim)
    stamp()
    if b1: a("s_barrier")
    a(f"v_mov_b32 v{u1}, 0x0c0c0100\nv_mov_b32 v{u2}, 0x01000c0c\ns_mov_b32 s{sMK}, 0xaaaaaaaa\ns_mov_b32 s{sMK+1}, 0xaaaaaaaa\nv_cndmask_b32 v{vE[0]}, v{u1}, v{u2}, s[{sMK}:{sMK+1}]")
    a(f"v_mov_b32 v{u1}, 0x0c0c0302\nv_mov_b32 v{u2}, 0x03020c0c\nv_cndmask_b32 v{vE[1]}, v{u1}, v{u2}, s[{sMK}:{sMK+1}]\nv_mov_b32 v{u1}, 0x0c0c0c0c")
    for w in range(4):
        m = 0x03030303 << (2 * w)
        a(f"s_mov_b32 s{sMK}, {m:#x}\ns_mov_b32 s{sMK+1}, {m:#x}")
        for p in range(2): a(f"v_cndmask_b32 v{vSel[w][p]}, v{u1}, v{vE[p]}, s[{sMK}:{sMK+1}]")
    lx1, lx2 = a.newlabel("Lx"), a.newlabel("Lx")
    a(f"s_cmp_eq_u32 s{sW}, 5\ns_cbranch_scc1 {lx1}\ns_waitcnt vmcnt(16)\ns_branch {lx2}")
    a.label(lx1); a("s_waitcnt vmcnt(8)"); a.label(lx2)
    for j in range(4):
        a(f"v_lshlrev_b32 v{vF[2*j]}, 16, v{vXA+j}\nv_and_b32 v{vF[2*j+1]}, 0xffff0000, v{vXA+j}")
    def wave_sum(v, sdst):
        for m in ("quad_perm:[1,0,3,2]", "quad_perm:[2,3,0,1]", "row_half_mirror", "row_mirror"): dpp("add_f32", v, m)
        a(f"v_add_f32_dpp v{v}, v{v}, v{v} row_bcast:15 row_mask:0xa bank_mask:0xf")
        a(f"v_add_f32_dpp v{v}, v{v}, v{v} row_bcast:31 row_mask:0xc bank_mask:0xf")
        a(f"v_readlane_b32 s{sdst}, v{v}, 63")
    a(f"v_add_f32 v{u0}, v{vF[0]}, v{vF[1]}\nv_add_f32 v{u1}, v{vF[2]}, v{vF[3]}\nv_add_f32 v{u2}, v{vF[4]}, v{vF[5]}\nv_add_f32 v{u3}, v{vF[6]}, v{vF[7]}")
    a(f"v_add_f32 v{u0}, v{u0}, v{u1}\nv_add_f32 v{u2}, v{u2}, v{u3}\nv_add_f32 v{u0}, v{u0}, v{u2}")
    wave_sum(u0, sT0)
    a(f"v_mov_b32 v{u1}, 0x3b000000\nv_mul_f32 v{vMU}, s{sT0}, v{u1}")
    for j in range(8): a(f"v_sub_f32 v{vE[j]}, v{vF[j]}, v{vMU}")
    a(f"v_mul_f32 v{u0}, v{vE[0]}, v{vE[0]}\nv_mul_f32 v{u2}, v{vE[1]}, v{vE[1]}")
    for j in range(2, 8, 2): a(f"v_fmac_f32 v{u0}, v{vE[j]}, v{vE[j]}\nv_fmac_f32 v{u2}, v{vE[j+1]}, v{vE[j+1]}")
    a(f"v_add_f32 v{u0}, v{u0}, v{u2}")
    def rbf(v): a(f"v_cvt_pk_bf16_f32 v{v}, v{v}, v{v}\nv_and_b32 v{v}, 0xffff0000, v{v}")
    rbf(vMU)
    for j in range(8): a(f"v_sub_f32 v{vF[j]}, v{vF[j]}, v{vMU}")
    wave_sum(u0, sT0)
    for j in range(0, 8, 2): a(f"v_cvt_pk_bf16_f32 v{vE[j//2]}, v{vF[j]}, v{vF[j+1]}")
    a(f"v_mul_f32 v{u0}, s{sT0}, v{u1}")
    for j in range(0, 8, 2): a(f"v_lshlrev_b32 v{vF[j]}, 16, v{vE[j//2]}\nv_and_b32 v{vF[j+1]}, 0xffff0000, v{vE[j//2]}")
    rbf(u0)
    a(f"v_add_f32 v{u0}, 0x3727c5ac, v{u0}")
    rbf(u0)
    a(f"v_sqrt_f32 v{vSD}, v{u0}")
    rbf(vSD)
    a(f"v_rcp_f32 v{vR}, v{vSD}")
    for j in range(8): a(f"v_mul_f32 v{vF[j]}, v{vF[j]}, v{vR}")
    for j in range(0, 8, 2): a(f"v_cvt_pk_bf16_f32 v{vXA+j//2}, v{vF[j]}, v{vF[j+1]}")
    a(f"s_sub_u32 s{sT0}, s{sW}, 4\ns_lshl_b32 s{sT0}, s{sT0}, 10\nv_lshlrev_b32 v{u0}, 4, v{vL}\nv_add_u32 v{u0}, s{sT0}, v{u0}")
    a(f"ds_write_b128 v{u0}, v[{vXA}:{vXA+3}] offset:{L_XN0}")
    fin_tag()
    stamp()
    lq1, lq2 = "L_prod_w1", "L_prod_done"
    a(f"s_cmp_eq_u32 s{sW}, 5\ns_cbranch_scc1 {lq1}")
    a(f"s_lshl_b32 s{sT0}, s{sS}, 7\nv_lshlrev_b32 v{u1}, 5, v{vG4}\nv_add_u32 v{u1}, s{sT0}, v{u1}")
    a(f"ds_read_b128 v[{vPair}:{vPair+3}], v{u1} offset:{L_XN0}\nds_read_b128 v[{vPair+4}:{vPair+7}], v{u1} offset:{L_XN0+16}")
    a(f"v_lshrrev_b32 v{vRd}, 4, v{vL}\nv_lshlrev_b32 v{vRd}, 6, v{vRd}\nv_and_b32 v{u2}, 3, v{vL}\nv_lshl_add_u32 v{vRd}, v{u2}, 3, v{vRd}\nv_bfe_u32 v{u2}, v{vL}, 2, 2\nv_add_lshl_u32 v{vRd}, v{vRd}, v{u2}, 2")
    a(f"s_lshl_b32 s{sT0}, s{sG}, 3\ns_add_u32 s{sT0}, s{sT0}, s{sS}\ns_lshl_b32 s{sT0}, s{sT0}, 10\ns_add_u32 s{sT0}, s{sT0}, {QP0}\nv_lshlrev_b32 v{vPub}, 4, v{vL}\nv_add_u32 v{vPub}, s{sT0}, v{vPub}")
    a("s_waitcnt lgkmcnt(0)")
    def pbuild(dst, t):
        for w in range(4): a(f"v_perm_b32 v{dst+w}, v{vPair+t//2}, v{vPair+t//2}, v{vSel[w][t%2]}")
    a.vm = vm_wq
    pbuild(vB[0], 0)
    for t in range(16):
        if t + 1 < 16: pbuild(vB[(t + 1) % 2], t + 1)
        a.wait(f"w{t}"); mfma(vDp, vWt + 4 * t, vB[t % 2], t == 0)
    a(f"v_lshlrev_b32 v{u0}, 4, v{vL}\nv_mov_b32 v{vVal+1}, s{sTAGQ}\nv_mov_b32 v{vVal+3}, s{sTAGQ}")
    a(f"ds_write_b128 v{u0}, v[{vDp}:{vDp+3}] offset:{L_RQ}")
    a(f"ds_read_b32 v{vVal}, v{vRd} offset:{L_RQ}\nds_read_b32 v{vVal+2}, v{vRd} offset:{L_RQ+16}")
    a("s_waitcnt lgkmcnt(0)")
    if fastq: a(f"s_mov_b32 s{sFQ}, {FASTQ:#x}\nbuffer_store_dwordx4 v[{vVal}:{vVal+3}], v{vPub}, {srd(SWS)}, s{sFQ} offen")
    a(f"buffer_store_dwordx4 v[{vVal}:{vVal+3}], v{vPub}, {srd(SWS)}, 0 offen {stf}")
    a(f"s_branch {lq2}")
    a.label(lq1)
    a(f"s_lshl_b32 s{sT0}, s{sSROW}, 7\nv_lshlrev_b32 v{u1}, 4, v{vR8}\nv_add_u32 v{u1}, s{sT0}, v{u1}")
    a(f"ds_read_b128 v[{vPair}:{vPair+3}], v{u1} offset:{L_XN1}")
    a(f"v_lshrrev_b32 v{vRd}, 5, v{vL}\nv_lshlrev_b32 v{vRd}, 6, v{vRd}\nv_lshl_add_u32 v{vRd}, v{vC}, 2, v{vRd}\nv_bfe_u32 v{u2}, v{vL}, 3, 2\nv_add_lshl_u32 v{vRd}, v{vRd}, v{u2}, 2")
    a(f"s_mul_i32 s{sT0}, s{sSROW}, {HP_STRIDE}\ns_lshl_b32 s{sT1}, s{sBLK}, 9\ns_add_u32 s{sT0}, s{sT0}, s{sT1}\ns_add_u32 s{sT0}, s{sT0}, {HP0}\ns_cmp_eq_u32 s{sHAS}, 1\ns_cselect_b32 s{sT0}, s{sT0}, {OOB}")
    a(f"v_lshlrev_b32 v{vPub}, 3, v{vL}\nv_add_u32 v{vPub}, s{sT0}, v{vPub}")
    a("s_waitcnt lgkmcnt(0)")
    pbuild(vB[0], 0)
    for t in range(8):
        if t + 1 < 8: pbuild(vB[(t + 1) % 2], t + 1)
        a(f"s_waitcnt vmcnt({7-t})"); mfma(vDp, vWt + 4 * t, vB[t % 2], t == 0)
    a(f"v_lshlrev_b32 v{u0}, 4, v{vL}\nv_mov_b32 v{vVal+1}, s{sTAG}")
    a(f"ds_write_b128 v{u0}, v[{vDp}:{vDp+3}] offset:{L_RH}")
    a(f"ds_read_b32 v{vVal}, v{vRd} offset:{L_RH}\nds_read_b32 v{vVal+2}, v{vRd} offset:{L_RH+640}")
    a(f"s_waitcnt lgkmcnt(0)\nv_add_f32 v{vVal}, v{vVal}, v{vVal+2}")
    a(f"buffer_store_dwordx2 v[{vVal}:{vVal+1}], v{vPub}, {srd(SWS)}, 0 offen {stf}")
    a.label(lq2)
    stamp()
    a(f"s_sub_u32 s{sT0}, s{sW}, 4\ns_lshl_b32 s{sT0}, s{sT0}, 6\nv_add_u32 v{u0}, s{sT0}, v{vL}")
    a(f"v_lshrrev_b32 v{vRd}, 5, v{u0}\nv_lshlrev_b32 v{vRd}, 6, v{vRd}\nv_and_b32 v{u2}, 7, v{u0}\nv_lshl_add_u32 v{vRd}, v{u2}, 2, v{vRd}\nv_bfe_u32 v{u2}, v{u0}, 3, 2\nv_add_lshl_u32 v{vRd}, v{vRd}, v{u2}, 2")
    a(f"s_lshl_b32 s{sT0}, s{sG}, 3\ns_add_u32 s{sT0}, s{sT0}, s{sS}\ns_lshl_b32 s{sT0}, s{sT0}, 10\ns_add_u32 s{sT0}, s{sT0}, {OP0}\nv_lshlrev_b32 v{vPub}, 3, v{u0}\nv_add_u32 v{vPub}, s{sT0}, v{vPub}")
    a(f"v_mov_b32 v{vVal+1}, s{sTAG}\ns_mov_b32 s{sREG}, {FASTD}")
    a("s_barrier\ns_barrier\ns_barrier")
    o = L_RO // 256
    a(f"ds_read2st64_b32 v[{vF[0]}:{vF[1]}], v{vRd} offset0:{o} offset1:{o+4}\nds_read2st64_b32 v[{vF[2]}:{vF[3]}], v{vRd} offset0:{o+8} offset1:{o+12}")
    a(f"s_waitcnt lgkmcnt(0)\nv_add_f32 v{vF[0]}, v{vF[0]}, v{vF[1]}\nv_add_f32 v{vF[2]}, v{vF[2]}, v{vF[3]}\nv_add_f32 v{vVal}, v{vF[0]}, v{vF[2]}")
    if fast: a(f"buffer_store_dwordx2 v[{vVal}:{vVal+1}], v{vPub}, {srd(SWS)}, s{sREG} offen")
    a(f"buffer_store_dwordx2 v[{vVal}:{vVal+1}], v{vPub}, {srd(SWS)}, 0 offen {stf}")
    stamp()
    a(f"s_cmp_eq_u32 s{sW}, 5\ns_cbranch_scc0 L_ypub\ns_barrier\ns_branch L_aux_fin")
    a.label("L_ypub")
    a(f"v_lshrrev_b32 v{vRd}, 5, v{vL}\nv_lshlrev_b32 v{vRd}, 6, v{vRd}\nv_lshl_add_u32 v{vRd}, v{vC}, 2, v{vRd}\nv_bfe_u32 v{u2}, v{vL}, 3, 2\nv_add_lshl_u32 v{vRd}, v{vRd}, v{u2}, 2\nv_add_u32 v{u0}, 640, v{vRd}")
    a(f"s_lshl_b32 s{sT0}, s{sS}, 5\ns_add_u32 s{sT0}, s{sT0}, s{sG}\ns_lshl_b32 s{sT0}, s{sT0}, 9\ns_add_u32 s{sT0}, s{sT0}, {YP0}\nv_lshlrev_b32 v{vPub}, 3, v{vL}\nv_add_u32 v{vPub}, s{sT0}, v{vPub}")
    a("s_barrier")
    o = L_RY // 256
    a(f"ds_read2st64_b32 v[{vF[0]}:{vF[1]}], v{vRd} offset0:{o} offset1:{o+4}\nds_read2st64_b32 v[{vF[2]}:{vF[3]}], v{vRd} offset0:{o+8} offset1:{o+12}")
    a(f"ds_read2st64_b32 v[{vF[4]}:{vF[5]}], v{u0} offset0:{o} offset1:{o+4}\nds_read2st64_b32 v[{vF[6]}:{vF[7]}], v{u0} offset0:{o+8} offset1:{o+12}")
    a("s_waitcnt lgkmcnt(0)")
    a(f"v_add_f32 v{vF[0]}, v{vF[0]}, v{vF[1]}\nv_add_f32 v{vF[2]}, v{vF[2]}, v{vF[3]}\nv_add_f32 v{vF[4]}, v{vF[4]}, v{vF[5]}\nv_add_f32 v{vF[6]}, v{vF[6]}, v{vF[7]}")
    a(f"v_add_f32 v{vF[0]}, v{vF[0]}, v{vF[2]}\nv_add_f32 v{vF[4]}, v{vF[4]}, v{vF[6]}\nv_add_f32 v{vVal}, v{vF[0]}, v{vF[4]}")
    a(f"buffer_store_dwordx2 v[{vVal}:{vVal+1}], v{vPub}, {srd(SWS)}, 0 offen {stf}")
    stamp()
    a.label("L_aux_fin")
    dump_stamps("aux")
    a("s_endpgm")

    a.label("L_gath")
    St.n = 0
    vGo, vGd = 6, 64
    tmp = list(range(12, 28))
    if prefetch:
        a("s_getpc_b64 s[84:85]")
        a.label("L_pc")
        a(f"s_sub_u32 s84, s84, L_pc-{KNAME}\ns_subb_u32 s85, s85, 0")
        a(f"v_lshlrev_b32 v12, 7, v{vL}\nv_mov_b32 v9, s85\nv_add_co_u32 v8, vcc, s84, v12\nv_addc_co_u32 v9, vcc, 0, v9, vcc")
        a("global_load_dword v10, v[8:9], off")
        a("v_add_co_u32 v8, vcc, 0x2000, v8\nv_addc_co_u32 v9, vcc, 0, v9, vcc")
        a(f"v_add_u32 v12, 0x2000, v12\nv_cmp_gt_u32 vcc, L_end-{KNAME}, v12\ns_and_saveexec_b64 s[{sEX}:{sEX+1}], vcc\ns_cbranch_execz L_pf_done")
        a("global_load_dword v11, v[8:9], off")
        a.label("L_pf_done")
        a(f"s_mov_b64 exec, s[{sEX}:{sEX+1}]")
    a(f"v_and_b32 v{vC}, 7, v{vL}\nv_lshrrev_b32 v{vR8}, 3, v{vL}")
    a(f"s_lshl_b32 s{sT0}, s{sG}, 13\ns_add_u32 s{sT0}, s{sT0}, {QP0}\nv_lshlrev_b32 v{vGo}, 10, v{vC}\nv_lshl_add_u32 v{vGo}, v{vR8}, 7, v{vGo}\nv_add_u32 v{vGo}, s{sT0}, v{vGo}")
    a(f"v_mov_b32 v28, 0\nv_mov_b32 v29, 0\nv_mov_b32 v30, 0\nv_mov_b32 v31, 0\nds_write_b128 v28, v[28:31] offset:{L_ZB}")
    a("s_waitcnt lgkmcnt(0)")
    get_tag()
    mk(SWS, 24, ws_lim)
    fin_tag()
    stamp()
    if b1: a("s_barrier")
    if touch:
        a(f"s_lshl_b32 s{sT0}, s{sG}, 3\ns_add_u32 s{sT0}, s{sT0}, s{sS}\ns_lshl_b32 s{sT0}, s{sT0}, 10\nv_lshlrev_b32 v40, 4, v{vL}\nv_add_u32 v40, s{sT0}, v40")
        a(f"v_add_u32 v41, {QP0}, v40\nbuffer_load_dwordx4 v[44:47], v41, {srd(SWS)}, 0 offen {ldf}")
        a(f"v_add_u32 v41, {OP0}, v40\nbuffer_load_dwordx4 v[48:51], v41, {srd(SWS)}, 0 offen {ldf}")
        a(f"s_lshl_b32 s{sT0}, s{sS}, 5\ns_add_u32 s{sT0}, s{sT0}, s{sG}\ns_lshl_b32 s{sT0}, s{sT0}, 9\ns_add_u32 s{sT0}, s{sT0}, {YP0}\nv_lshlrev_b32 v41, 3, v{vL}\nv_add_u32 v41, s{sT0}, v41")
        a(f"buffer_load_dwordx2 v[52:53], v41, {srd(SWS)}, 0 offen {ldf}")
    a(f"s_lshl_b32 s{sT0}, s{sG}, 7\ns_lshl_b32 s{sT1}, s{sS}, 4\ns_add_u32 s{sT0}, s{sT0}, s{sT1}\ns_add_u32 s{sT0}, s{sT0}, {ML0}")
    a(f"v_lshlrev_b32 v34, 3, v{vL}\nv_add_u32 v34, s{sT0}, v34\nv_cmp_gt_u32 vcc, 2, v{vL}\nv_mov_b32 v35, {OOB}\nv_cndmask_b32 v34, v35, v34, vcc")
    a(f"v_mov_b32 v37, s{sTAG}")
    a(f"s_mov_b32 s{sREG}, {FASTD}\ns_waitcnt vmcnt(0)")
    a("s_barrier")
    stamp()
    a("s_barrier")
    a("s_barrier")
    ls = 40
    for i in range(4): a(f"ds_read_b128 v[{ls+4*i}:{ls+4*i+3}], v28 offset:{L_LS+16*i}")
    a(f"ds_read_b32 v38, v28 offset:{L_FLAG+4}")
    a("s_waitcnt lgkmcnt(0)")
    for st in (1, 2, 4, 8):
        for i in range(0, 16, 2 * st): a(f"v_add_f32 v{ls+i}, v{ls+i}, v{ls+i+st}")
    a(f"v_cmp_eq_u32 vcc, 0, v{vL}\nv_cndmask_b32 v36, v{ls}, v38, vcc")
    if fast: a(f"buffer_store_dwordx2 v[36:37], v34, {srd(SWS)}, s{sREG} offen")
    a(f"buffer_store_dwordx2 v[36:37], v34, {srd(SWS)}, 0 offen {stf}")
    stamp()
    a("s_barrier")
    dump_stamps("gath")
    a.label("L_end")
    a("s_endpgm")
    return wrap(a.text(), 256, 448, LDS_TOTAL, vgpr=248, sgpr=102)

if __name__ == "__main__":
    out = sys.argv[1]
    kw = {}
    for arg in sys.argv[2:]:
        k, v = arg.split("=")
        kw[k] = int(v, 0) if re.fullmatch(r"-?(0x)?[0-9a-fA-F]+", v) and not v.startswith("sc") else v.replace("+", " ")
    open(out, "w").write(gen(**kw))
```

```python
import sys, re
from asmlib import *

QP0, HP0, OP0, ML0, YP0, WSLIM = 0x1000, 0x42000, 0x60000, 0xA0000, 0xB0000, 0x170000
FASTQ = 0x120000
FASTD = 0x70000
HP_STRIDE = 1408 * 8
STAMP0 = 0x180000
OOB = 0x10000000
TAGC = 0x9E3779B9

L_RO, L_RY = 0, 4096
L_XN0, L_XN1, L_RQ, L_RH = 8192, 9216, 10240, 11264
L_QB, L_ZB, L_FLAG, L_MX, L_LS = 12288, 12544, 12560, 12608, 12672
LDS_TOTAL = 98304

sW, sG, sS, sTAG = 26, 27, 28, 29
SA, SB, SC_, SD, SWS, SX, SOUT = 32, 36, 40, 44, 48, 52, 56
sT0, sT1, sT2, sT3 = 30, 31, 60, 61
sO1, sO2, sO3 = 62, 63, 64
sC = [None, 66, 68, 70]
sSCALE, sLOG2E = 72, 73
sEX = 74
sRETRY = 76
sHV = 78
sCQ = 80
sBLK, sSROW, sHAS = 81, 82, 83
sMK = 84
sOFF = 86
sTAGQ, sREG, sFQ = 87, 91, 77
def srd(r): return f"s[{r}:{r+3}]"

def gen(stamps=False, trace=0, kpre=0, W=9, nv=0, vrest=16, vburst=1, pvn=1, fastq=1, g2early=0, fld='nt', g1free=1, tlb=1, dbg=0, prefetch=True, sleep_poll=0, b1=1, stf='sc1', ldf='sc1', wsbase=0, prio=0, fast=1, touch=0):
    a = Asm()
    ST = [92, 4, 6, 8, 10, 12, 14, 16, 18, 20]
    RT = {'G1': 88, 'G2': 89, 'G3': 90, 'G4': 90}
    class St:
        n = 0
    def stamp():
        if stamps:
            i = St.n; St.n += 1
            assert i < 10
            a(f"s_memrealtime s[{ST[i]}:{ST[i]+1}]")
    def dump_stamps(lab):
        if stamps and dbg:
            n = St.n
            base = {"main": 1, "aux": 10, "gath": 15}[lab]
            cnt = {"main": 9, "aux": 4, "gath": 1}[lab]
            a("s_mov_b64 exec, 1\ns_waitcnt lgkmcnt(0) vmcnt(0)")
            a("s_load_dwordx2 s[96:97], s[0:1], 72\ns_waitcnt lgkmcnt(0)")
            a("s_mov_b32 s40, s96\ns_mov_b32 s41, s97\ns_mov_b32 s42, 256\ns_mov_b32 s43, 0x20000\nv_mov_b32 v2, 0")
            a("s_not_b32 s98, s100\nv_mov_b32 v3, s98\nbuffer_atomic_umax v3, v2, s[40:43], 0 offen")
            for i in range(min(n, cnt)):
                a(f"v_mov_b32 v{30+i}, s{ST[i]}\nbuffer_atomic_umax v{30+i}, v2, s[40:43], 0 offen offset:{4*(base+i)}")
            a("s_waitcnt vmcnt(0)")
        elif stamps:
            n = St.n
            a("s_mov_b64 exec, 1\ns_waitcnt lgkmcnt(0) vmcnt(0)")
            a(f"s_lshl_b32 s{sT0}, s2, 3\ns_add_u32 s{sT0}, s{sT0}, s{sW}\ns_lshl_b32 s{sT0}, s{sT0}, 7\ns_add_u32 s{sT0}, s{sT0}, {STAMP0}\nv_mov_b32 v2, s{sT0}")
            a(f"v_mov_b32 v3, s100\nbuffer_store_dword v3, v2, {srd(SWS)}, 0 offen")
            a(f"v_mov_b32 v4, {n}\nbuffer_store_dword v4, v2, {srd(SWS)}, 0 offen offset:4")
            for i in range(n):
                a(f"v_mov_b32 v{30+i}, s{ST[i]}\nbuffer_store_dword v{30+i}, v2, {srd(SWS)}, 0 offen offset:{8+4*i}")
            for i, r in enumerate([88, 89, 90, sRETRY]):
                a(f"v_mov_b32 v{50+i}, s{r}\nbuffer_store_dword v{50+i}, v2, {srd(SWS)}, 0 offen offset:{64+4*i}")
        St.n = 0

    vL, vI, vG4, vC, vR8 = 1, 2, 3, 4, 5
    class Tr:
        n = 0
    def tr(level=1):
        if trace == level:
            a(f"s_memrealtime s[94:95]\ns_waitcnt lgkmcnt(0)\nv_writelane_b32 v27, s94, {Tr.n}")
            Tr.n += 1
    def mk(r, p, nrec, offreg=None):
        if offreg is not None:
            a(f"s_add_u32 s{r}, s{p}, s{offreg}\ns_addc_u32 s{r+1}, s{p+1}, 0")
        else:
            a(f"s_mov_b32 s{r}, s{p}\ns_mov_b32 s{r+1}, s{p+1}")
        a(f"s_mov_b32 s{r+2}, {nrec}\ns_mov_b32 s{r+3}, 0x20000")
    def mfma(D, A, B, first):
        a(f"v_mfma_f32_16x16x32_bf16 v[{D}:{D+3}], v[{A}:{A+3}], v[{B}:{B+3}], " + ("0" if first else f"v[{D}:{D+3}]"))
    def dpp(op, v, m, src=None):
        src = v if src is None else src
        a(f"v_{op}_dpp v{v}, v{src}, v{v} {m} row_mask:0xf bank_mask:0xf")
    def tagcheck(regs, tmp, mask=None, q=False):
        sT = sTAGQ if q else sTAG
        xs = []
        regs = list(regs)
        k = 0
        while regs:
            if len(regs) >= 2:
                a(f"v_bitop3_b32 v{tmp[k]}, v{regs[0]}, v{regs[1]}, s{sT} bitop3:0x7e"); regs = regs[2:]
            else:
                a(f"v_xor_b32 v{tmp[k]}, s{sT}, v{regs[0]}"); regs = regs[1:]
            xs.append(tmp[k]); k += 1
        while len(xs) > 1:
            if len(xs) >= 3:
                a(f"v_or3_b32 v{xs[0]}, v{xs[0]}, v{xs[1]}, v{xs[2]}"); xs = xs[3:] + [xs[0]]
            else:
                a(f"v_or_b32 v{xs[0]}, v{xs[0]}, v{xs[1]}"); xs = [xs[0]]
        if q:
            a(f"v_and_b32 v{tmp[7]}, 0xfffffff0, v{xs[0]}\nv_cmp_ne_u32 vcc, 0, v{tmp[7]}")
            return xs[0]
        a(f"v_cmp_ne_u32 vcc, 0, v{xs[0]}")
        if mask is not None: a(f"s_and_b64 vcc, vcc, s[{mask}:{mask+1}]")
    def poll(name, waitname, regs, tmp, reissue, mask=None, q=False, reissue2=None):
        ok, rt = a.newlabel("Lok"), a.newlabel("Lrt")
        if waitname: a.wait(waitname)
        else: a("s_waitcnt vmcnt(0)")
        xr = tagcheck(regs, tmp, mask, q)
        a(f"s_cbranch_vccz {ok}")
        a.label(rt)
        for txt in ([reissue] if reissue2 is None else [reissue, reissue2]):
            if sleep_poll: a(f"s_sleep {sleep_poll}")
            a(f"s_sub_u32 s{sRETRY}, s{sRETRY}, 1")
            a(txt)
            a("s_waitcnt vmcnt(0)")
            tagcheck(regs, tmp, mask, q)
            a(f"s_cbranch_vccz {ok}")
        a(f"s_cmp_gt_i32 s{sRETRY}, 0\ns_cbranch_scc1 {rt}")
        a.label(ok)
        if stamps: a(f"s_mov_b32 s{RT[name]}, s{sRETRY}")
        return xr
    def red8(vals, op="add_f32"):
        for m in ("quad_perm:[1,0,3,2]", "quad_perm:[2,3,0,1]", "row_half_mirror"):
            for v in vals: dpp(op, v, m)
    def get_tag():
        if wsbase:
            a(f"s_add_u32 s24, s24, {wsbase:#x}\ns_addc_u32 s25, s25, 0")
        a(f"s_load_dword s{sTAG}, s[24:25], 0")
    def fin_tag():
        a(f"s_getreg_b32 s{sTAGQ}, hwreg(HW_REG_XCC_ID, 0, 4)")
        a(f"s_waitcnt lgkmcnt(0)\ns_add_u32 s{sTAG}, s{sTAG}, {TAGC:#x}\ns_and_b32 s{sREG}, s{sTAG}, 0xfffffff0\ns_or_b32 s{sTAGQ}, s{sTAGQ}, s{sREG}")
    ws_lim = WSLIM if not stamps else 0x240000

    a("s_cmp_ge_u32 s2, 256\ns_cbranch_scc1 L_end")
    if stamps: a("s_memrealtime s[100:101]")
    a("s_load_dwordx16 s[4:19], s[0:1], 0")
    a("s_load_dwordx4 s[20:23], s[0:1], 64")
    a("s_load_dwordx2 s[24:25], s[0:1], 80")
    a(f"v_lshrrev_b32 v{vI}, 6, v0\nv_and_b32 v{vL}, 63, v0\nv_readfirstlane_b32 s{sW}, v{vI}")
    a(f"s_and_b32 s{sT0}, s2, 7\ns_lshr_b32 s{sT1}, s2, 3\ns_lshl_b32 s{sG}, s{sT0}, 2\ns_and_b32 s{sT2}, s{sT1}, 3\ns_add_u32 s{sG}, s{sG}, s{sT2}\ns_lshr_b32 s{sS}, s2, 5")
    a(f"v_and_b32 v{vI}, 15, v{vL}\nv_lshrrev_b32 v{vG4}, 4, v{vL}")
    a(f"s_mov_b32 s{sRETRY}, 100000")
    if stamps: a(f"s_mov_b32 s88, 100000\ns_mov_b32 s89, 100000\ns_mov_b32 s90, 100000")
    a(f"s_cmp_ge_u32 s{sW}, 4\ns_cbranch_scc1 L_aux")

    vKo, vVo, vWOo, vW2o, vGq, vGm, vGh, vRAW, vSL = 6, 7, 8, 9, 10, 11, 12, 13, 14
    vQA = [15, 16, 17, 18]
    vOUT = 19
    vM = [20, 21, 22, 23]
    vXD = 24
    vMX = 25
    vG1 = 26
    vK, vV, vW2, vWO, vBq, vD = 28, 92, 156, 164, 180, 196
    vB0, vB1 = 212, 216
    vGa, vPP = 220, 232
    vF = list(range(236, 244))
    t0, t1, t2, t3 = 244, 245, 246, 247
    vDo, vDy = 200, 204
    SK, SV, SWO, SW2 = SA, SB, SC_, SD
    a.vm = []
    a(f"v_lshrrev_b32 v{vKo}, 2, v{vI}\nv_and_b32 v{t0}, 3, v{vI}\nv_lshlrev_b32 v{vKo}, 12, v{vKo}\nv_lshl_add_u32 v{t0}, v{vG4}, 2, v{t0}\nv_lshl_add_u32 v{vKo}, v{t0}, 4, v{vKo}")
    a(f"s_lshl_b32 s{sT0}, s{sG}, 21\ns_lshl_b32 s{sT1}, s{sS}, 16\ns_add_u32 s{sT0}, s{sT0}, s{sT1}\ns_lshl_b32 s{sT1}, s{sW}, 10\ns_add_u32 s{sT0}, s{sT0}, s{sT1}\ns_add_u32 s{sOFF}, s{sT0}, 0x180000")
    a(f"s_mov_b32 s{sO1}, 16384\ns_mov_b32 s{sO2}, 32768\ns_mov_b32 s{sO3}, 49152")
    a(f"v_lshlrev_b32 v{vVo}, 12, v{vG4}\nv_lshl_add_u32 v{vVo}, v{vI}, 4, v{vVo}")
    a("s_waitcnt lgkmcnt(0)")
    mk(SK, 6, 62464, sOFF)
    so4 = ["0", f"s{sO1}", f"s{sO2}", f"s{sO3}"]
    def ldK(t): a.vmem(f"K{t}", f"buffer_load_dwordx4 v[{vK+4*t}:{vK+4*t+3}], v{vKo}, {srd(SK)}, {so4[t%4]} offen offset:{(t//4)*256} nt")
    def ldV(t): a.vmem(f"V{t}", f"buffer_load_dwordx4 v[{vV+4*t}:{vV+4*t+3}], v{vVo}, {srd(SV)}, {so4[t%4]} offen offset:{(t//4)*256} nt")
    def ldWO(t): a.vmem(f"wo{t}", f"buffer_load_dwordx4 v[{vWO+4*t}:{vWO+4*t+3}], v{vWOo}, {srd(SWO)}, 0 offen offset:{t*1024} nt")
    def ldW2(t): a.vmem(f"w2{t}", f"buffer_load_dwordx4 v[{vW2+4*t}:{vW2+4*t+3}], v{vW2o}, {srd(SW2)}, 0 offen offset:{t*1024} nt")
    g2txt = f"buffer_load_dwordx4 v[{vGa+8}:{vGa+11}], v{vGh}, {srd(SWS)}, 0 offen {ldf}"
    def ldG2(): a.vmem("G2", g2txt)
    def g1(so, fl):
        return (f"buffer_load_dwordx4 v[{vGa}:{vGa+3}], v{vG1}, {srd(SWS)}, {so} offen {fl}\n"
                f"buffer_load_dwordx4 v[{vGa+4}:{vGa+7}], v{vG1}, {srd(SWS)}, {so} offen offset:16 {fl}")
    g1txt = g1(f"s{sFQ}", fld) if fastq else g1("0", ldf)
    def ldG1():
        t_ = g1txt.split("\n")
        a.vmem("G1a", t_[0]); a.vmem("G1b", t_[1])
    queue = [("V", t) for t in range(nv)] + [("K", t) for t in range(16)] + [("G1", 0)] + ([("G2", 0)] if g2early else []) + [("V", t) for t in range(nv, 16)] + ([] if g2early else [("G2", 0)]) + [("W2", 0), ("W2", 1)] + [("WO", t) for t in range(4)]
    order = [(f"{k}{t}" if k in "KV" else None) for k, t in queue]
    def nxt(n=1):
        for _ in range(n):
            if not queue: return
            k, t = queue.pop(0)
            {"K": lambda: ldK(t), "V": lambda: ldV(t), "G1": ldG1, "G2": ldG2, "W2": lambda: ldW2(t), "WO": lambda: ldWO(t)}[k]()
    mk(SV, 8, 62464, sOFF)
    nxt(kpre)
    get_tag()
    stamp()
    a(f"v_and_b32 v{vC}, 7, v{vL}\nv_lshrrev_b32 v{vR8}, 3, v{vL}")
    a(f"s_lshr_b32 s{sCQ}, s{sG}, 1")
    a(f"v_lshlrev_b32 v{vWOo}, 12, v{vR8}\nv_lshl_add_u32 v{vWOo}, v{vC}, 4, v{vWOo}")
    a(f"v_lshlrev_b32 v{vW2o}, 11, v{vR8}\nv_lshl_add_u32 v{vW2o}, v{vC}, 4, v{vW2o}")
    a(f"s_lshl_b32 s{sT0}, s{sG}, 7\ns_lshl_b32 s{sT1}, s{sW}, 5\ns_add_u32 s{sT0}, s{sT0}, s{sT1}\ns_lshl_b32 s{sT0}, s{sT0}, 10\ns_lshl_b32 s{sT1}, s{sS}, 7\ns_add_u32 s{sT0}, s{sT0}, s{sT1}")
    mk(SWO, 12, 31 * 1024 + 128, sT0)
    a(f"s_mul_i32 s{sT0}, s{sCQ}, 86\ns_and_b32 s{sT1}, s{sG}, 1\ns_mul_i32 s{sT2}, s{sT1}, 44\ns_add_u32 s{sT0}, s{sT0}, s{sT2}\ns_mul_i32 s{sT2}, s{sW}, 12\ns_add_u32 s{sT0}, s{sT0}, s{sT2}")
    a(f"s_lshl_b32 s{sT1}, s{sT1}, 1\ns_sub_u32 s{sT1}, 44, s{sT1}\ns_sub_u32 s{sT1}, s{sT1}, s{sT2}\ns_min_u32 s{sT3}, s{sT1}, 12")
    a(f"v_mul_u32_u24 v{vGh}, {HP_STRIDE}, v{vC}\nv_lshl_add_u32 v{vGh}, v{vR8}, 4, v{vGh}\ns_lshl_b32 s{sT1}, s{sT0}, 3\ns_add_u32 s{sT1}, s{sT1}, {HP0}\nv_add_u32 v{vGh}, s{sT1}, v{vGh}")
    a(f"v_lshlrev_b32 v{t0}, 1, v{vR8}\nv_cmp_gt_u32 s[{sHV}:{sHV+1}], s{sT3}, v{t0}\nv_mov_b32 v{t1}, {OOB}\nv_cndmask_b32 v{vGh}, v{t1}, v{vGh}, s[{sHV}:{sHV+1}]")
    a(f"s_lshl_b32 s{sT0}, s{sT0}, 10\ns_lshl_b32 s{sT1}, s{sS}, 7\ns_add_u32 s{sT0}, s{sT0}, s{sT1}")
    a(f"s_add_u32 s{SW2}, s18, s{sT0}\ns_addc_u32 s{SW2+1}, s19, 0\ns_sub_u32 s{sT3}, s{sT3}, 1\ns_lshl_b32 s{sT3}, s{sT3}, 10\ns_add_u32 s{SW2+2}, s{sT3}, 128\ns_mov_b32 s{SW2+3}, 0x20000")
    mk(SWS, 24, ws_lim); mk(SX, 4, 1024); mk(SOUT, 20, 1024)
    a(f"s_lshl_b32 s{sT0}, s{sS}, 7\ns_lshl_b32 s{sT1}, s{sCQ}, 3\ns_add_u32 s{sT0}, s{sT0}, s{sT1}\nv_and_b32 v{vOUT}, 1, v{vL}\nv_lshlrev_b32 v{vOUT}, 2, v{vOUT}\nv_add_u32 v{vOUT}, s{sT0}, v{vOUT}")
    for c in range(1, 4):
        m = 0x11111111 << c
        a(f"s_mov_b32 s{sC[c]}, {m:#x}\ns_mov_b32 s{sC[c]+1}, {m:#x}")
    a(f"s_mov_b32 s{sSCALE}, 0x3db504f3\ns_mov_b32 s{sLOG2E}, 0x3fb8aa3b\ns_mov_b32 s{sFQ}, {FASTQ if fastq else 0:#x}")
    a(f"v_and_b32 v{t0}, 1, v{vL}\nv_lshlrev_b32 v{t0}, 4, v{t0}\nv_mov_b32 v{t1}, 0xffff\nv_lshlrev_b32 v{t0}, v{t0}, v{t1}")
    for w in range(4):
        m = 0x03030303 << (2 * w)
        a(f"s_mov_b32 s{sMK}, {m:#x}\ns_mov_b32 s{sMK+1}, {m:#x}\nv_cndmask_b32 v{vM[w]}, 0, v{t0}, s[{sMK}:{sMK+1}]")
    a(f"s_lshl_b32 s{sT0}, s{sG}, 13\ns_lshl_b32 s{sT1}, s{sW}, 8\ns_add_u32 s{sT0}, s{sT0}, s{sT1}\ns_add_u32 s{sT0}, s{sT0}, {OP0}")
    a(f"v_lshlrev_b32 v{vGq}, 10, v{vC}\nv_lshl_add_u32 v{vGq}, v{vR8}, 5, v{vGq}\nv_add_u32 v{vGq}, s{sT0}, v{vGq}\nv_subrev_u32 v{vG1}, {OP0-QP0}, v{vGq}")
    a(f"s_lshl_b32 s{sT0}, s{sG}, 7\ns_add_u32 s{sT0}, s{sT0}, {ML0}\nv_lshlrev_b32 v{vGm}, 4, v{vC}\nv_add_u32 v{vGm}, s{sT0}, v{vGm}")
    a(f"s_lshl_b32 s{sT0}, s{sW}, 10\nv_lshlrev_b32 v{vRAW}, 4, v{vL}\nv_add_u32 v{vRAW}, s{sT0}, v{vRAW}")
    a(f"s_lshl_b32 s{sT0}, s{sW}, 4\nv_lshlrev_b32 v{vSL}, 2, v{vG4}\nv_add_u32 v{vSL}, s{sT0}, v{vSL}")
    a(f"v_and_b32 v{t0}, 3, v{vI}\nv_lshl_add_u32 v{t0}, v{vG4}, 2, v{t0}\nv_lshlrev_b32 v{t0}, 4, v{t0}\nv_add_u32 v{t0}, {L_QB}, v{t0}\nv_mov_b32 v{t1}, {L_ZB}")
    for tt in range(4):
        m = 0x000F000F << (4 * tt)
        a(f"s_mov_b32 s{sMK}, {m:#x}\ns_mov_b32 s{sMK+1}, {m:#x}\nv_cndmask_b32 v{vQA[tt]}, v{t1}, v{t0}, s[{sMK}:{sMK+1}]")
    a.vmem("xd", f"buffer_load_dword v{vXD}, v{vOUT}, {srd(SX)}, 0 offen")
    stamp()
    if b1: a("s_barrier")
    npre = nv + 16 + 1 + vrest
    def nxt_free():
        n = 1
        nxt()
        while g1free and queue and queue[0][0] in ("G1",):
            nxt(); n += 1
        return n
    issued = kpre
    while issued < min(W, npre): issued += nxt_free()
    wi = 0
    while issued < npre:
        while order[wi] is None: wi += 1
        a.wait(order[wi]); wi += 1
        tr()
        issued += nxt_free()
    fin_tag()
    a.wait("K15")
    tr(2)
    stamp()
    xr = poll("G1", "G1b", [vGa + 1, vGa + 3, vGa + 5, vGa + 7], vF, g1("0", ldf), q=True, reissue2=(g1txt if fastq else None))
    tr(2)
    a(f"v_cmp_ne_u32 vcc, 0, v{xr}\ns_cmp_eq_u64 vcc, 0\ns_cselect_b32 s{sREG}, {FASTD if fast else 0}, 0")
    nxt(vburst)
    qv = [vGa, vGa + 2, vGa + 4, vGa + 6]
    red8(qv)
    a(f"v_cvt_pk_bf16_f32 v{vGa}, v{qv[0]}, v{qv[1]}\nv_cvt_pk_bf16_f32 v{vGa+1}, v{qv[2]}, v{qv[3]}")
    a(f"s_lshl_b32 s{sT0}, s{sW}, 6\nv_lshlrev_b32 v{t0}, 3, v{vR8}\nv_add_u32 v{t0}, s{sT0}, v{t0}")
    a(f"s_mov_b64 s[{sEX}:{sEX+1}], exec\ns_mov_b32 exec_lo, 0x01010101\ns_mov_b32 exec_hi, 0x01010101")
    a(f"ds_write_b64 v{t0}, v[{vGa}:{vGa+1}] offset:{L_QB}")
    a(f"s_mov_b64 exec, s[{sEX}:{sEX+1}]")
    a(f"v_add_u32 v{vGq}, s{sREG}, v{vGq}\nv_add_u32 v{vGm}, s{sREG}, v{vGm}")
    tr(2)
    a("s_waitcnt lgkmcnt(0)\ns_barrier")
    tr(2)
    for tt in range(4): a(f"ds_read_b128 v[{vBq+4*tt}:{vBq+4*tt+3}], v{vQA[tt]}")
    nxt()
    for tt in range(4):
        a(f"s_waitcnt lgkmcnt({3-tt})")
        for u in range(4):
            mfma(vD + 4 * u, vK + 4 * (4 * u + tt), vBq + 4 * tt, tt == 0)
    tr(2)
    nxt()
    sc = [vF[0], vF[1], vF[2], vF[3]]
    for u in range(4): a(f"v_cndmask_b32 v{sc[u]}, v{vD+4*u}, v{vD+4*u+1}, s[{sC[1]}:{sC[1]+1}]")
    for u in range(4): a(f"v_cndmask_b32 v{sc[u]}, v{sc[u]}, v{vD+4*u+2}, s[{sC[2]}:{sC[2]+1}]")
    for u in range(4): a(f"v_cndmask_b32 v{sc[u]}, v{sc[u]}, v{vD+4*u+3}, s[{sC[3]}:{sC[3]+1}]")
    for m in ("quad_perm:[1,0,3,2]", "quad_perm:[2,3,0,1]"):
        for u in range(4): dpp("add_f32", sc[u], m)
    for u in (0, 2):
        a(f"v_cvt_pk_bf16_f32 v{t0+u//2}, v{sc[u]}, v{sc[u+1]}")
    for u in (0, 2):
        a(f"v_lshlrev_b32 v{sc[u]}, 16, v{t0+u//2}\nv_and_b32 v{sc[u+1]}, 0xffff0000, v{t0+u//2}")
    for u in range(4): a(f"v_mul_f32 v{sc[u]}, s{sSCALE}, v{sc[u]}")
    for u in (0, 2):
        a(f"v_cvt_pk_bf16_f32 v{t0+u//2}, v{sc[u]}, v{sc[u+1]}")
    for u in (0, 2):
        a(f"v_lshlrev_b32 v{sc[u]}, 16, v{t0+u//2}\nv_and_b32 v{sc[u+1]}, 0xffff0000, v{t0+u//2}")
    a(f"v_max3_f32 v{t0}, v{sc[0]}, v{sc[1]}, v{sc[2]}\nv_max_f32 v{t0}, v{t0}, v{sc[3]}")
    for m in ("row_ror:4", "row_ror:8"): dpp("max_f32", t0, m)
    a(f"ds_write_b32 v{vSL}, v{t0} offset:{L_MX}")
    nxt()
    a(f"v_mov_b32 v{t1}, 0")
    tr(2)
    a("s_waitcnt lgkmcnt(0)\ns_barrier")
    tr(2)
    mx = vD
    for i in range(4): a(f"ds_read_b128 v[{mx+4*i}:{mx+4*i+3}], v{t1} offset:{L_MX+16*i}")
    a("s_waitcnt lgkmcnt(0)")
    a(f"v_max3_f32 v{mx}, v{mx}, v{mx+1}, v{mx+2}\nv_max3_f32 v{mx+3}, v{mx+3}, v{mx+4}, v{mx+5}\nv_max3_f32 v{mx+6}, v{mx+6}, v{mx+7}, v{mx+8}\nv_max3_f32 v{mx+9}, v{mx+9}, v{mx+10}, v{mx+11}\nv_max3_f32 v{mx+12}, v{mx+12}, v{mx+13}, v{mx+14}")
    a(f"v_max3_f32 v{mx}, v{mx}, v{mx+3}, v{mx+6}\nv_max3_f32 v{mx+9}, v{mx+9}, v{mx+12}, v{mx+15}\nv_max_f32 v{vMX}, v{mx}, v{mx+9}")
    for u in range(4): a(f"v_sub_f32 v{sc[u]}, v{sc[u]}, v{vMX}")
    for u in range(4): a(f"v_mul_f32 v{sc[u]}, s{sLOG2E}, v{sc[u]}")
    for u in range(4): a(f"v_exp_f32 v{sc[u]}, v{sc[u]}")
    for u in range(4): a(f"v_cvt_pk_bf16_f32 v{vPP+u}, v{sc[u]}, v{sc[u]}")
    a(f"v_add_f32 v{t0}, v{sc[0]}, v{sc[1]}\nv_add_f32 v{t1}, v{sc[2]}, v{sc[3]}\nv_add_f32 v{t0}, v{t0}, v{t1}")
    for m in ("row_ror:4", "row_ror:8"): dpp("add_f32", t0, m)
    a(f"ds_write_b32 v{vSL}, v{t0} offset:{L_LS}")
    a(f"v_mov_b32 v{t1}, 0\nds_write_b32 v{t1}, v{vMX} offset:{L_FLAG+4}")
    tr(2)
    stamp()
    Bs = [vB0, vB1]
    def build(dst, pp, d=None):
        for w in range(4):
            if d is None: a(f"v_and_b32 v{dst+w}, v{pp}, v{vM[w]}")
            else: a(f"v_and_b32_dpp v{dst+w}, v{pp}, v{vM[w]} {d} row_mask:0xf bank_mask:0xf")
    build(Bs[0], vPP, "row_newbcast:0")
    for t in range(16):
        if t + 1 < 16: build(Bs[(t + 1) % 2], vPP + (t + 1) // 4, f"row_newbcast:{4*((t+1)%4)}")
        a.wait(f"V{t}"); tr(); mfma(vDo, vV + 4 * t, Bs[t % 2], t == 0); nxt(pvn)
    nxt(10)
    tr(2)
    stamp()
    a(f"ds_write_b128 v{vRAW}, v[{vDo}:{vDo+3}] offset:{L_RO}")
    a("s_waitcnt lgkmcnt(0)\ns_barrier")
    tr(2)
    poll("G2", "G2", [vGa + 9, vGa + 11], vF, g2txt, mask=sHV)
    tr(2)
    hv = [vGa + 8, vGa + 10]
    red8(hv)
    a(f"v_cvt_pk_bf16_f32 v{t0}, v{hv[0]}, v{hv[1]}\nv_lshlrev_b32 v{hv[0]}, 16, v{t0}\nv_and_b32 v{hv[1]}, 0xffff0000, v{t0}")
    ev = [vF[0], vF[1]]
    for j in range(2): a(f"v_mul_f32 v{ev[j]}, s{sLOG2E}, v{hv[j]}")
    for j in range(2): a(f"v_exp_f32 v{ev[j]}, -v{ev[j]}")
    for j in range(2): a(f"v_add_f32 v{ev[j]}, 1.0, v{ev[j]}")
    for j in range(2): a(f"v_rcp_f32 v{ev[j]}, v{ev[j]}")
    for j in range(2): a(f"v_mul_f32 v{hv[j]}, v{hv[j]}, v{ev[j]}")
    for j in range(2): a(f"v_cvt_pk_bf16_f32 v{hv[j]}, v{hv[j]}, v{hv[j]}")
    for j in range(2): a(f"v_cndmask_b32 v{hv[j]}, 0, v{hv[j]}, s[{sHV}:{sHV+1}]")
    build(Bs[0], hv[0]); build(Bs[1], hv[1])
    def g3(fl):
        return (f"buffer_load_dwordx4 v[{vGa}:{vGa+3}], v{vGq}, {srd(SWS)}, 0 offen {fl}\n"
                f"buffer_load_dwordx4 v[{vGa+4}:{vGa+7}], v{vGq}, {srd(SWS)}, 0 offen offset:16 {fl}\n"
                f"buffer_load_dwordx4 v[{vGa+8}:{vGa+11}], v{vGm}, {srd(SWS)}, 0 offen {fl}")
    a.wait("w20"); mfma(vDy, vW2, Bs[0], True)
    a.wait("w21"); mfma(vDy, vW2 + 4, Bs[1], False)
    tr(2)
    stamp()
    g3regs = [vGa + 1, vGa + 3, vGa + 5, vGa + 7, vGa + 9, vGa + 11]
    if fast:
        a(f"s_cmp_eq_u32 s{sREG}, 0\ns_cbranch_scc1 L_g3slow")
        a(g3(fld))
        poll("G3", None, g3regs, vF, g3(fld))
        a("s_branch L_g3done")
        a.label("L_g3slow")
    a(g3(ldf))
    poll("G3", None, g3regs, vF, g3(ldf))
    a.label("L_g3done")
    tr(2)
    stamp()
    vm_, vl_ = vGa + 8, vGa + 10
    a(f"v_mov_b32 v{t0}, v{vm_}")
    red8([t0], "max_f32")
    a(f"v_sub_f32 v{t0}, v{vm_}, v{t0}\nv_mul_f32 v{t0}, s{sLOG2E}, v{t0}\nv_exp_f32 v{t0}, v{t0}")
    ov = [vGa, vGa + 2, vGa + 4, vGa + 6]
    a(f"v_mul_f32 v{vl_}, v{vl_}, v{t0}")
    for v in ov: a(f"v_mul_f32 v{v}, v{v}, v{t0}")
    red8([vl_] + ov)
    a(f"v_rcp_f32 v{vl_}, v{vl_}")
    for v in ov: a(f"v_mul_f32 v{v}, v{v}, v{vl_}")
    for v in ov: a(f"v_cvt_pk_bf16_f32 v{v}, v{v}, v{v}")
    build(Bs[0], ov[0])
    for t in range(4):
        if t + 1 < 4: build(Bs[(t + 1) % 2], ov[t + 1])
        mfma(vDy, vWO + 4 * t, Bs[t % 2], False)
    a(f"ds_write_b128 v{vRAW}, v[{vDy}:{vDy+3}] offset:{L_RY}")
    tr(2)
    a("s_waitcnt lgkmcnt(0)\ns_barrier")
    tr(2)
    stamp()
    lfin = "L_main_fin"
    a(f"s_and_b32 s{sT0}, s{sG}, 1\ns_or_b32 s{sT0}, s{sT0}, s{sW}\ns_cmp_eq_u32 s{sT0}, 0\ns_cbranch_scc0 {lfin}")
    a(f"s_lshl_b32 s{sT0}, s{sS}, 14\ns_lshl_b32 s{sT1}, s{sCQ}, 5\ns_add_u32 s{sT0}, s{sT0}, s{sT1}\ns_add_u32 s{sT0}, s{sT0}, {YP0}")
    a(f"v_lshrrev_b32 v{t0}, 1, v{vL}\nv_lshlrev_b32 v{t0}, 9, v{t0}\nv_and_b32 v{t1}, 1, v{vL}\nv_lshl_add_u32 v{t0}, v{t1}, 4, v{t0}\nv_add_u32 v{vGq}, s{sT0}, v{t0}")
    g4txt = f"buffer_load_dwordx4 v[{vGa}:{vGa+3}], v{vGq}, {srd(SWS)}, 0 offen {ldf}"
    a(g4txt)
    a(f"v_lshlrev_b32 v{t2}, 16, v{vXD}\nv_and_b32 v{t3}, 0xffff0000, v{vXD}")
    poll("G4", None, [vGa + 1, vGa + 3], vF, g4txt)
    yv = [vGa, vGa + 2]
    for m in ("quad_perm:[2,3,0,1]", "row_ror:4", "row_ror:8"):
        for v in yv: dpp("add_f32", v, m)
    for sw in ("v_permlane16_swap_b32", "v_permlane32_swap_b32"):
        a(f"v_mov_b32 v{vF[0]}, v{yv[0]}\nv_mov_b32 v{vF[1]}, v{yv[1]}")
        a(f"{sw} v{yv[0]}, v{vF[0]}\n{sw} v{yv[1]}, v{vF[1]}")
        a(f"v_add_f32 v{yv[0]}, v{yv[0]}, v{vF[0]}\nv_add_f32 v{yv[1]}, v{yv[1]}, v{vF[1]}")
    a(f"v_add_f32 v{yv[0]}, v{yv[0]}, v{t2}\nv_add_f32 v{yv[1]}, v{yv[1]}, v{t3}\nv_cvt_pk_bf16_f32 v{yv[0]}, v{yv[0]}, v{yv[1]}")
    a("s_mov_b64 exec, 3")
    a(f"buffer_store_dword v{yv[0]}, v{vOUT}, {srd(SOUT)}, 0 offen")
    a(f"s_or_b32 s{sT0}, s{sS}, s{sG}\ns_cmp_eq_u32 s{sT0}, 0\ns_cbranch_scc0 {lfin}")
    a(f"s_mov_b64 exec, 1\nv_mov_b32 v{t0}, 0\nv_mov_b32 v{t1}, s{sTAG}\nbuffer_store_dword v{t1}, v{t0}, {srd(SWS)}, 0 offen {stf}")
    a.label(lfin)
    stamp()
    if trace:
        a(f"s_mov_b64 exec, -1\ns_lshl_b32 s{sT0}, s2, 2\ns_add_u32 s{sT0}, s{sT0}, s{sW}\ns_lshl_b32 s{sT0}, s{sT0}, 8\ns_add_u32 s{sT0}, s{sT0}, 0x1C0000\nv_lshlrev_b32 v2, 2, v{vL}\nv_add_u32 v2, s{sT0}, v2")
        a(f"buffer_store_dword v27, v2, {srd(SWS)}, 0 offen")
    dump_stamps("main")
    a("s_endpgm")

    a.label("L_aux")
    if prio: a(f"s_setprio {prio}")
    a(f"s_cmp_eq_u32 s{sW}, 6\ns_cbranch_scc1 L_gath")
    vXA = 8
    vF = list(range(12, 20)); vE = list(range(20, 28))
    vSel = [[28 + 2 * w + p for p in range(2)] for w in range(4)]
    vPair = 36
    vB = [44, 48]
    vDp = 52
    vWt = 64
    vOff, vRd, vPub, vVal = 6, 7, 56, 60
    u0, u1, u2, u3 = 57, 58, 59, 128
    vMU, vSD, vR = 129, 130, 131
    SWt = SA
    lw1, lld = "L_w1_addr", "L_aux_ld"
    a(f"v_and_b32 v{vC}, 7, v{vL}\nv_lshrrev_b32 v{vR8}, 3, v{vL}\nv_lshlrev_b32 v{u0}, 4, v{vL}")
    a(f"s_cmp_eq_u32 s{sW}, 5\ns_cbranch_scc1 {lw1}")
    a(f"v_lshlrev_b32 v{vOff}, 17, v{vG4}\nv_lshl_add_u32 v{vOff}, v{vI}, 4, v{vOff}")
    a(f"s_lshl_b32 s{sT0}, s{sS}, 19\ns_lshl_b32 s{sT1}, s{sG}, 8\ns_add_u32 s{sOFF}, s{sT0}, s{sT1}")
    a("s_waitcnt lgkmcnt(0)")
    mk(SX, 4, 1024)
    a.vm = []
    a.vmem("xa", f"buffer_load_dwordx4 v[{vXA}:{vXA+3}], v{u0}, {srd(SX)}, 0 offen")
    mk(SWt, 10, 63 * 8192 + 256, sOFF)
    a(f"s_mov_b32 s{sO1}, 0")
    for t in range(16):
        a.vmem(f"w{t}", f"buffer_load_dwordx4 v[{vWt+4*t}:{vWt+4*t+3}], v{vOff}, {srd(SWt)}, s{sO1} offen nt")
        if t < 15: a(f"s_add_u32 s{sO1}, s{sO1}, 8192")
    vm_wq = list(a.vm)
    a(f"s_branch {lld}")
    a.label(lw1)
    a(f"s_and_b32 s{sT0}, s2, 7\ns_lshr_b32 s{sT1}, s2, 3\ns_mul_i32 s{sT0}, s{sT0}, 22\ns_add_u32 s{sT0}, s{sT0}, s{sT1}\ns_lshr_b32 s{sBLK}, s{sT0}, 3\ns_and_b32 s{sSROW}, s{sT0}, 7\ns_cmp_lt_u32 s{sT1}, 22\ns_cselect_b32 s{sHAS}, 1, 0")
    a(f"v_mul_u32_u24 v{vOff}, 22016, v{vR8}\nv_lshl_add_u32 v{vOff}, v{vC}, 4, v{vOff}")
    a(f"s_cmp_eq_u32 s{sBLK}, 21\ns_cselect_b32 s{sT0}, 4, 8\nv_cmp_le_u32 vcc, s{sT0}, v{vC}\nv_mov_b32 v{u1}, {OOB}\nv_cndmask_b32 v{vOff}, v{vOff}, v{u1}, vcc")
    a(f"s_mul_i32 s{sT0}, s{sSROW}, {64*2752}\ns_lshl_b32 s{sT1}, s{sBLK}, 7\ns_add_u32 s{sOFF}, s{sT0}, s{sT1}")
    a("s_waitcnt lgkmcnt(0)")
    mk(SX, 4, 1024)
    a(f"buffer_load_dwordx4 v[{vXA}:{vXA+3}], v{u0}, {srd(SX)}, 0 offen")
    a(f"s_add_u32 s{SWt}, s16, s{sOFF}\ns_addc_u32 s{SWt+1}, s17, 0\ns_sub_u32 s{sT0}, 1409024, s{sOFF}\ns_cmp_eq_u32 s{sHAS}, 1\ns_cselect_b32 s{SWt+2}, s{sT0}, 0\ns_mov_b32 s{SWt+3}, 0x20000")
    a(f"s_mov_b32 s{sO1}, 0")
    for t in range(8):
        a(f"buffer_load_dwordx4 v[{vWt+4*t}:{vWt+4*t+3}], v{vOff}, {srd(SWt)}, s{sO1} offen nt")
        if t < 7: a(f"s_add_u32 s{sO1}, s{sO1}, 2752")
    a.label(lld)
    mk(SWS, 24, ws_lim)
    stamp()
    if b1: a("s_barrier")
    a(f"v_mov_b32 v{u1}, 0x0c0c0100\nv_mov_b32 v{u2}, 0x01000c0c\ns_mov_b32 s{sMK}, 0xaaaaaaaa\ns_mov_b32 s{sMK+1}, 0xaaaaaaaa\nv_cndmask_b32 v{vE[0]}, v{u1}, v{u2}, s[{sMK}:{sMK+1}]")
    a(f"v_mov_b32 v{u1}, 0x0c0c0302\nv_mov_b32 v{u2}, 0x03020c0c\nv_cndmask_b32 v{vE[1]}, v{u1}, v{u2}, s[{sMK}:{sMK+1}]\nv_mov_b32 v{u1}, 0x0c0c0c0c")
    for w in range(4):
        m = 0x03030303 << (2 * w)
        a(f"s_mov_b32 s{sMK}, {m:#x}\ns_mov_b32 s{sMK+1}, {m:#x}")
        for p in range(2): a(f"v_cndmask_b32 v{vSel[w][p]}, v{u1}, v{vE[p]}, s[{sMK}:{sMK+1}]")
    lx1, lx2 = a.newlabel("Lx"), a.newlabel("Lx")
    a(f"s_cmp_eq_u32 s{sW}, 5\ns_cbranch_scc1 {lx1}\ns_waitcnt vmcnt(16)\ns_branch {lx2}")
    a.label(lx1); a("s_waitcnt vmcnt(8)"); a.label(lx2)
    for j in range(4):
        a(f"v_lshlrev_b32 v{vF[2*j]}, 16, v{vXA+j}\nv_and_b32 v{vF[2*j+1]}, 0xffff0000, v{vXA+j}")
    def wave_sum(v, sdst):
        for m in ("quad_perm:[1,0,3,2]", "quad_perm:[2,3,0,1]", "row_half_mirror", "row_mirror"): dpp("add_f32", v, m)
        a(f"v_add_f32_dpp v{v}, v{v}, v{v} row_bcast:15 row_mask:0xa bank_mask:0xf")
        a(f"v_add_f32_dpp v{v}, v{v}, v{v} row_bcast:31 row_mask:0xc bank_mask:0xf")
        a(f"v_readlane_b32 s{sdst}, v{v}, 63")
    a(f"v_add_f32 v{u0}, v{vF[0]}, v{vF[1]}\nv_add_f32 v{u1}, v{vF[2]}, v{vF[3]}\nv_add_f32 v{u2}, v{vF[4]}, v{vF[5]}\nv_add_f32 v{u3}, v{vF[6]}, v{vF[7]}")
    a(f"v_add_f32 v{u0}, v{u0}, v{u1}\nv_add_f32 v{u2}, v{u2}, v{u3}\nv_add_f32 v{u0}, v{u0}, v{u2}")
    wave_sum(u0, sT0)
    a(f"v_mov_b32 v{u1}, 0x3b000000\nv_mul_f32 v{vMU}, s{sT0}, v{u1}")
    for j in range(8): a(f"v_sub_f32 v{vE[j]}, v{vF[j]}, v{vMU}")
    a(f"v_mul_f32 v{u0}, v{vE[0]}, v{vE[0]}\nv_mul_f32 v{u2}, v{vE[1]}, v{vE[1]}")
    for j in range(2, 8, 2): a(f"v_fmac_f32 v{u0}, v{vE[j]}, v{vE[j]}\nv_fmac_f32 v{u2}, v{vE[j+1]}, v{vE[j+1]}")
    a(f"v_add_f32 v{u0}, v{u0}, v{u2}")
    def rbf(v): a(f"v_cvt_pk_bf16_f32 v{v}, v{v}, v{v}\nv_and_b32 v{v}, 0xffff0000, v{v}")
    rbf(vMU)
    for j in range(8): a(f"v_sub_f32 v{vF[j]}, v{vF[j]}, v{vMU}")
    wave_sum(u0, sT0)
    for j in range(0, 8, 2): a(f"v_cvt_pk_bf16_f32 v{vE[j//2]}, v{vF[j]}, v{vF[j+1]}")
    a(f"v_mul_f32 v{u0}, s{sT0}, v{u1}")
    for j in range(0, 8, 2): a(f"v_lshlrev_b32 v{vF[j]}, 16, v{vE[j//2]}\nv_and_b32 v{vF[j+1]}, 0xffff0000, v{vE[j//2]}")
    rbf(u0)
    a(f"v_add_f32 v{u0}, 0x3727c5ac, v{u0}")
    rbf(u0)
    a(f"v_sqrt_f32 v{vSD}, v{u0}")
    rbf(vSD)
    a(f"v_rcp_f32 v{vR}, v{vSD}")
    for j in range(8): a(f"v_mul_f32 v{vF[j]}, v{vF[j]}, v{vR}")
    for j in range(0, 8, 2): a(f"v_cvt_pk_bf16_f32 v{vXA+j//2}, v{vF[j]}, v{vF[j+1]}")
    a(f"s_sub_u32 s{sT0}, s{sW}, 4\ns_lshl_b32 s{sT0}, s{sT0}, 10\nv_lshlrev_b32 v{u0}, 4, v{vL}\nv_add_u32 v{u0}, s{sT0}, v{u0}")
    a(f"ds_write_b128 v{u0}, v[{vXA}:{vXA+3}] offset:{L_XN0}")
    stamp()
    lq1, lq2 = "L_prod_w1", "L_prod_done"
    a(f"s_cmp_eq_u32 s{sW}, 5\ns_cbranch_scc1 {lq1}")
    a(f"s_lshl_b32 s{sT0}, s{sS}, 7\nv_lshlrev_b32 v{u1}, 5, v{vG4}\nv_add_u32 v{u1}, s{sT0}, v{u1}")
    a(f"ds_read_b128 v[{vPair}:{vPair+3}], v{u1} offset:{L_XN0}\nds_read_b128 v[{vPair+4}:{vPair+7}], v{u1} offset:{L_XN0+16}")
    a(f"v_lshrrev_b32 v{vRd}, 4, v{vL}\nv_lshlrev_b32 v{vRd}, 6, v{vRd}\nv_and_b32 v{u2}, 3, v{vL}\nv_lshl_add_u32 v{vRd}, v{u2}, 3, v{vRd}\nv_bfe_u32 v{u2}, v{vL}, 2, 2\nv_add_lshl_u32 v{vRd}, v{vRd}, v{u2}, 2")
    a(f"s_lshl_b32 s{sT0}, s{sG}, 3\ns_add_u32 s{sT0}, s{sT0}, s{sS}\ns_lshl_b32 s{sT0}, s{sT0}, 10\ns_add_u32 s{sT0}, s{sT0}, {QP0}\nv_lshlrev_b32 v{vPub}, 4, v{vL}\nv_add_u32 v{vPub}, s{sT0}, v{vPub}")
    a("s_waitcnt lgkmcnt(0)")
    get_tag()
    def pbuild(dst, t):
        for w in range(4): a(f"v_perm_b32 v{dst+w}, v{vPair+t//2}, v{vPair+t//2}, v{vSel[w][t%2]}")
    a.vm = vm_wq
    pbuild(vB[0], 0)
    for t in range(16):
        if t + 1 < 16: pbuild(vB[(t + 1) % 2], t + 1)
        a.wait(f"w{t}"); mfma(vDp, vWt + 4 * t, vB[t % 2], t == 0)
    fin_tag()
    a(f"v_lshlrev_b32 v{u0}, 4, v{vL}\nv_mov_b32 v{vVal+1}, s{sTAGQ}\nv_mov_b32 v{vVal+3}, s{sTAGQ}")
    a(f"ds_write_b128 v{u0}, v[{vDp}:{vDp+3}] offset:{L_RQ}")
    a(f"ds_read_b32 v{vVal}, v{vRd} offset:{L_RQ}\nds_read_b32 v{vVal+2}, v{vRd} offset:{L_RQ+16}")
    a("s_waitcnt lgkmcnt(0)")
    if fastq: a(f"s_mov_b32 s{sFQ}, {FASTQ:#x}\nbuffer_store_dwordx4 v[{vVal}:{vVal+3}], v{vPub}, {srd(SWS)}, s{sFQ} offen")
    a(f"buffer_store_dwordx4 v[{vVal}:{vVal+3}], v{vPub}, {srd(SWS)}, 0 offen {stf}")
    a(f"s_branch {lq2}")
    a.label(lq1)
    a(f"s_lshl_b32 s{sT0}, s{sSROW}, 7\nv_lshlrev_b32 v{u1}, 4, v{vR8}\nv_add_u32 v{u1}, s{sT0}, v{u1}")
    a(f"ds_read_b128 v[{vPair}:{vPair+3}], v{u1} offset:{L_XN1}")
    a(f"v_lshrrev_b32 v{vRd}, 5, v{vL}\nv_lshlrev_b32 v{vRd}, 6, v{vRd}\nv_lshl_add_u32 v{vRd}, v{vC}, 2, v{vRd}\nv_bfe_u32 v{u2}, v{vL}, 3, 2\nv_add_lshl_u32 v{vRd}, v{vRd}, v{u2}, 2")
    a(f"s_mul_i32 s{sT0}, s{sSROW}, {HP_STRIDE}\ns_lshl_b32 s{sT1}, s{sBLK}, 9\ns_add_u32 s{sT0}, s{sT0}, s{sT1}\ns_add_u32 s{sT0}, s{sT0}, {HP0}\ns_cmp_eq_u32 s{sHAS}, 1\ns_cselect_b32 s{sT0}, s{sT0}, {OOB}")
    a(f"v_lshlrev_b32 v{vPub}, 3, v{vL}\nv_add_u32 v{vPub}, s{sT0}, v{vPub}")
    a("s_waitcnt lgkmcnt(0)")
    get_tag()
    pbuild(vB[0], 0)
    for t in range(8):
        if t + 1 < 8: pbuild(vB[(t + 1) % 2], t + 1)
        a(f"s_waitcnt vmcnt({7-t})"); mfma(vDp, vWt + 4 * t, vB[t % 2], t == 0)
    fin_tag()
    a(f"v_lshlrev_b32 v{u0}, 4, v{vL}\nv_mov_b32 v{vVal+1}, s{sTAG}")
    a(f"ds_write_b128 v{u0}, v[{vDp}:{vDp+3}] offset:{L_RH}")
    a(f"ds_read_b32 v{vVal}, v{vRd} offset:{L_RH}\nds_read_b32 v{vVal+2}, v{vRd} offset:{L_RH+640}")
    a(f"s_waitcnt lgkmcnt(0)\nv_add_f32 v{vVal}, v{vVal}, v{vVal+2}")
    a(f"buffer_store_dwordx2 v[{vVal}:{vVal+1}], v{vPub}, {srd(SWS)}, 0 offen {stf}")
    a.label(lq2)
    stamp()
    a(f"s_sub_u32 s{sT0}, s{sW}, 4\ns_lshl_b32 s{sT0}, s{sT0}, 6\nv_add_u32 v{u0}, s{sT0}, v{vL}")
    a(f"v_lshrrev_b32 v{vRd}, 5, v{u0}\nv_lshlrev_b32 v{vRd}, 6, v{vRd}\nv_and_b32 v{u2}, 7, v{u0}\nv_lshl_add_u32 v{vRd}, v{u2}, 2, v{vRd}\nv_bfe_u32 v{u2}, v{u0}, 3, 2\nv_add_lshl_u32 v{vRd}, v{vRd}, v{u2}, 2")
    a(f"s_lshl_b32 s{sT0}, s{sG}, 3\ns_add_u32 s{sT0}, s{sT0}, s{sS}\ns_lshl_b32 s{sT0}, s{sT0}, 10\ns_add_u32 s{sT0}, s{sT0}, {OP0}\nv_lshlrev_b32 v{vPub}, 3, v{u0}\nv_add_u32 v{vPub}, s{sT0}, v{vPub}")
    a(f"v_mov_b32 v{vVal+1}, s{sTAG}\ns_mov_b32 s{sREG}, {FASTD}")
    a("s_barrier\ns_barrier\ns_barrier")
    o = L_RO // 256
    a(f"ds_read2st64_b32 v[{vF[0]}:{vF[1]}], v{vRd} offset0:{o} offset1:{o+4}\nds_read2st64_b32 v[{vF[2]}:{vF[3]}], v{vRd} offset0:{o+8} offset1:{o+12}")
    a(f"s_waitcnt lgkmcnt(0)\nv_add_f32 v{vF[0]}, v{vF[0]}, v{vF[1]}\nv_add_f32 v{vF[2]}, v{vF[2]}, v{vF[3]}\nv_add_f32 v{vVal}, v{vF[0]}, v{vF[2]}")
    if fast: a(f"buffer_store_dwordx2 v[{vVal}:{vVal+1}], v{vPub}, {srd(SWS)}, s{sREG} offen")
    a(f"buffer_store_dwordx2 v[{vVal}:{vVal+1}], v{vPub}, {srd(SWS)}, 0 offen {stf}")
    stamp()
    a(f"s_cmp_eq_u32 s{sW}, 5\ns_cbranch_scc0 L_ypub\ns_barrier\ns_branch L_aux_fin")
    a.label("L_ypub")
    a(f"v_lshrrev_b32 v{vRd}, 5, v{vL}\nv_lshlrev_b32 v{vRd}, 6, v{vRd}\nv_lshl_add_u32 v{vRd}, v{vC}, 2, v{vRd}\nv_bfe_u32 v{u2}, v{vL}, 3, 2\nv_add_lshl_u32 v{vRd}, v{vRd}, v{u2}, 2\nv_add_u32 v{u0}, 640, v{vRd}")
    a(f"s_lshl_b32 s{sT0}, s{sS}, 5\ns_add_u32 s{sT0}, s{sT0}, s{sG}\ns_lshl_b32 s{sT0}, s{sT0}, 9\ns_add_u32 s{sT0}, s{sT0}, {YP0}\nv_lshlrev_b32 v{vPub}, 3, v{vL}\nv_add_u32 v{vPub}, s{sT0}, v{vPub}")
    a("s_barrier")
    o = L_RY // 256
    a(f"ds_read2st64_b32 v[{vF[0]}:{vF[1]}], v{vRd} offset0:{o} offset1:{o+4}\nds_read2st64_b32 v[{vF[2]}:{vF[3]}], v{vRd} offset0:{o+8} offset1:{o+12}")
    a(f"ds_read2st64_b32 v[{vF[4]}:{vF[5]}], v{u0} offset0:{o} offset1:{o+4}\nds_read2st64_b32 v[{vF[6]}:{vF[7]}], v{u0} offset0:{o+8} offset1:{o+12}")
    a("s_waitcnt lgkmcnt(0)")
    a(f"v_add_f32 v{vF[0]}, v{vF[0]}, v{vF[1]}\nv_add_f32 v{vF[2]}, v{vF[2]}, v{vF[3]}\nv_add_f32 v{vF[4]}, v{vF[4]}, v{vF[5]}\nv_add_f32 v{vF[6]}, v{vF[6]}, v{vF[7]}")
    a(f"v_add_f32 v{vF[0]}, v{vF[0]}, v{vF[2]}\nv_add_f32 v{vF[4]}, v{vF[4]}, v{vF[6]}\nv_add_f32 v{vVal}, v{vF[0]}, v{vF[4]}")
    a(f"buffer_store_dwordx2 v[{vVal}:{vVal+1}], v{vPub}, {srd(SWS)}, 0 offen {stf}")
    stamp()
    a.label("L_aux_fin")
    dump_stamps("aux")
    a("s_endpgm")

    a.label("L_gath")
    St.n = 0
    vGo, vGd = 6, 64
    tmp = list(range(12, 28))
    if prefetch:
        a("s_getpc_b64 s[84:85]")
        a.label("L_pc")
        a(f"s_sub_u32 s84, s84, L_pc-{KNAME}\ns_subb_u32 s85, s85, 0")
        a(f"v_lshlrev_b32 v12, 7, v{vL}\nv_mov_b32 v9, s85\nv_add_co_u32 v8, vcc, s84, v12\nv_addc_co_u32 v9, vcc, 0, v9, vcc")
        a("global_load_dword v10, v[8:9], off")
        a("v_add_co_u32 v8, vcc, 0x2000, v8\nv_addc_co_u32 v9, vcc, 0, v9, vcc")
        a(f"v_add_u32 v12, 0x2000, v12\nv_cmp_gt_u32 vcc, L_end-{KNAME}, v12\ns_and_saveexec_b64 s[{sEX}:{sEX+1}], vcc\ns_cbranch_execz L_pf_done")
        a("global_load_dword v11, v[8:9], off")
        a.label("L_pf_done")
        a(f"s_mov_b64 exec, s[{sEX}:{sEX+1}]")
    a(f"v_and_b32 v{vC}, 7, v{vL}\nv_lshrrev_b32 v{vR8}, 3, v{vL}")
    a(f"s_lshl_b32 s{sT0}, s{sG}, 13\ns_add_u32 s{sT0}, s{sT0}, {QP0}\nv_lshlrev_b32 v{vGo}, 10, v{vC}\nv_lshl_add_u32 v{vGo}, v{vR8}, 7, v{vGo}\nv_add_u32 v{vGo}, s{sT0}, v{vGo}")
    a(f"v_mov_b32 v28, 0\nv_mov_b32 v29, 0\nv_mov_b32 v30, 0\nv_mov_b32 v31, 0\nds_write_b128 v28, v[28:31] offset:{L_ZB}")
    a("s_waitcnt lgkmcnt(0)")
    get_tag()
    if tlb:
        a(f"s_lshl_b32 s{sT0}, s{sG}, 21\ns_add_u32 s{sT0}, s{sT0}, 0x180000\ns_add_u32 s40, s8, s{sT0}\ns_addc_u32 s41, s9, 0\ns_load_dword s44, s[40:41], 0")
        a(f"s_lshl_b32 s{sT0}, s{sG}, 17\ns_add_u32 s42, s12, s{sT0}\ns_addc_u32 s43, s13, 0\ns_load_dword s45, s[42:43], 0")
        a(f"s_mul_i32 s{sT0}, s{sG}, {43*1024}\ns_add_u32 s36, s18, s{sT0}\ns_addc_u32 s37, s19, 0\ns_load_dword s46, s[36:37], 0")
        a(f"s_load_dword s47, s[20:21], 0")
    mk(SWS, 24, ws_lim)
    stamp()
    if b1: a("s_barrier")
    fin_tag()
    if touch:
        a(f"s_lshl_b32 s{sT0}, s{sG}, 3\ns_add_u32 s{sT0}, s{sT0}, s{sS}\ns_lshl_b32 s{sT0}, s{sT0}, 10\nv_lshlrev_b32 v40, 4, v{vL}\nv_add_u32 v40, s{sT0}, v40")
        a(f"v_add_u32 v41, {QP0}, v40\nbuffer_load_dwordx4 v[44:47], v41, {srd(SWS)}, 0 offen {ldf}")
        a(f"v_add_u32 v41, {OP0}, v40\nbuffer_load_dwordx4 v[48:51], v41, {srd(SWS)}, 0 offen {ldf}")
        a(f"s_lshl_b32 s{sT0}, s{sS}, 5\ns_add_u32 s{sT0}, s{sT0}, s{sG}\ns_lshl_b32 s{sT0}, s{sT0}, 9\ns_add_u32 s{sT0}, s{sT0}, {YP0}\nv_lshlrev_b32 v41, 3, v{vL}\nv_add_u32 v41, s{sT0}, v41")
        a(f"buffer_load_dwordx2 v[52:53], v41, {srd(SWS)}, 0 offen {ldf}")
    a(f"s_lshl_b32 s{sT0}, s{sG}, 7\ns_lshl_b32 s{sT1}, s{sS}, 4\ns_add_u32 s{sT0}, s{sT0}, s{sT1}\ns_add_u32 s{sT0}, s{sT0}, {ML0}")
    a(f"v_lshlrev_b32 v34, 3, v{vL}\nv_add_u32 v34, s{sT0}, v34\nv_cmp_gt_u32 vcc, 2, v{vL}\nv_mov_b32 v35, {OOB}\nv_cndmask_b32 v34, v35, v34, vcc")
    a(f"v_mov_b32 v37, s{sTAG}")
    a(f"s_mov_b32 s{sREG}, {FASTD}\ns_waitcnt vmcnt(0)")
    a("s_barrier")
    stamp()
    a("s_barrier")
    a("s_barrier")
    ls = 40
    for i in range(4): a(f"ds_read_b128 v[{ls+4*i}:{ls+4*i+3}], v28 offset:{L_LS+16*i}")
    a(f"ds_read_b32 v38, v28 offset:{L_FLAG+4}")
    a("s_waitcnt lgkmcnt(0)")
    for st in (1, 2, 4, 8):
        for i in range(0, 16, 2 * st): a(f"v_add_f32 v{ls+i}, v{ls+i}, v{ls+i+st}")
    a(f"v_cmp_eq_u32 vcc, 0, v{vL}\nv_cndmask_b32 v36, v{ls}, v38, vcc")
    if fast: a(f"buffer_store_dwordx2 v[36:37], v34, {srd(SWS)}, s{sREG} offen")
    a(f"buffer_store_dwordx2 v[36:37], v34, {srd(SWS)}, 0 offen {stf}")
    stamp()
    a("s_barrier")
    dump_stamps("gath")
    a.label("L_end")
    a("s_endpgm")
    return wrap(a.text(), 256, 448, LDS_TOTAL, vgpr=248, sgpr=102)

if __name__ == "__main__":
    out = sys.argv[1]
    kw = {}
    for arg in sys.argv[2:]:
        k, v = arg.split("=")
        kw[k] = int(v, 0) if re.fullmatch(r"-?(0x)?[0-9a-fA-F]+", v) and not v.startswith("sc") else v.replace("+", " ")
    open(out, "w").write(gen(**kw))
```

```python
import sys, re
from asmlib import *

QP0, HP0, OP0, ML0, YP0, WSLIM = 0x1000, 0x42000, 0x60000, 0xA0000, 0xB0000, 0x170000
FASTQ = 0x120000
FASTD = 0x70000
HP_STRIDE = 1408 * 8
STAMP0 = 0x180000
OOB = 0x10000000
TAGC = 0x9E3779B9

L_RO, L_RY = 0, 4096
L_XN0, L_XN1, L_RQ, L_RH = 8192, 9216, 10240, 11264
L_QB, L_ZB, L_FLAG, L_MX, L_LS = 12288, 12544, 12560, 12608, 12672
LDS_TOTAL = 98304

sW, sG, sS, sTAG = 26, 27, 28, 29
SA, SB, SC_, SD, SWS, SX, SOUT = 32, 36, 40, 44, 48, 52, 56
sT0, sT1, sT2, sT3 = 30, 31, 60, 61
sO1, sO2, sO3 = 62, 63, 64
sC = [None, 66, 68, 70]
sSCALE, sLOG2E = 72, 73
sEX = 74
sRETRY = 76
sHV = 78
sCQ = 80
sBLK, sSROW, sHAS = 81, 82, 83
sMK = 84
sOFF = 86
sTAGQ, sREG, sFQ = 87, 91, 77
def srd(r): return f"s[{r}:{r+3}]"

def gen(stamps=False, trace=0, kpre=0, W=9, nv=0, vrest=16, vburst=1, pvn=1, fastq=1, g2early=0, fld='nt', g1free=1, tlb=1, dbg=0, b1x=0, vint=None, g1b=0, xdlate=1, W0=None, eplain=1, prefetch=True, sleep_poll=0, b1=1, stf='sc1', ldf='sc1', wsbase=0, prio=0, fast=1, touch=0):
    a = Asm()
    ST = [92, 4, 6, 8, 10, 12, 14, 16, 18, 20]
    RT = {'G1': 88, 'G2': 89, 'G3': 90, 'G4': 90}
    class St:
        n = 0
    def stamp():
        if stamps:
            i = St.n; St.n += 1
            assert i < 10
            a(f"s_memrealtime s[{ST[i]}:{ST[i]+1}]")
    def dump_stamps(lab):
        if stamps and dbg:
            n = St.n
            base = {"main": 1, "aux": 10, "gath": 15}[lab]
            cnt = {"main": 9, "aux": 4, "gath": 1}[lab]
            a("s_mov_b64 exec, 1\ns_waitcnt lgkmcnt(0) vmcnt(0)")
            a("s_load_dwordx2 s[96:97], s[0:1], 72\ns_waitcnt lgkmcnt(0)")
            a("s_mov_b32 s40, s96\ns_mov_b32 s41, s97\ns_mov_b32 s42, 256\ns_mov_b32 s43, 0x20000\nv_mov_b32 v2, 0")
            a("s_not_b32 s98, s100\nv_mov_b32 v3, s98\nbuffer_atomic_umax v3, v2, s[40:43], 0 offen")
            for i in range(min(n, cnt)):
                a(f"v_mov_b32 v{30+i}, s{ST[i]}\nbuffer_atomic_umax v{30+i}, v2, s[40:43], 0 offen offset:{4*(base+i)}")
            a("s_waitcnt vmcnt(0)")
        elif stamps:
            n = St.n
            a("s_mov_b64 exec, 1\ns_waitcnt lgkmcnt(0) vmcnt(0)")
            a(f"s_lshl_b32 s{sT0}, s2, 3\ns_add_u32 s{sT0}, s{sT0}, s{sW}\ns_lshl_b32 s{sT0}, s{sT0}, 7\ns_add_u32 s{sT0}, s{sT0}, {STAMP0}\nv_mov_b32 v2, s{sT0}")
            a(f"v_mov_b32 v3, s100\nbuffer_store_dword v3, v2, {srd(SWS)}, 0 offen")
            a(f"v_mov_b32 v4, {n}\nbuffer_store_dword v4, v2, {srd(SWS)}, 0 offen offset:4")
            for i in range(n):
                a(f"v_mov_b32 v{30+i}, s{ST[i]}\nbuffer_store_dword v{30+i}, v2, {srd(SWS)}, 0 offen offset:{8+4*i}")
            for i, r in enumerate([88, 89, 90, sRETRY]):
                a(f"v_mov_b32 v{50+i}, s{r}\nbuffer_store_dword v{50+i}, v2, {srd(SWS)}, 0 offen offset:{64+4*i}")
        St.n = 0

    vL, vI, vG4, vC, vR8 = 1, 2, 3, 4, 5
    class Tr:
        n = 0
    def tr(level=1):
        if trace == level:
            a(f"s_memrealtime s[94:95]\ns_waitcnt lgkmcnt(0)\nv_writelane_b32 v27, s94, {Tr.n}")
            Tr.n += 1
    def mk(r, p, nrec, offreg=None):
        if offreg is not None:
            a(f"s_add_u32 s{r}, s{p}, s{offreg}\ns_addc_u32 s{r+1}, s{p+1}, 0")
        else:
            a(f"s_mov_b32 s{r}, s{p}\ns_mov_b32 s{r+1}, s{p+1}")
        a(f"s_mov_b32 s{r+2}, {nrec}\ns_mov_b32 s{r+3}, 0x20000")
    def mfma(D, A, B, first):
        a(f"v_mfma_f32_16x16x32_bf16 v[{D}:{D+3}], v[{A}:{A+3}], v[{B}:{B+3}], " + ("0" if first else f"v[{D}:{D+3}]"))
    def dpp(op, v, m, src=None):
        src = v if src is None else src
        a(f"v_{op}_dpp v{v}, v{src}, v{v} {m} row_mask:0xf bank_mask:0xf")
    def tagcheck(regs, tmp, mask=None, q=False):
        sT = sTAGQ if q else sTAG
        xs = []
        regs = list(regs)
        k = 0
        while regs:
            if len(regs) >= 2:
                a(f"v_bitop3_b32 v{tmp[k]}, v{regs[0]}, v{regs[1]}, s{sT} bitop3:0x7e"); regs = regs[2:]
            else:
                a(f"v_xor_b32 v{tmp[k]}, s{sT}, v{regs[0]}"); regs = regs[1:]
            xs.append(tmp[k]); k += 1
        while len(xs) > 1:
            if len(xs) >= 3:
                a(f"v_or3_b32 v{xs[0]}, v{xs[0]}, v{xs[1]}, v{xs[2]}"); xs = xs[3:] + [xs[0]]
            else:
                a(f"v_or_b32 v{xs[0]}, v{xs[0]}, v{xs[1]}"); xs = [xs[0]]
        if q:
            a(f"v_and_b32 v{tmp[7]}, 0xfffffff0, v{xs[0]}\nv_cmp_ne_u32 vcc, 0, v{tmp[7]}")
            return xs[0]
        a(f"v_cmp_ne_u32 vcc, 0, v{xs[0]}")
        if mask is not None: a(f"s_and_b64 vcc, vcc, s[{mask}:{mask+1}]")
    def poll(name, waitname, regs, tmp, reissue, mask=None, q=False, reissue2=None):
        ok, rt = a.newlabel("Lok"), a.newlabel("Lrt")
        if waitname: a.wait(waitname)
        else: a("s_waitcnt vmcnt(0)")
        xr = tagcheck(regs, tmp, mask, q)
        a(f"s_cbranch_vccz {ok}")
        a.label(rt)
        for txt in ([reissue] if reissue2 is None else [reissue, reissue2]):
            if sleep_poll: a(f"s_sleep {sleep_poll}")
            a(f"s_sub_u32 s{sRETRY}, s{sRETRY}, 1")
            a(txt)
            a("s_waitcnt vmcnt(0)")
            tagcheck(regs, tmp, mask, q)
            a(f"s_cbranch_vccz {ok}")
        a(f"s_cmp_gt_i32 s{sRETRY}, 0\ns_cbranch_scc1 {rt}")
        a.label(ok)
        if stamps: a(f"s_mov_b32 s{RT[name]}, s{sRETRY}")
        return xr
    def red8(vals, op="add_f32"):
        for m in ("quad_perm:[1,0,3,2]", "quad_perm:[2,3,0,1]", "row_half_mirror"):
            for v in vals: dpp(op, v, m)
    def get_tag():
        if wsbase:
            a(f"s_add_u32 s24, s24, {wsbase:#x}\ns_addc_u32 s25, s25, 0")
        a(f"s_load_dword s{sTAG}, s[24:25], 0")
    def fin_tag():
        a(f"s_getreg_b32 s{sTAGQ}, hwreg(HW_REG_XCC_ID, 0, 4)")
        a(f"s_waitcnt lgkmcnt(0)\ns_add_u32 s{sTAG}, s{sTAG}, {TAGC:#x}\ns_and_b32 s{sREG}, s{sTAG}, 0xfffffff0\ns_or_b32 s{sTAGQ}, s{sTAGQ}, s{sREG}")
    ws_lim = WSLIM if not stamps else 0x240000

    a("s_cmp_ge_u32 s2, 256\ns_cbranch_scc1 L_end")
    if stamps: a("s_memrealtime s[100:101]")
    a("s_load_dwordx16 s[4:19], s[0:1], 0")
    a("s_load_dwordx4 s[20:23], s[0:1], 64")
    a("s_load_dwordx2 s[24:25], s[0:1], 80")
    a(f"v_lshrrev_b32 v{vI}, 6, v0\nv_and_b32 v{vL}, 63, v0\nv_readfirstlane_b32 s{sW}, v{vI}")
    a(f"s_and_b32 s{sT0}, s2, 7\ns_lshr_b32 s{sT1}, s2, 3\ns_lshl_b32 s{sG}, s{sT0}, 2\ns_and_b32 s{sT2}, s{sT1}, 3\ns_add_u32 s{sG}, s{sG}, s{sT2}\ns_lshr_b32 s{sS}, s2, 5")
    a(f"v_and_b32 v{vI}, 15, v{vL}\nv_lshrrev_b32 v{vG4}, 4, v{vL}")
    a(f"s_mov_b32 s{sRETRY}, 100000")
    if stamps: a(f"s_mov_b32 s88, 100000\ns_mov_b32 s89, 100000\ns_mov_b32 s90, 100000")
    a(f"s_cmp_ge_u32 s{sW}, 4\ns_cbranch_scc1 L_aux")

    vKo, vVo, vWOo, vW2o, vGq, vGm, vGh, vRAW, vSL = 6, 7, 8, 9, 10, 11, 12, 13, 14
    vQA = [15, 16, 17, 18]
    vOUT = 19
    vM = [20, 21, 22, 23]
    vXD = 24
    vMX = 25
    vG1 = 26
    vK, vV, vW2, vWO, vBq, vD = 28, 92, 156, 164, 180, 196
    vB0, vB1 = 212, 216
    vGa, vPP = 220, 232
    vF = list(range(236, 244))
    t0, t1, t2, t3 = 244, 245, 246, 247
    vDo, vDy = 200, 204
    SK, SV, SWO, SW2 = SA, SB, SC_, SD
    a.vm = []
    a(f"v_lshrrev_b32 v{vKo}, 2, v{vI}\nv_and_b32 v{t0}, 3, v{vI}\nv_lshlrev_b32 v{vKo}, 12, v{vKo}\nv_lshl_add_u32 v{t0}, v{vG4}, 2, v{t0}\nv_lshl_add_u32 v{vKo}, v{t0}, 4, v{vKo}")
    a(f"s_lshl_b32 s{sT0}, s{sG}, 21\ns_lshl_b32 s{sT1}, s{sS}, 16\ns_add_u32 s{sT0}, s{sT0}, s{sT1}\ns_lshl_b32 s{sT1}, s{sW}, 10\ns_add_u32 s{sT0}, s{sT0}, s{sT1}\ns_add_u32 s{sOFF}, s{sT0}, 0x180000")
    a(f"s_mov_b32 s{sO1}, 16384\ns_mov_b32 s{sO2}, 32768\ns_mov_b32 s{sO3}, 49152")
    a(f"v_lshlrev_b32 v{vVo}, 12, v{vG4}\nv_lshl_add_u32 v{vVo}, v{vI}, 4, v{vVo}")
    a("s_waitcnt lgkmcnt(0)")
    mk(SK, 6, 62464, sOFF)
    so4 = ["0", f"s{sO1}", f"s{sO2}", f"s{sO3}"]
    def ldK(t): a.vmem(f"K{t}", f"buffer_load_dwordx4 v[{vK+4*t}:{vK+4*t+3}], v{vKo}, {srd(SK)}, {so4[t%4]} offen offset:{(t//4)*256} nt")
    def ldV(t): a.vmem(f"V{t}", f"buffer_load_dwordx4 v[{vV+4*t}:{vV+4*t+3}], v{vVo}, {srd(SV)}, {so4[t%4]} offen offset:{(t//4)*256} nt")
    def ldWO(t): a.vmem(f"wo{t}", f"buffer_load_dwordx4 v[{vWO+4*t}:{vWO+4*t+3}], v{vWOo}, {srd(SWO)}, 0 offen offset:{t*1024} nt")
    def ldW2(t): a.vmem(f"w2{t}", f"buffer_load_dwordx4 v[{vW2+4*t}:{vW2+4*t+3}], v{vW2o}, {srd(SW2)}, 0 offen offset:{t*1024} nt")
    g2txt = f"buffer_load_dwordx4 v[{vGa+8}:{vGa+11}], v{vGh}, {srd(SWS)}, 0 offen {ldf}"
    def ldG2(): a.vmem("G2", g2txt)
    def g1(so, fl):
        return (f"buffer_load_dwordx4 v[{vGa}:{vGa+3}], v{vG1}, {srd(SWS)}, {so} offen {fl}\n"
                f"buffer_load_dwordx4 v[{vGa+4}:{vGa+7}], v{vG1}, {srd(SWS)}, {so} offen offset:16 {fl}")
    g1txt = g1(f"s{sFQ}", fld) if fastq else g1("0", ldf)
    def ldG1():
        t_ = g1txt.split("\n")
        a.vmem("G1a", t_[0]); a.vmem("G1b", t_[1])
    queue = [("V", t) for t in range(nv)] + [("K", t) for t in range(16)] + [("G1", 0)] + ([("G2", 0)] if g2early else []) + [("V", t) for t in range(nv, 16)] + ([] if g2early else [("G2", 0)]) + [("W2", 0), ("W2", 1)] + [("WO", t) for t in range(4)]
    order = [(f"{k}{t}" if k in "KV" else None) for k, t in queue]
    def nxt(n=1):
        for _ in range(n):
            if not queue: return
            k, t = queue.pop(0)
            {"K": lambda: ldK(t), "V": lambda: ldV(t), "G1": ldG1, "G2": ldG2, "W2": lambda: ldW2(t), "WO": lambda: ldWO(t)}[k]()
    mk(SV, 8, 62464, sOFF)
    nxt(kpre)
    get_tag()
    stamp()
    a(f"v_and_b32 v{vC}, 7, v{vL}\nv_lshrrev_b32 v{vR8}, 3, v{vL}")
    a(f"s_lshr_b32 s{sCQ}, s{sG}, 1")
    a(f"v_lshlrev_b32 v{vWOo}, 12, v{vR8}\nv_lshl_add_u32 v{vWOo}, v{vC}, 4, v{vWOo}")
    a(f"v_lshlrev_b32 v{vW2o}, 11, v{vR8}\nv_lshl_add_u32 v{vW2o}, v{vC}, 4, v{vW2o}")
    a(f"s_lshl_b32 s{sT0}, s{sG}, 7\ns_lshl_b32 s{sT1}, s{sW}, 5\ns_add_u32 s{sT0}, s{sT0}, s{sT1}\ns_lshl_b32 s{sT0}, s{sT0}, 10\ns_lshl_b32 s{sT1}, s{sS}, 7\ns_add_u32 s{sT0}, s{sT0}, s{sT1}")
    mk(SWO, 12, 31 * 1024 + 128, sT0)
    a(f"s_mul_i32 s{sT0}, s{sCQ}, 86\ns_and_b32 s{sT1}, s{sG}, 1\ns_mul_i32 s{sT2}, s{sT1}, 44\ns_add_u32 s{sT0}, s{sT0}, s{sT2}\ns_mul_i32 s{sT2}, s{sW}, 12\ns_add_u32 s{sT0}, s{sT0}, s{sT2}")
    a(f"s_lshl_b32 s{sT1}, s{sT1}, 1\ns_sub_u32 s{sT1}, 44, s{sT1}\ns_sub_u32 s{sT1}, s{sT1}, s{sT2}\ns_min_u32 s{sT3}, s{sT1}, 12")
    a(f"v_mul_u32_u24 v{vGh}, {HP_STRIDE}, v{vC}\nv_lshl_add_u32 v{vGh}, v{vR8}, 4, v{vGh}\ns_lshl_b32 s{sT1}, s{sT0}, 3\ns_add_u32 s{sT1}, s{sT1}, {HP0}\nv_add_u32 v{vGh}, s{sT1}, v{vGh}")
    a(f"v_lshlrev_b32 v{t0}, 1, v{vR8}\nv_cmp_gt_u32 s[{sHV}:{sHV+1}], s{sT3}, v{t0}\nv_mov_b32 v{t1}, {OOB}\nv_cndmask_b32 v{vGh}, v{t1}, v{vGh}, s[{sHV}:{sHV+1}]")
    a(f"s_lshl_b32 s{sT0}, s{sT0}, 10\ns_lshl_b32 s{sT1}, s{sS}, 7\ns_add_u32 s{sT0}, s{sT0}, s{sT1}")
    a(f"s_add_u32 s{SW2}, s18, s{sT0}\ns_addc_u32 s{SW2+1}, s19, 0\ns_sub_u32 s{sT3}, s{sT3}, 1\ns_lshl_b32 s{sT3}, s{sT3}, 10\ns_add_u32 s{SW2+2}, s{sT3}, 128\ns_mov_b32 s{SW2+3}, 0x20000")
    mk(SWS, 24, ws_lim); mk(SX, 4, 1024); mk(SOUT, 20, 1024)
    a(f"s_lshl_b32 s{sT0}, s{sS}, 7\ns_lshl_b32 s{sT1}, s{sCQ}, 3\ns_add_u32 s{sT0}, s{sT0}, s{sT1}\nv_and_b32 v{vOUT}, 1, v{vL}\nv_lshlrev_b32 v{vOUT}, 2, v{vOUT}\nv_add_u32 v{vOUT}, s{sT0}, v{vOUT}")
    for c in range(1, 4):
        m = 0x11111111 << c
        a(f"s_mov_b32 s{sC[c]}, {m:#x}\ns_mov_b32 s{sC[c]+1}, {m:#x}")
    a(f"s_mov_b32 s{sSCALE}, 0x3db504f3\ns_mov_b32 s{sLOG2E}, 0x3fb8aa3b\ns_mov_b32 s{sFQ}, {FASTQ if fastq else 0:#x}")
    a(f"v_and_b32 v{t0}, 1, v{vL}\nv_lshlrev_b32 v{t0}, 4, v{t0}\nv_mov_b32 v{t1}, 0xffff\nv_lshlrev_b32 v{t0}, v{t0}, v{t1}")
    for w in range(4):
        m = 0x03030303 << (2 * w)
        a(f"s_mov_b32 s{sMK}, {m:#x}\ns_mov_b32 s{sMK+1}, {m:#x}\nv_cndmask_b32 v{vM[w]}, 0, v{t0}, s[{sMK}:{sMK+1}]")
    a(f"s_lshl_b32 s{sT0}, s{sG}, 13\ns_lshl_b32 s{sT1}, s{sW}, 8\ns_add_u32 s{sT0}, s{sT0}, s{sT1}\ns_add_u32 s{sT0}, s{sT0}, {OP0}")
    a(f"v_lshlrev_b32 v{vGq}, 10, v{vC}\nv_lshl_add_u32 v{vGq}, v{vR8}, 5, v{vGq}\nv_add_u32 v{vGq}, s{sT0}, v{vGq}\nv_subrev_u32 v{vG1}, {OP0-QP0}, v{vGq}")
    a(f"s_lshl_b32 s{sT0}, s{sG}, 7\ns_add_u32 s{sT0}, s{sT0}, {ML0}\nv_lshlrev_b32 v{vGm}, 4, v{vC}\nv_add_u32 v{vGm}, s{sT0}, v{vGm}")
    a(f"s_lshl_b32 s{sT0}, s{sW}, 10\nv_lshlrev_b32 v{vRAW}, 4, v{vL}\nv_add_u32 v{vRAW}, s{sT0}, v{vRAW}")
    a(f"s_lshl_b32 s{sT0}, s{sW}, 4\nv_lshlrev_b32 v{vSL}, 2, v{vG4}\nv_add_u32 v{vSL}, s{sT0}, v{vSL}")
    a(f"v_and_b32 v{t0}, 3, v{vI}\nv_lshl_add_u32 v{t0}, v{vG4}, 2, v{t0}\nv_lshlrev_b32 v{t0}, 4, v{t0}\nv_add_u32 v{t0}, {L_QB}, v{t0}\nv_mov_b32 v{t1}, {L_ZB}")
    for tt in range(4):
        m = 0x000F000F << (4 * tt)
        a(f"s_mov_b32 s{sMK}, {m:#x}\ns_mov_b32 s{sMK+1}, {m:#x}\nv_cndmask_b32 v{vQA[tt]}, v{t1}, v{t0}, s[{sMK}:{sMK+1}]")
    if not xdlate: a.vmem("xd", f"buffer_load_dword v{vXD}, v{vOUT}, {srd(SX)}, 0 offen")
    stamp()
    if b1: a("s_barrier")
    npre = nv + 16 + 1 + vrest
    def nxt_free():
        n = 1
        nxt()
        while g1free and queue and queue[0][0] in ("G1",):
            nxt(); n += 1
        return n
    issued = kpre
    w0 = W if W0 is None else W0
    while issued < min(w0, npre): issued += nxt_free()
    wi = 0
    while issued < npre:
        while order[wi] is None: wi += 1
        a.wait(order[wi]); wi += 1
        tr()
        issued += nxt_free()
        if issued < npre and issued - wi < W: issued += nxt_free()
    fin_tag()
    a.wait("K15")
    tr(2)
    stamp()
    xr = poll("G1", "G1b", [vGa + 1, vGa + 3, vGa + 5, vGa + 7], vF, g1("0", ldf), q=True, reissue2=(g1txt if fastq else None))
    tr(2)
    a(f"v_cmp_ne_u32 vcc, 0, v{xr}\ns_cmp_eq_u64 vcc, 0\ns_cselect_b32 s{sREG}, {FASTD if fast else 0}, 0")
    nxt(vint[0] if vint else vburst)
    if xdlate: a.vmem("xd", f"buffer_load_dword v{vXD}, v{vOUT}, {srd(SX)}, 0 offen")
    qv = [vGa, vGa + 2, vGa + 4, vGa + 6]
    red8(qv)
    a(f"v_cvt_pk_bf16_f32 v{vGa}, v{qv[0]}, v{qv[1]}\nv_cvt_pk_bf16_f32 v{vGa+1}, v{qv[2]}, v{qv[3]}")
    a(f"s_lshl_b32 s{sT0}, s{sW}, 6\nv_lshlrev_b32 v{t0}, 3, v{vR8}\nv_add_u32 v{t0}, s{sT0}, v{t0}")
    a(f"s_mov_b64 s[{sEX}:{sEX+1}], exec\ns_mov_b32 exec_lo, 0x01010101\ns_mov_b32 exec_hi, 0x01010101")
    a(f"ds_write_b64 v{t0}, v[{vGa}:{vGa+1}] offset:{L_QB}")
    a(f"s_mov_b64 exec, s[{sEX}:{sEX+1}]")
    a(f"v_add_u32 v{vGq}, s{sREG}, v{vGq}\nv_add_u32 v{vGm}, s{sREG}, v{vGm}")
    tr(2)
    a("s_waitcnt lgkmcnt(0)\ns_barrier")
    tr(2)
    for tt in range(4): a(f"ds_read_b128 v[{vBq+4*tt}:{vBq+4*tt+3}], v{vQA[tt]}")
    nxt(vint[1] if vint else 1)
    for tt in range(4):
        a(f"s_waitcnt lgkmcnt({3-tt})")
        for u in range(4):
            mfma(vD + 4 * u, vK + 4 * (4 * u + tt), vBq + 4 * tt, tt == 0)
    tr(2)
    nxt(vint[2] if vint else 1)
    sc = [vF[0], vF[1], vF[2], vF[3]]
    for u in range(4): a(f"v_cndmask_b32 v{sc[u]}, v{vD+4*u}, v{vD+4*u+1}, s[{sC[1]}:{sC[1]+1}]")
    for u in range(4): a(f"v_cndmask_b32 v{sc[u]}, v{sc[u]}, v{vD+4*u+2}, s[{sC[2]}:{sC[2]+1}]")
    for u in range(4): a(f"v_cndmask_b32 v{sc[u]}, v{sc[u]}, v{vD+4*u+3}, s[{sC[3]}:{sC[3]+1}]")
    for m in ("quad_perm:[1,0,3,2]", "quad_perm:[2,3,0,1]"):
        for u in range(4): dpp("add_f32", sc[u], m)
    for u in (0, 2):
        a(f"v_cvt_pk_bf16_f32 v{t0+u//2}, v{sc[u]}, v{sc[u+1]}")
    for u in (0, 2):
        a(f"v_lshlrev_b32 v{sc[u]}, 16, v{t0+u//2}\nv_and_b32 v{sc[u+1]}, 0xffff0000, v{t0+u//2}")
    for u in range(4): a(f"v_mul_f32 v{sc[u]}, s{sSCALE}, v{sc[u]}")
    for u in (0, 2):
        a(f"v_cvt_pk_bf16_f32 v{t0+u//2}, v{sc[u]}, v{sc[u+1]}")
    for u in (0, 2):
        a(f"v_lshlrev_b32 v{sc[u]}, 16, v{t0+u//2}\nv_and_b32 v{sc[u+1]}, 0xffff0000, v{t0+u//2}")
    a(f"v_max3_f32 v{t0}, v{sc[0]}, v{sc[1]}, v{sc[2]}\nv_max_f32 v{t0}, v{t0}, v{sc[3]}")
    for m in ("row_ror:4", "row_ror:8"): dpp("max_f32", t0, m)
    a(f"ds_write_b32 v{vSL}, v{t0} offset:{L_MX}")
    nxt(vint[3] if vint else 1)
    a(f"v_mov_b32 v{t1}, 0")
    tr(2)
    a("s_waitcnt lgkmcnt(0)\ns_barrier")
    tr(2)
    mx = vD
    for i in range(4): a(f"ds_read_b128 v[{mx+4*i}:{mx+4*i+3}], v{t1} offset:{L_MX+16*i}")
    if vint: nxt(vint[4])
    a("s_waitcnt lgkmcnt(0)")
    a(f"v_max3_f32 v{mx}, v{mx}, v{mx+1}, v{mx+2}\nv_max3_f32 v{mx+3}, v{mx+3}, v{mx+4}, v{mx+5}\nv_max3_f32 v{mx+6}, v{mx+6}, v{mx+7}, v{mx+8}\nv_max3_f32 v{mx+9}, v{mx+9}, v{mx+10}, v{mx+11}\nv_max3_f32 v{mx+12}, v{mx+12}, v{mx+13}, v{mx+14}")
    a(f"v_max3_f32 v{mx}, v{mx}, v{mx+3}, v{mx+6}\nv_max3_f32 v{mx+9}, v{mx+9}, v{mx+12}, v{mx+15}\nv_max_f32 v{vMX}, v{mx}, v{mx+9}")
    for u in range(4): a(f"v_sub_f32 v{sc[u]}, v{sc[u]}, v{vMX}")
    for u in range(4): a(f"v_mul_f32 v{sc[u]}, s{sLOG2E}, v{sc[u]}")
    for u in range(4): a(f"v_exp_f32 v{sc[u]}, v{sc[u]}")
    for u in range(4): a(f"v_cvt_pk_bf16_f32 v{vPP+u}, v{sc[u]}, v{sc[u]}")
    a(f"v_add_f32 v{t0}, v{sc[0]}, v{sc[1]}\nv_add_f32 v{t1}, v{sc[2]}, v{sc[3]}\nv_add_f32 v{t0}, v{t0}, v{t1}")
    for m in ("row_ror:4", "row_ror:8"): dpp("add_f32", t0, m)
    a(f"ds_write_b32 v{vSL}, v{t0} offset:{L_LS}")
    a(f"v_mov_b32 v{t1}, 0\nds_write_b32 v{t1}, v{vMX} offset:{L_FLAG+4}")
    tr(2)
    stamp()
    Bs = [vB0, vB1]
    def build(dst, pp, d=None):
        for w in range(4):
            if d is None: a(f"v_and_b32 v{dst+w}, v{pp}, v{vM[w]}")
            else: a(f"v_and_b32_dpp v{dst+w}, v{pp}, v{vM[w]} {d} row_mask:0xf bank_mask:0xf")
    build(Bs[0], vPP, "row_newbcast:0")
    for t in range(16):
        if t + 1 < 16: build(Bs[(t + 1) % 2], vPP + (t + 1) // 4, f"row_newbcast:{4*((t+1)%4)}")
        a.wait(f"V{t}"); tr(); mfma(vDo, vV + 4 * t, Bs[t % 2], t == 0); nxt(pvn)
    nxt(10)
    tr(2)
    stamp()
    a(f"ds_write_b128 v{vRAW}, v[{vDo}:{vDo+3}] offset:{L_RO}")
    a("s_waitcnt lgkmcnt(0)\ns_barrier")
    tr(2)
    poll("G2", "G2", [vGa + 9, vGa + 11], vF, g2txt, mask=sHV)
    tr(2)
    hv = [vGa + 8, vGa + 10]
    red8(hv)
    a(f"v_cvt_pk_bf16_f32 v{t0}, v{hv[0]}, v{hv[1]}\nv_lshlrev_b32 v{hv[0]}, 16, v{t0}\nv_and_b32 v{hv[1]}, 0xffff0000, v{t0}")
    ev = [vF[0], vF[1]]
    for j in range(2): a(f"v_mul_f32 v{ev[j]}, s{sLOG2E}, v{hv[j]}")
    for j in range(2): a(f"v_exp_f32 v{ev[j]}, -v{ev[j]}")
    for j in range(2): a(f"v_add_f32 v{ev[j]}, 1.0, v{ev[j]}")
    for j in range(2): a(f"v_rcp_f32 v{ev[j]}, v{ev[j]}")
    for j in range(2): a(f"v_mul_f32 v{hv[j]}, v{hv[j]}, v{ev[j]}")
    for j in range(2): a(f"v_cvt_pk_bf16_f32 v{hv[j]}, v{hv[j]}, v{hv[j]}")
    for j in range(2): a(f"v_cndmask_b32 v{hv[j]}, 0, v{hv[j]}, s[{sHV}:{sHV+1}]")
    build(Bs[0], hv[0]); build(Bs[1], hv[1])
    def g3(fl):
        return (f"buffer_load_dwordx4 v[{vGa}:{vGa+3}], v{vGq}, {srd(SWS)}, 0 offen {fl}\n"
                f"buffer_load_dwordx4 v[{vGa+4}:{vGa+7}], v{vGq}, {srd(SWS)}, 0 offen offset:16 {fl}\n"
                f"buffer_load_dwordx4 v[{vGa+8}:{vGa+11}], v{vGm}, {srd(SWS)}, 0 offen {fl}")
    a.wait("w20"); mfma(vDy, vW2, Bs[0], True)
    a.wait("w21"); mfma(vDy, vW2 + 4, Bs[1], False)
    tr(2)
    stamp()
    g3regs = [vGa + 1, vGa + 3, vGa + 5, vGa + 7, vGa + 9, vGa + 11]
    if fast:
        a(f"s_cmp_eq_u32 s{sREG}, 0\ns_cbranch_scc1 L_g3slow")
        a(g3(fld))
        poll("G3", None, g3regs, vF, g3(fld))
        a("s_branch L_g3done")
        a.label("L_g3slow")
    a(g3(ldf))
    poll("G3", None, g3regs, vF, g3(ldf))
    a.label("L_g3done")
    tr(2)
    stamp()
    vm_, vl_ = vGa + 8, vGa + 10
    a(f"v_mov_b32 v{t0}, v{vm_}")
    red8([t0], "max_f32")
    a(f"v_sub_f32 v{t0}, v{vm_}, v{t0}\nv_mul_f32 v{t0}, s{sLOG2E}, v{t0}\nv_exp_f32 v{t0}, v{t0}")
    ov = [vGa, vGa + 2, vGa + 4, vGa + 6]
    a(f"v_mul_f32 v{vl_}, v{vl_}, v{t0}")
    for v in ov: a(f"v_mul_f32 v{v}, v{v}, v{t0}")
    red8([vl_] + ov)
    a(f"v_rcp_f32 v{vl_}, v{vl_}")
    for v in ov: a(f"v_mul_f32 v{v}, v{v}, v{vl_}")
    for v in ov: a(f"v_cvt_pk_bf16_f32 v{v}, v{v}, v{v}")
    build(Bs[0], ov[0])
    for t in range(4):
        if t + 1 < 4: build(Bs[(t + 1) % 2], ov[t + 1])
        mfma(vDy, vWO + 4 * t, Bs[t % 2], False)
    a(f"ds_write_b128 v{vRAW}, v[{vDy}:{vDy+3}] offset:{L_RY}")
    tr(2)
    a("s_waitcnt lgkmcnt(0)\ns_barrier")
    tr(2)
    stamp()
    lfin = "L_main_fin"
    a(f"s_and_b32 s{sT0}, s{sG}, 1\ns_or_b32 s{sT0}, s{sT0}, s{sW}\ns_cmp_eq_u32 s{sT0}, 0\ns_cbranch_scc0 {lfin}")
    a(f"s_lshl_b32 s{sT0}, s{sS}, 14\ns_lshl_b32 s{sT1}, s{sCQ}, 5\ns_add_u32 s{sT0}, s{sT0}, s{sT1}\ns_add_u32 s{sT0}, s{sT0}, {YP0}")
    a(f"v_lshrrev_b32 v{t0}, 1, v{vL}\nv_lshlrev_b32 v{t0}, 9, v{t0}\nv_and_b32 v{t1}, 1, v{vL}\nv_lshl_add_u32 v{t0}, v{t1}, 4, v{t0}\nv_add_u32 v{vGq}, s{sT0}, v{t0}")
    g4txt = f"buffer_load_dwordx4 v[{vGa}:{vGa+3}], v{vGq}, {srd(SWS)}, 0 offen {ldf}"
    a(g4txt)
    a(f"v_lshlrev_b32 v{t2}, 16, v{vXD}\nv_and_b32 v{t3}, 0xffff0000, v{vXD}")
    poll("G4", None, [vGa + 1, vGa + 3], vF, g4txt)
    yv = [vGa, vGa + 2]
    for m in ("quad_perm:[2,3,0,1]", "row_ror:4", "row_ror:8"):
        for v in yv: dpp("add_f32", v, m)
    for sw in ("v_permlane16_swap_b32", "v_permlane32_swap_b32"):
        a(f"v_mov_b32 v{vF[0]}, v{yv[0]}\nv_mov_b32 v{vF[1]}, v{yv[1]}")
        a(f"{sw} v{yv[0]}, v{vF[0]}\n{sw} v{yv[1]}, v{vF[1]}")
        a(f"v_add_f32 v{yv[0]}, v{yv[0]}, v{vF[0]}\nv_add_f32 v{yv[1]}, v{yv[1]}, v{vF[1]}")
    a(f"v_add_f32 v{yv[0]}, v{yv[0]}, v{t2}\nv_add_f32 v{yv[1]}, v{yv[1]}, v{t3}\nv_cvt_pk_bf16_f32 v{yv[0]}, v{yv[0]}, v{yv[1]}")
    a("s_mov_b64 exec, 3")
    a(f"buffer_store_dword v{yv[0]}, v{vOUT}, {srd(SOUT)}, 0 offen")
    a(f"s_or_b32 s{sT0}, s{sS}, s{sG}\ns_cmp_eq_u32 s{sT0}, 0\ns_cbranch_scc0 {lfin}")
    a(f"s_mov_b64 exec, 1\nv_mov_b32 v{t0}, 0\nv_mov_b32 v{t1}, s{sTAG}\nbuffer_store_dword v{t1}, v{t0}, {srd(SWS)}, 0 offen" + ("" if eplain else " " + stf))
    a.label(lfin)
    stamp()
    if trace:
        a(f"s_mov_b64 exec, -1\ns_lshl_b32 s{sT0}, s2, 2\ns_add_u32 s{sT0}, s{sT0}, s{sW}\ns_lshl_b32 s{sT0}, s{sT0}, 8\ns_add_u32 s{sT0}, s{sT0}, 0x1C0000\nv_lshlrev_b32 v2, 2, v{vL}\nv_add_u32 v2, s{sT0}, v2")
        a(f"buffer_store_dword v27, v2, {srd(SWS)}, 0 offen")
    dump_stamps("main")
    a("s_endpgm")

    a.label("L_aux")
    if prio: a(f"s_setprio {prio}")
    a(f"s_cmp_eq_u32 s{sW}, 6\ns_cbranch_scc1 L_gath")
    vXA = 8
    vF = list(range(12, 20)); vE = list(range(20, 28))
    vSel = [[28 + 2 * w + p for p in range(2)] for w in range(4)]
    vPair = 36
    vB = [44, 48]
    vDp = 52
    vWt = 64
    vOff, vRd, vPub, vVal = 6, 7, 56, 60
    u0, u1, u2, u3 = 57, 58, 59, 128
    vMU, vSD, vR = 129, 130, 131
    SWt = SA
    lw1, lld = "L_w1_addr", "L_aux_ld"
    a(f"v_and_b32 v{vC}, 7, v{vL}\nv_lshrrev_b32 v{vR8}, 3, v{vL}\nv_lshlrev_b32 v{u0}, 4, v{vL}")
    a(f"s_cmp_eq_u32 s{sW}, 5\ns_cbranch_scc1 {lw1}")
    a(f"v_lshlrev_b32 v{vOff}, 17, v{vG4}\nv_lshl_add_u32 v{vOff}, v{vI}, 4, v{vOff}")
    a(f"s_lshl_b32 s{sT0}, s{sS}, 19\ns_lshl_b32 s{sT1}, s{sG}, 8\ns_add_u32 s{sOFF}, s{sT0}, s{sT1}")
    a("s_waitcnt lgkmcnt(0)")
    mk(SX, 4, 1024)
    a.vm = []
    a.vmem("xa", f"buffer_load_dwordx4 v[{vXA}:{vXA+3}], v{u0}, {srd(SX)}, 0 offen")
    mk(SWt, 10, 63 * 8192 + 256, sOFF)
    a(f"s_mov_b32 s{sO1}, 0")
    for t in range(16):
        a.vmem(f"w{t}", f"buffer_load_dwordx4 v[{vWt+4*t}:{vWt+4*t+3}], v{vOff}, {srd(SWt)}, s{sO1} offen nt")
        if t < 15: a(f"s_add_u32 s{sO1}, s{sO1}, 8192")
    vm_wq = list(a.vm)
    a(f"s_branch {lld}")
    a.label(lw1)
    a(f"s_and_b32 s{sT0}, s2, 7\ns_lshr_b32 s{sT1}, s2, 3\ns_mul_i32 s{sT0}, s{sT0}, 22\ns_add_u32 s{sT0}, s{sT0}, s{sT1}\ns_lshr_b32 s{sBLK}, s{sT0}, 3\ns_and_b32 s{sSROW}, s{sT0}, 7\ns_cmp_lt_u32 s{sT1}, 22\ns_cselect_b32 s{sHAS}, 1, 0")
    a(f"v_mul_u32_u24 v{vOff}, 22016, v{vR8}\nv_lshl_add_u32 v{vOff}, v{vC}, 4, v{vOff}")
    a(f"s_cmp_eq_u32 s{sBLK}, 21\ns_cselect_b32 s{sT0}, 4, 8\nv_cmp_le_u32 vcc, s{sT0}, v{vC}\nv_mov_b32 v{u1}, {OOB}\nv_cndmask_b32 v{vOff}, v{vOff}, v{u1}, vcc")
    a(f"s_mul_i32 s{sT0}, s{sSROW}, {64*2752}\ns_lshl_b32 s{sT1}, s{sBLK}, 7\ns_add_u32 s{sOFF}, s{sT0}, s{sT1}")
    a("s_waitcnt lgkmcnt(0)")
    mk(SX, 4, 1024)
    a(f"buffer_load_dwordx4 v[{vXA}:{vXA+3}], v{u0}, {srd(SX)}, 0 offen")
    a(f"s_add_u32 s{SWt}, s16, s{sOFF}\ns_addc_u32 s{SWt+1}, s17, 0\ns_sub_u32 s{sT0}, 1409024, s{sOFF}\ns_cmp_eq_u32 s{sHAS}, 1\ns_cselect_b32 s{SWt+2}, s{sT0}, 0\ns_mov_b32 s{SWt+3}, 0x20000")
    a(f"s_mov_b32 s{sO1}, 0")
    for t in range(8):
        a(f"buffer_load_dwordx4 v[{vWt+4*t}:{vWt+4*t+3}], v{vOff}, {srd(SWt)}, s{sO1} offen nt")
        if t < 7: a(f"s_add_u32 s{sO1}, s{sO1}, 2752")
    a.label(lld)
    mk(SWS, 24, ws_lim)
    stamp()
    if b1 and not b1x: a("s_barrier")
    a(f"v_mov_b32 v{u1}, 0x0c0c0100\nv_mov_b32 v{u2}, 0x01000c0c\ns_mov_b32 s{sMK}, 0xaaaaaaaa\ns_mov_b32 s{sMK+1}, 0xaaaaaaaa\nv_cndmask_b32 v{vE[0]}, v{u1}, v{u2}, s[{sMK}:{sMK+1}]")
    a(f"v_mov_b32 v{u1}, 0x0c0c0302\nv_mov_b32 v{u2}, 0x03020c0c\nv_cndmask_b32 v{vE[1]}, v{u1}, v{u2}, s[{sMK}:{sMK+1}]\nv_mov_b32 v{u1}, 0x0c0c0c0c")
    for w in range(4):
        m = 0x03030303 << (2 * w)
        a(f"s_mov_b32 s{sMK}, {m:#x}\ns_mov_b32 s{sMK+1}, {m:#x}")
        for p in range(2): a(f"v_cndmask_b32 v{vSel[w][p]}, v{u1}, v{vE[p]}, s[{sMK}:{sMK+1}]")
    lx1, lx2 = a.newlabel("Lx"), a.newlabel("Lx")
    a(f"s_cmp_eq_u32 s{sW}, 5\ns_cbranch_scc1 {lx1}\ns_waitcnt vmcnt(16)\ns_branch {lx2}")
    a.label(lx1); a("s_waitcnt vmcnt(8)"); a.label(lx2)
    if b1 and b1x == 1: a("s_barrier")
    for j in range(4):
        a(f"v_lshlrev_b32 v{vF[2*j]}, 16, v{vXA+j}\nv_and_b32 v{vF[2*j+1]}, 0xffff0000, v{vXA+j}")
    def wave_sum(v, sdst):
        for m in ("quad_perm:[1,0,3,2]", "quad_perm:[2,3,0,1]", "row_half_mirror", "row_mirror"): dpp("add_f32", v, m)
        a(f"v_add_f32_dpp v{v}, v{v}, v{v} row_bcast:15 row_mask:0xa bank_mask:0xf")
        a(f"v_add_f32_dpp v{v}, v{v}, v{v} row_bcast:31 row_mask:0xc bank_mask:0xf")
        a(f"v_readlane_b32 s{sdst}, v{v}, 63")
    a(f"v_add_f32 v{u0}, v{vF[0]}, v{vF[1]}\nv_add_f32 v{u1}, v{vF[2]}, v{vF[3]}\nv_add_f32 v{u2}, v{vF[4]}, v{vF[5]}\nv_add_f32 v{u3}, v{vF[6]}, v{vF[7]}")
    a(f"v_add_f32 v{u0}, v{u0}, v{u1}\nv_add_f32 v{u2}, v{u2}, v{u3}\nv_add_f32 v{u0}, v{u0}, v{u2}")
    wave_sum(u0, sT0)
    a(f"v_mov_b32 v{u1}, 0x3b000000\nv_mul_f32 v{vMU}, s{sT0}, v{u1}")
    for j in range(8): a(f"v_sub_f32 v{vE[j]}, v{vF[j]}, v{vMU}")
    a(f"v_mul_f32 v{u0}, v{vE[0]}, v{vE[0]}\nv_mul_f32 v{u2}, v{vE[1]}, v{vE[1]}")
    for j in range(2, 8, 2): a(f"v_fmac_f32 v{u0}, v{vE[j]}, v{vE[j]}\nv_fmac_f32 v{u2}, v{vE[j+1]}, v{vE[j+1]}")
    a(f"v_add_f32 v{u0}, v{u0}, v{u2}")
    def rbf(v): a(f"v_cvt_pk_bf16_f32 v{v}, v{v}, v{v}\nv_and_b32 v{v}, 0xffff0000, v{v}")
    rbf(vMU)
    for j in range(8): a(f"v_sub_f32 v{vF[j]}, v{vF[j]}, v{vMU}")
    wave_sum(u0, sT0)
    for j in range(0, 8, 2): a(f"v_cvt_pk_bf16_f32 v{vE[j//2]}, v{vF[j]}, v{vF[j+1]}")
    a(f"v_mul_f32 v{u0}, s{sT0}, v{u1}")
    for j in range(0, 8, 2): a(f"v_lshlrev_b32 v{vF[j]}, 16, v{vE[j//2]}\nv_and_b32 v{vF[j+1]}, 0xffff0000, v{vE[j//2]}")
    rbf(u0)
    a(f"v_add_f32 v{u0}, 0x3727c5ac, v{u0}")
    rbf(u0)
    a(f"v_sqrt_f32 v{vSD}, v{u0}")
    rbf(vSD)
    a(f"v_rcp_f32 v{vR}, v{vSD}")
    for j in range(8): a(f"v_mul_f32 v{vF[j]}, v{vF[j]}, v{vR}")
    for j in range(0, 8, 2): a(f"v_cvt_pk_bf16_f32 v{vXA+j//2}, v{vF[j]}, v{vF[j+1]}")
    a(f"s_sub_u32 s{sT0}, s{sW}, 4\ns_lshl_b32 s{sT0}, s{sT0}, 10\nv_lshlrev_b32 v{u0}, 4, v{vL}\nv_add_u32 v{u0}, s{sT0}, v{u0}")
    a(f"ds_write_b128 v{u0}, v[{vXA}:{vXA+3}] offset:{L_XN0}")
    stamp()
    lq1, lq2 = "L_prod_w1", "L_prod_done"
    a(f"s_cmp_eq_u32 s{sW}, 5\ns_cbranch_scc1 {lq1}")
    a(f"s_lshl_b32 s{sT0}, s{sS}, 7\nv_lshlrev_b32 v{u1}, 5, v{vG4}\nv_add_u32 v{u1}, s{sT0}, v{u1}")
    a(f"ds_read_b128 v[{vPair}:{vPair+3}], v{u1} offset:{L_XN0}\nds_read_b128 v[{vPair+4}:{vPair+7}], v{u1} offset:{L_XN0+16}")
    a(f"v_lshrrev_b32 v{vRd}, 4, v{vL}\nv_lshlrev_b32 v{vRd}, 6, v{vRd}\nv_and_b32 v{u2}, 3, v{vL}\nv_lshl_add_u32 v{vRd}, v{u2}, 3, v{vRd}\nv_bfe_u32 v{u2}, v{vL}, 2, 2\nv_add_lshl_u32 v{vRd}, v{vRd}, v{u2}, 2")
    a(f"s_lshl_b32 s{sT0}, s{sG}, 3\ns_add_u32 s{sT0}, s{sT0}, s{sS}\ns_lshl_b32 s{sT0}, s{sT0}, 10\ns_add_u32 s{sT0}, s{sT0}, {QP0}\nv_lshlrev_b32 v{vPub}, 4, v{vL}\nv_add_u32 v{vPub}, s{sT0}, v{vPub}")
    a("s_waitcnt lgkmcnt(0)")
    get_tag()
    def pbuild(dst, t):
        for w in range(4): a(f"v_perm_b32 v{dst+w}, v{vPair+t//2}, v{vPair+t//2}, v{vSel[w][t%2]}")
    a.vm = vm_wq
    pbuild(vB[0], 0)
    for t in range(16):
        if t + 1 < 16: pbuild(vB[(t + 1) % 2], t + 1)
        a.wait(f"w{t}"); mfma(vDp, vWt + 4 * t, vB[t % 2], t == 0)
    fin_tag()
    a(f"v_lshlrev_b32 v{u0}, 4, v{vL}\nv_mov_b32 v{vVal+1}, s{sTAGQ}\nv_mov_b32 v{vVal+3}, s{sTAGQ}")
    a(f"ds_write_b128 v{u0}, v[{vDp}:{vDp+3}] offset:{L_RQ}")
    a(f"ds_read_b32 v{vVal}, v{vRd} offset:{L_RQ}\nds_read_b32 v{vVal+2}, v{vRd} offset:{L_RQ+16}")
    a("s_waitcnt lgkmcnt(0)")
    if fastq: a(f"s_mov_b32 s{sFQ}, {FASTQ:#x}\nbuffer_store_dwordx4 v[{vVal}:{vVal+3}], v{vPub}, {srd(SWS)}, s{sFQ} offen")
    a(f"buffer_store_dwordx4 v[{vVal}:{vVal+3}], v{vPub}, {srd(SWS)}, 0 offen {stf}")
    a(f"s_branch {lq2}")
    a.label(lq1)
    a(f"s_lshl_b32 s{sT0}, s{sSROW}, 7\nv_lshlrev_b32 v{u1}, 4, v{vR8}\nv_add_u32 v{u1}, s{sT0}, v{u1}")
    a(f"ds_read_b128 v[{vPair}:{vPair+3}], v{u1} offset:{L_XN1}")
    a(f"v_lshrrev_b32 v{vRd}, 5, v{vL}\nv_lshlrev_b32 v{vRd}, 6, v{vRd}\nv_lshl_add_u32 v{vRd}, v{vC}, 2, v{vRd}\nv_bfe_u32 v{u2}, v{vL}, 3, 2\nv_add_lshl_u32 v{vRd}, v{vRd}, v{u2}, 2")
    a(f"s_mul_i32 s{sT0}, s{sSROW}, {HP_STRIDE}\ns_lshl_b32 s{sT1}, s{sBLK}, 9\ns_add_u32 s{sT0}, s{sT0}, s{sT1}\ns_add_u32 s{sT0}, s{sT0}, {HP0}\ns_cmp_eq_u32 s{sHAS}, 1\ns_cselect_b32 s{sT0}, s{sT0}, {OOB}")
    a(f"v_lshlrev_b32 v{vPub}, 3, v{vL}\nv_add_u32 v{vPub}, s{sT0}, v{vPub}")
    a("s_waitcnt lgkmcnt(0)")
    get_tag()
    pbuild(vB[0], 0)
    for t in range(8):
        if t + 1 < 8: pbuild(vB[(t + 1) % 2], t + 1)
        a(f"s_waitcnt vmcnt({7-t})"); mfma(vDp, vWt + 4 * t, vB[t % 2], t == 0)
    fin_tag()
    a(f"v_lshlrev_b32 v{u0}, 4, v{vL}\nv_mov_b32 v{vVal+1}, s{sTAG}")
    a(f"ds_write_b128 v{u0}, v[{vDp}:{vDp+3}] offset:{L_RH}")
    a(f"ds_read_b32 v{vVal}, v{vRd} offset:{L_RH}\nds_read_b32 v{vVal+2}, v{vRd} offset:{L_RH+640}")
    a(f"s_waitcnt lgkmcnt(0)\nv_add_f32 v{vVal}, v{vVal}, v{vVal+2}")
    a(f"buffer_store_dwordx2 v[{vVal}:{vVal+1}], v{vPub}, {srd(SWS)}, 0 offen {stf}")
    a.label(lq2)
    stamp()
    a(f"s_sub_u32 s{sT0}, s{sW}, 4\ns_lshl_b32 s{sT0}, s{sT0}, 6\nv_add_u32 v{u0}, s{sT0}, v{vL}")
    a(f"v_lshrrev_b32 v{vRd}, 5, v{u0}\nv_lshlrev_b32 v{vRd}, 6, v{vRd}\nv_and_b32 v{u2}, 7, v{u0}\nv_lshl_add_u32 v{vRd}, v{u2}, 2, v{vRd}\nv_bfe_u32 v{u2}, v{u0}, 3, 2\nv_add_lshl_u32 v{vRd}, v{vRd}, v{u2}, 2")
    a(f"s_lshl_b32 s{sT0}, s{sG}, 3\ns_add_u32 s{sT0}, s{sT0}, s{sS}\ns_lshl_b32 s{sT0}, s{sT0}, 10\ns_add_u32 s{sT0}, s{sT0}, {OP0}\nv_lshlrev_b32 v{vPub}, 3, v{u0}\nv_add_u32 v{vPub}, s{sT0}, v{vPub}")
    a(f"v_mov_b32 v{vVal+1}, s{sTAG}\ns_mov_b32 s{sREG}, {FASTD}")
    a("s_barrier\ns_barrier\ns_barrier")
    o = L_RO // 256
    a(f"ds_read2st64_b32 v[{vF[0]}:{vF[1]}], v{vRd} offset0:{o} offset1:{o+4}\nds_read2st64_b32 v[{vF[2]}:{vF[3]}], v{vRd} offset0:{o+8} offset1:{o+12}")
    a(f"s_waitcnt lgkmcnt(0)\nv_add_f32 v{vF[0]}, v{vF[0]}, v{vF[1]}\nv_add_f32 v{vF[2]}, v{vF[2]}, v{vF[3]}\nv_add_f32 v{vVal}, v{vF[0]}, v{vF[2]}")
    if fast: a(f"buffer_store_dwordx2 v[{vVal}:{vVal+1}], v{vPub}, {srd(SWS)}, s{sREG} offen")
    a(f"buffer_store_dwordx2 v[{vVal}:{vVal+1}], v{vPub}, {srd(SWS)}, 0 offen {stf}")
    stamp()
    a(f"s_cmp_eq_u32 s{sW}, 5\ns_cbranch_scc0 L_ypub\ns_barrier\ns_branch L_aux_fin")
    a.label("L_ypub")
    a(f"v_lshrrev_b32 v{vRd}, 5, v{vL}\nv_lshlrev_b32 v{vRd}, 6, v{vRd}\nv_lshl_add_u32 v{vRd}, v{vC}, 2, v{vRd}\nv_bfe_u32 v{u2}, v{vL}, 3, 2\nv_add_lshl_u32 v{vRd}, v{vRd}, v{u2}, 2\nv_add_u32 v{u0}, 640, v{vRd}")
    a(f"s_lshl_b32 s{sT0}, s{sS}, 5\ns_add_u32 s{sT0}, s{sT0}, s{sG}\ns_lshl_b32 s{sT0}, s{sT0}, 9\ns_add_u32 s{sT0}, s{sT0}, {YP0}\nv_lshlrev_b32 v{vPub}, 3, v{vL}\nv_add_u32 v{vPub}, s{sT0}, v{vPub}")
    a("s_barrier")
    o = L_RY // 256
    a(f"ds_read2st64_b32 v[{vF[0]}:{vF[1]}], v{vRd} offset0:{o} offset1:{o+4}\nds_read2st64_b32 v[{vF[2]}:{vF[3]}], v{vRd} offset0:{o+8} offset1:{o+12}")
    a(f"ds_read2st64_b32 v[{vF[4]}:{vF[5]}], v{u0} offset0:{o} offset1:{o+4}\nds_read2st64_b32 v[{vF[6]}:{vF[7]}], v{u0} offset0:{o+8} offset1:{o+12}")
    a("s_waitcnt lgkmcnt(0)")
    a(f"v_add_f32 v{vF[0]}, v{vF[0]}, v{vF[1]}\nv_add_f32 v{vF[2]}, v{vF[2]}, v{vF[3]}\nv_add_f32 v{vF[4]}, v{vF[4]}, v{vF[5]}\nv_add_f32 v{vF[6]}, v{vF[6]}, v{vF[7]}")
    a(f"v_add_f32 v{vF[0]}, v{vF[0]}, v{vF[2]}\nv_add_f32 v{vF[4]}, v{vF[4]}, v{vF[6]}\nv_add_f32 v{vVal}, v{vF[0]}, v{vF[4]}")
    a(f"buffer_store_dwordx2 v[{vVal}:{vVal+1}], v{vPub}, {srd(SWS)}, 0 offen {stf}")
    stamp()
    a.label("L_aux_fin")
    dump_stamps("aux")
    a("s_endpgm")

    a.label("L_gath")
    St.n = 0
    vGo, vGd = 6, 64
    tmp = list(range(12, 28))
    if prefetch:
        a("s_getpc_b64 s[84:85]")
        a.label("L_pc")
        a(f"s_sub_u32 s84, s84, L_pc-{KNAME}\ns_subb_u32 s85, s85, 0")
        a(f"v_lshlrev_b32 v12, 7, v{vL}\nv_mov_b32 v9, s85\nv_add_co_u32 v8, vcc, s84, v12\nv_addc_co_u32 v9, vcc, 0, v9, vcc")
        a("global_load_dword v10, v[8:9], off")
        a("v_add_co_u32 v8, vcc, 0x2000, v8\nv_addc_co_u32 v9, vcc, 0, v9, vcc")
        a(f"v_add_u32 v12, 0x2000, v12\nv_cmp_gt_u32 vcc, L_end-{KNAME}, v12\ns_and_saveexec_b64 s[{sEX}:{sEX+1}], vcc\ns_cbranch_execz L_pf_done")
        a("global_load_dword v11, v[8:9], off")
        a.label("L_pf_done")
        a(f"s_mov_b64 exec, s[{sEX}:{sEX+1}]")
    a(f"v_and_b32 v{vC}, 7, v{vL}\nv_lshrrev_b32 v{vR8}, 3, v{vL}")
    a(f"s_lshl_b32 s{sT0}, s{sG}, 13\ns_add_u32 s{sT0}, s{sT0}, {QP0}\nv_lshlrev_b32 v{vGo}, 10, v{vC}\nv_lshl_add_u32 v{vGo}, v{vR8}, 7, v{vGo}\nv_add_u32 v{vGo}, s{sT0}, v{vGo}")
    a(f"v_mov_b32 v28, 0\nv_mov_b32 v29, 0\nv_mov_b32 v30, 0\nv_mov_b32 v31, 0\nds_write_b128 v28, v[28:31] offset:{L_ZB}")
    a("s_waitcnt lgkmcnt(0)")
    get_tag()
    if tlb:
        a(f"s_lshl_b32 s{sT0}, s{sG}, 21\ns_add_u32 s{sT0}, s{sT0}, 0x180000\ns_add_u32 s40, s8, s{sT0}\ns_addc_u32 s41, s9, 0\ns_load_dword s44, s[40:41], 0")
        a(f"s_lshl_b32 s{sT0}, s{sG}, 17\ns_add_u32 s42, s12, s{sT0}\ns_addc_u32 s43, s13, 0\ns_load_dword s45, s[42:43], 0")
        a(f"s_mul_i32 s{sT0}, s{sG}, {43*1024}\ns_add_u32 s36, s18, s{sT0}\ns_addc_u32 s37, s19, 0\ns_load_dword s46, s[36:37], 0")
        a(f"s_load_dword s47, s[20:21], 0")
    mk(SWS, 24, ws_lim)
    stamp()
    if b1: a("s_barrier")
    fin_tag()
    if touch:
        a(f"s_lshl_b32 s{sT0}, s{sG}, 3\ns_add_u32 s{sT0}, s{sT0}, s{sS}\ns_lshl_b32 s{sT0}, s{sT0}, 10\nv_lshlrev_b32 v40, 4, v{vL}\nv_add_u32 v40, s{sT0}, v40")
        a(f"v_add_u32 v41, {QP0}, v40\nbuffer_load_dwordx4 v[44:47], v41, {srd(SWS)}, 0 offen {ldf}")
        a(f"v_add_u32 v41, {OP0}, v40\nbuffer_load_dwordx4 v[48:51], v41, {srd(SWS)}, 0 offen {ldf}")
        a(f"s_lshl_b32 s{sT0}, s{sS}, 5\ns_add_u32 s{sT0}, s{sT0}, s{sG}\ns_lshl_b32 s{sT0}, s{sT0}, 9\ns_add_u32 s{sT0}, s{sT0}, {YP0}\nv_lshlrev_b32 v41, 3, v{vL}\nv_add_u32 v41, s{sT0}, v41")
        a(f"buffer_load_dwordx2 v[52:53], v41, {srd(SWS)}, 0 offen {ldf}")
    a(f"s_lshl_b32 s{sT0}, s{sG}, 7\ns_lshl_b32 s{sT1}, s{sS}, 4\ns_add_u32 s{sT0}, s{sT0}, s{sT1}\ns_add_u32 s{sT0}, s{sT0}, {ML0}")
    a(f"v_lshlrev_b32 v34, 3, v{vL}\nv_add_u32 v34, s{sT0}, v34\nv_cmp_gt_u32 vcc, 2, v{vL}\nv_mov_b32 v35, {OOB}\nv_cndmask_b32 v34, v35, v34, vcc")
    a(f"v_mov_b32 v37, s{sTAG}")
    a(f"s_mov_b32 s{sREG}, {FASTD}\ns_waitcnt vmcnt(0)")
    a("s_barrier")
    stamp()
    a("s_barrier")
    a("s_barrier")
    ls = 40
    for i in range(4): a(f"ds_read_b128 v[{ls+4*i}:{ls+4*i+3}], v28 offset:{L_LS+16*i}")
    a(f"ds_read_b32 v38, v28 offset:{L_FLAG+4}")
    a("s_waitcnt lgkmcnt(0)")
    for st in (1, 2, 4, 8):
        for i in range(0, 16, 2 * st): a(f"v_add_f32 v{ls+i}, v{ls+i}, v{ls+i+st}")
    a(f"v_cmp_eq_u32 vcc, 0, v{vL}\nv_cndmask_b32 v36, v{ls}, v38, vcc")
    if fast: a(f"buffer_store_dwordx2 v[36:37], v34, {srd(SWS)}, s{sREG} offen")
    a(f"buffer_store_dwordx2 v[36:37], v34, {srd(SWS)}, 0 offen {stf}")
    stamp()
    a("s_barrier")
    dump_stamps("gath")
    a.label("L_end")
    a("s_endpgm")
    return wrap(a.text(), 256, 448, LDS_TOTAL, vgpr=248, sgpr=102)

if __name__ == "__main__":
    out = sys.argv[1]
    kw = {}
    for arg in sys.argv[2:]:
        k, v = arg.split("=")
        if k == "vint":
            kw[k] = tuple(int(c) for c in v); continue
        kw[k] = int(v, 0) if re.fullmatch(r"-?(0x)?[0-9a-fA-F]+", v) and not v.startswith("sc") else v.replace("+", " ")
    open(out, "w").write(gen(**kw))
```

```python
import sys, re
from asmlib import *

QP0, HP0, OP0, ML0, YP0, WSLIM = 0x1000, 0x42000, 0x60000, 0xA0000, 0xB0000, 0x170000
FASTQ = 0x120000
FASTD = 0x70000
HP_STRIDE = 1408 * 8
STAMP0 = 0x180000
OOB = 0x10000000
TAGC = 0x9E3779B9

L_RO, L_RY = 0, 4096
L_XN0, L_XN1, L_RQ, L_RH = 8192, 9216, 10240, 11264
L_QB, L_ZB, L_FLAG, L_MX, L_LS = 12288, 12544, 12560, 12608, 12672
LDS_TOTAL = 98304

sW, sG, sS, sTAG = 26, 27, 28, 29
SA, SB, SWO, SW2, SWS, SX, SOUT = 32, 36, 40, 44, 48, 52, 56
sT0, sT1, sT2, sT3 = 30, 31, 60, 61
sO1, sO2, sO3 = 62, 63, 64
sC = [None, 66, 68, 70]
sSCALE, sLOG2E = 72, 73
sEX = 74
sRETRY, sFQ = 76, 77
sHV = 78
sCQ = 80
sBLK, sSROW, sHAS = 81, 82, 83
sMK = 84
sOFF, sTAGQ, sREG = 86, 87, 91
sOFW, sOF2, sN2 = 96, 97, 98
def srd(r): return f"s[{r}:{r+3}]"

def gen(stamps=False, trace=0, W=10, W0=4, vrest=10, vint=(6, 1, 1, 1, 0), pvn=3, stf='sc1', ldf='sc1', touch=1, tlb=1,
        prefetch=1, fast=1, fastq=1, agather=1, lds=LDS_TOTAL, g2pos=0, b1b=None, eplain=1):
    a = Asm()
    ST = [92, 4, 6, 8, 10, 12, 14, 16, 18, 20]
    RT = {'G1': 88, 'G2': 89, 'G3': 90, 'G4': 90}
    class St: n = 0
    class Tr: n = 0
    def stamp():
        if stamps:
            i = St.n; St.n += 1
            assert i < 10
            a(f"s_memrealtime s[{ST[i]}:{ST[i]+1}]")
    def tr(level=2):
        if trace == level:
            a(f"s_memrealtime s[94:95]\ns_waitcnt lgkmcnt(0)\nv_writelane_b32 v27, s94, {Tr.n}")
            Tr.n += 1
    def dump(trace_too=False):
        if stamps:
            n = St.n
            if trace and trace_too:
                a(f"s_mov_b64 exec, -1\ns_lshl_b32 s{sT0}, s2, 2\ns_add_u32 s{sT0}, s{sT0}, s{sW}\ns_lshl_b32 s{sT0}, s{sT0}, 8\ns_add_u32 s{sT0}, s{sT0}, 0x1C0000\nv_lshlrev_b32 v2, 2, v1\nv_add_u32 v2, s{sT0}, v2")
                a(f"s_waitcnt lgkmcnt(0)\nbuffer_store_dword v27, v2, {srd(SWS)}, 0 offen")
            a("s_mov_b64 exec, 1\ns_waitcnt lgkmcnt(0) vmcnt(0)")
            a(f"s_lshl_b32 s{sT0}, s2, 3\ns_add_u32 s{sT0}, s{sT0}, s{sW}\ns_lshl_b32 s{sT0}, s{sT0}, 7\ns_add_u32 s{sT0}, s{sT0}, {STAMP0}\nv_mov_b32 v2, s{sT0}")
            a(f"v_mov_b32 v3, s100\nbuffer_store_dword v3, v2, {srd(SWS)}, 0 offen")
            a(f"v_mov_b32 v4, {n}\nbuffer_store_dword v4, v2, {srd(SWS)}, 0 offen offset:4")
            for i in range(n):
                a(f"v_mov_b32 v{30+i}, s{ST[i]}\nbuffer_store_dword v{30+i}, v2, {srd(SWS)}, 0 offen offset:{8+4*i}")
            for i, r in enumerate([88, 89, 90, sRETRY]):
                a(f"v_mov_b32 v{50+i}, s{r}\nbuffer_store_dword v{50+i}, v2, {srd(SWS)}, 0 offen offset:{64+4*i}")
        St.n = 0; Tr.n = 0

    vL, vI, vG4, vC, vR8 = 1, 2, 3, 4, 5
    def mk(r, p, nrec, offreg=None):
        if offreg is not None: a(f"s_add_u32 s{r}, s{p}, s{offreg}\ns_addc_u32 s{r+1}, s{p+1}, 0")
        else: a(f"s_mov_b32 s{r}, s{p}\ns_mov_b32 s{r+1}, s{p+1}")
        a(f"s_mov_b32 s{r+2}, {nrec}\ns_mov_b32 s{r+3}, 0x20000")
    def mfma(D, A, B, first):
        a(f"v_mfma_f32_16x16x32_bf16 v[{D}:{D+3}], v[{A}:{A+3}], v[{B}:{B+3}], " + ("0" if first else f"v[{D}:{D+3}]"))
    def dpp(op, v, m): a(f"v_{op}_dpp v{v}, v{v}, v{v} {m} row_mask:0xf bank_mask:0xf")
    def tagcheck(regs, tmp, mask=None, q=False):
        sT = sTAGQ if q else sTAG
        xs, regs, k = [], list(regs), 0
        while regs:
            if len(regs) >= 2:
                a(f"v_bitop3_b32 v{tmp[k]}, v{regs[0]}, v{regs[1]}, s{sT} bitop3:0x7e"); regs = regs[2:]
            else:
                a(f"v_xor_b32 v{tmp[k]}, s{sT}, v{regs[0]}"); regs = regs[1:]
            xs.append(tmp[k]); k += 1
        while len(xs) > 1:
            if len(xs) >= 3:
                a(f"v_or3_b32 v{xs[0]}, v{xs[0]}, v{xs[1]}, v{xs[2]}"); xs = xs[3:] + [xs[0]]
            else:
                a(f"v_or_b32 v{xs[0]}, v{xs[0]}, v{xs[1]}"); xs = [xs[0]]
        if q:
            a(f"v_and_b32 v{tmp[-1]}, 0xfffffff0, v{xs[0]}\nv_cmp_ne_u32 vcc, 0, v{tmp[-1]}")
            return xs[0]
        a(f"v_cmp_ne_u32 vcc, 0, v{xs[0]}")
        if mask is not None: a(f"s_and_b64 vcc, vcc, s[{mask}:{mask+1}]")
    def poll(name, waitname, regs, tmp, reissue, mask=None, q=False, reissue2=None):
        ok, rt = a.newlabel("Lok"), a.newlabel("Lrt")
        if waitname: a.wait(waitname)
        else: a("s_waitcnt vmcnt(0)")
        xr = tagcheck(regs, tmp, mask, q)
        a(f"s_cbranch_vccz {ok}")
        a.label(rt)
        for txt in ([reissue] if reissue2 is None else [reissue, reissue2]):
            a(f"s_sub_u32 s{sRETRY}, s{sRETRY}, 1")
            a(txt)
            a("s_waitcnt vmcnt(0)")
            tagcheck(regs, tmp, mask, q)
            a(f"s_cbranch_vccz {ok}")
        a(f"s_cmp_gt_i32 s{sRETRY}, 0\ns_cbranch_scc1 {rt}")
        a.label(ok)
        if stamps: a(f"s_mov_b32 s{RT[name]}, s{sRETRY}")
        return xr
    def red8(vals, op="add_f32"):
        for m in ("quad_perm:[1,0,3,2]", "quad_perm:[2,3,0,1]", "row_half_mirror"):
            for v in vals: dpp(op, v, m)
    def get_tag(): a(f"s_load_dword s{sTAG}, s[24:25], 0")
    def fin_tag(q=True):
        if q: a(f"s_getreg_b32 s{sTAGQ}, hwreg(HW_REG_XCC_ID, 0, 4)")
        a(f"s_waitcnt lgkmcnt(0)\ns_add_u32 s{sTAG}, s{sTAG}, {TAGC:#x}")
        if q: a(f"s_and_b32 s{sT3}, s{sTAG}, 0xfffffff0\ns_or_b32 s{sTAGQ}, s{sTAGQ}, s{sT3}")
    def addr_d(dst, d, tmp):
        a(f"v_lshrrev_b32 v{dst}, 5, v{d}\nv_lshlrev_b32 v{dst}, 6, v{dst}\nv_and_b32 v{tmp}, 7, v{d}\nv_lshl_add_u32 v{dst}, v{tmp}, 2, v{dst}\nv_bfe_u32 v{tmp}, v{d}, 3, 2\nv_add_lshl_u32 v{dst}, v{dst}, v{tmp}, 2")
    ws_lim = WSLIM if not stamps else 0x240000

    a("s_cmp_ge_u32 s2, 256\ns_cbranch_scc1 L_end")
    if stamps: a("s_memrealtime s[100:101]")
    a("s_load_dwordx16 s[4:19], s[0:1], 0")
    a("s_load_dwordx4 s[20:23], s[0:1], 64")
    a("s_load_dwordx2 s[24:25], s[0:1], 80")
    if prefetch:
        a("s_getpc_b64 s[84:85]")
        a.label("L_pc")
        a(f"v_lshlrev_b32 v8, 7, v0\nv_cmp_gt_u32 vcc, (L_end-L_pc)/128, v0\ns_and_saveexec_b64 s[{sEX}:{sEX+1}], vcc\ns_cbranch_execz L_pf_done")
        a("v_mov_b32 v9, s85\nv_add_co_u32 v8, vcc, s84, v8\nv_addc_co_u32 v9, vcc, 0, v9, vcc\nglobal_load_dword v248, v[8:9], off")
        a.label("L_pf_done")
        a(f"s_mov_b64 exec, s[{sEX}:{sEX+1}]")
    a(f"v_lshrrev_b32 v{vI}, 6, v0\nv_and_b32 v{vL}, 63, v0\nv_readfirstlane_b32 s{sW}, v{vI}")
    a(f"s_and_b32 s{sT0}, s2, 7\ns_lshr_b32 s{sT1}, s2, 3\ns_lshl_b32 s{sG}, s{sT0}, 2\ns_and_b32 s{sT2}, s{sT1}, 3\ns_add_u32 s{sG}, s{sG}, s{sT2}\ns_lshr_b32 s{sS}, s2, 5")
    a(f"v_and_b32 v{vI}, 15, v{vL}\nv_lshrrev_b32 v{vG4}, 4, v{vL}\nv_and_b32 v{vC}, 7, v{vL}\nv_lshrrev_b32 v{vR8}, 3, v{vL}")
    a(f"s_mov_b32 s{sRETRY}, 100000")
    if stamps: a(f"s_mov_b32 s88, 100000\ns_mov_b32 s89, 100000\ns_mov_b32 s90, 100000")
    a(f"s_cmp_ge_u32 s{sW}, 4\ns_cbranch_scc1 L_aux")

    vKo, vVo, vWOo, vW2o, vGq, vGm, vGh, vRAW, vSL = 6, 7, 8, 9, 10, 11, 12, 13, 14
    vQA = [15, 16, 17, 18]
    vOUT = 19; vM = [20, 21, 22, 23]; vXD, vMX, vG1 = 24, 25, 26
    vK, vV, vW2, vWO, vBq, vD = 28, 92, 156, 164, 180, 196
    vB0, vB1, vGa, vPP = 212, 216, 220, 232
    vF = list(range(236, 244)); t0, t1, t2, t3 = 244, 245, 246, 247
    vDo, vDy = 200, 204
    SK, SV = SA, SB
    a.vm = []
    a(f"v_lshrrev_b32 v{vKo}, 2, v{vI}\nv_and_b32 v{t0}, 3, v{vI}\nv_lshlrev_b32 v{vKo}, 12, v{vKo}\nv_lshl_add_u32 v{t0}, v{vG4}, 2, v{t0}\nv_lshl_add_u32 v{vKo}, v{t0}, 4, v{vKo}")
    a(f"s_lshl_b32 s{sT0}, s{sG}, 21\ns_lshl_b32 s{sT1}, s{sS}, 16\ns_add_u32 s{sT0}, s{sT0}, s{sT1}\ns_lshl_b32 s{sT1}, s{sW}, 10\ns_add_u32 s{sT0}, s{sT0}, s{sT1}\ns_add_u32 s{sOFF}, s{sT0}, 0x180000")
    a(f"s_mov_b32 s{sO1}, 16384\ns_mov_b32 s{sO2}, 32768\ns_mov_b32 s{sO3}, 49152")
    a(f"v_lshlrev_b32 v{vVo}, 12, v{vG4}\nv_lshl_add_u32 v{vVo}, v{vI}, 4, v{vVo}")
    a(f"v_lshlrev_b32 v{t0}, 4, v{t0}\nv_add_u32 v{t0}, {L_QB}, v{t0}\nv_mov_b32 v{t1}, {L_ZB}")
    for tt in range(4):
        m = 0x000F000F << (4 * tt)
        a(f"s_mov_b32 s{sMK}, {m:#x}\ns_mov_b32 s{sMK+1}, {m:#x}\nv_cndmask_b32 v{vQA[tt]}, v{t1}, v{t0}, s[{sMK}:{sMK+1}]")
    for c in range(1, 4):
        m = 0x11111111 << c
        a(f"s_mov_b32 s{sC[c]}, {m:#x}\ns_mov_b32 s{sC[c]+1}, {m:#x}")
    a(f"s_mov_b32 s{sSCALE}, 0x3db504f3\ns_mov_b32 s{sLOG2E}, 0x3fb8aa3b\ns_mov_b32 s{sFQ}, {FASTQ if fastq else 0:#x}")
    a("s_waitcnt lgkmcnt(0)")
    mk(SK, 6, 62464, sOFF); mk(SV, 8, 62464, sOFF)
    get_tag()
    so4 = ["0", f"s{sO1}", f"s{sO2}", f"s{sO3}"]
    def ldK(t): a.vmem(f"K{t}", f"buffer_load_dwordx4 v[{vK+4*t}:{vK+4*t+3}], v{vKo}, {srd(SK)}, {so4[t%4]} offen offset:{(t//4)*256} nt")
    def ldV(t): a.vmem(f"V{t}", f"buffer_load_dwordx4 v[{vV+4*t}:{vV+4*t+3}], v{vVo}, {srd(SV)}, {so4[t%4]} offen offset:{(t//4)*256} nt")
    def ldWO(t): a.vmem(f"wo{t}", f"buffer_load_dwordx4 v[{vWO+4*t}:{vWO+4*t+3}], v{vWOo}, {srd(SWO)}, 0 offen offset:{t*1024} nt")
    def ldW2(t): a.vmem(f"w2{t}", f"buffer_load_dwordx4 v[{vW2+4*t}:{vW2+4*t+3}], v{vW2o}, {srd(SW2)}, 0 offen offset:{t*1024} nt")
    g2txt = f"buffer_load_dwordx4 v[{vGa+8}:{vGa+11}], v{vGh}, {srd(SWS)}, 0 offen {ldf}"
    def ldG2(): a.vmem("G2", g2txt)
    def g1(so):
        return (f"buffer_load_dwordx4 v[{vGa}:{vGa+3}], v{vG1}, {srd(SWS)}, {so} offen {ldf}\n"
                f"buffer_load_dwordx4 v[{vGa+4}:{vGa+7}], v{vG1}, {srd(SWS)}, {so} offen offset:16 {ldf}")
    g1txt = g1(f"s{sFQ}") if fastq else g1("0")
    def ldG1():
        t_ = g1txt.split("\n"); a.vmem("G1a", t_[0]); a.vmem("G1b", t_[1])
    tailq = {0: [("G2", 0), ("W2", 0), ("W2", 1)] + [("WO", t) for t in range(4)],
             1: [("W2", 0), ("W2", 1)] + [("WO", t) for t in range(4)] + [("G2", 0)]}[g2pos]
    queue = [("K", t) for t in range(16)] + ([] if agather else [("G1", 0)]) + [("V", t) for t in range(16)] + tailq
    order = [(f"{k}{t}" if k in "KV" else None) for k, t in queue]
    def nxt(n=1):
        for _ in range(n):
            if not queue: return
            k, t = queue.pop(0)
            {"K": lambda: ldK(t), "V": lambda: ldV(t), "G1": ldG1, "G2": ldG2, "W2": lambda: ldW2(t), "WO": lambda: ldWO(t)}[k]()
    stamp()
    a("s_barrier")
    npre = 16 + (0 if agather else 1) + vrest
    def nxt_free():
        n = 1; nxt()
        while queue and queue[0][0] == "G1": nxt(); n += 1
        return n
    issued = 0
    while issued < min(W0, npre): issued += nxt_free()
    a(f"s_lshr_b32 s{sCQ}, s{sG}, 1")
    a(f"v_lshlrev_b32 v{vWOo}, 12, v{vR8}\nv_lshl_add_u32 v{vWOo}, v{vC}, 4, v{vWOo}")
    a(f"v_lshlrev_b32 v{vW2o}, 11, v{vR8}\nv_lshl_add_u32 v{vW2o}, v{vC}, 4, v{vW2o}")
    a(f"s_lshl_b32 s{sT0}, s{sG}, 7\ns_lshl_b32 s{sT1}, s{sW}, 5\ns_add_u32 s{sT0}, s{sT0}, s{sT1}\ns_lshl_b32 s{sT0}, s{sT0}, 10\ns_lshl_b32 s{sT1}, s{sS}, 7\ns_add_u32 s{sT0}, s{sT0}, s{sT1}")
    mk(SWO, 12, 31 * 1024 + 128, sT0)
    a(f"s_mul_i32 s{sT0}, s{sCQ}, 86\ns_and_b32 s{sT1}, s{sG}, 1\ns_mul_i32 s{sT2}, s{sT1}, 44\ns_add_u32 s{sT0}, s{sT0}, s{sT2}\ns_mul_i32 s{sT2}, s{sW}, 12\ns_add_u32 s{sT0}, s{sT0}, s{sT2}")
    a(f"s_lshl_b32 s{sT1}, s{sT1}, 1\ns_sub_u32 s{sT1}, 44, s{sT1}\ns_sub_u32 s{sT1}, s{sT1}, s{sT2}\ns_min_u32 s{sT3}, s{sT1}, 12")
    a(f"v_mul_u32_u24 v{vGh}, {HP_STRIDE}, v{vC}\nv_lshl_add_u32 v{vGh}, v{vR8}, 4, v{vGh}\ns_lshl_b32 s{sT1}, s{sT0}, 3\ns_add_u32 s{sT1}, s{sT1}, {HP0}\nv_add_u32 v{vGh}, s{sT1}, v{vGh}")
    a(f"v_lshlrev_b32 v{t0}, 1, v{vR8}\nv_cmp_gt_u32 s[{sHV}:{sHV+1}], s{sT3}, v{t0}\nv_mov_b32 v{t1}, {OOB}\nv_cndmask_b32 v{vGh}, v{t1}, v{vGh}, s[{sHV}:{sHV+1}]")
    a(f"s_lshl_b32 s{sT0}, s{sT0}, 10\ns_lshl_b32 s{sT1}, s{sS}, 7\ns_add_u32 s{sT0}, s{sT0}, s{sT1}")
    a(f"s_add_u32 s{SW2}, s18, s{sT0}\ns_addc_u32 s{SW2+1}, s19, 0\ns_sub_u32 s{sT3}, s{sT3}, 1\ns_lshl_b32 s{sT3}, s{sT3}, 10\ns_add_u32 s{SW2+2}, s{sT3}, 128\ns_mov_b32 s{SW2+3}, 0x20000")
    mk(SWS, 24, ws_lim); mk(SX, 4, 1024); mk(SOUT, 20, 1024)
    a(f"s_lshl_b32 s{sT0}, s{sS}, 7\ns_lshl_b32 s{sT1}, s{sCQ}, 3\ns_add_u32 s{sT0}, s{sT0}, s{sT1}\nv_and_b32 v{vOUT}, 1, v{vL}\nv_lshlrev_b32 v{vOUT}, 2, v{vOUT}\nv_add_u32 v{vOUT}, s{sT0}, v{vOUT}")
    a(f"v_and_b32 v{t0}, 1, v{vL}\nv_lshlrev_b32 v{t0}, 4, v{t0}\nv_mov_b32 v{t1}, 0xffff\nv_lshlrev_b32 v{t0}, v{t0}, v{t1}")
    for w in range(4):
        m = 0x03030303 << (2 * w)
        a(f"s_mov_b32 s{sMK}, {m:#x}\ns_mov_b32 s{sMK+1}, {m:#x}\nv_cndmask_b32 v{vM[w]}, 0, v{t0}, s[{sMK}:{sMK+1}]")
    a(f"s_lshl_b32 s{sT0}, s{sG}, 13\ns_lshl_b32 s{sT1}, s{sW}, 8\ns_add_u32 s{sT0}, s{sT0}, s{sT1}\ns_add_u32 s{sT0}, s{sT0}, {OP0}")
    a(f"v_lshlrev_b32 v{vGq}, 10, v{vC}\nv_lshl_add_u32 v{vGq}, v{vR8}, 5, v{vGq}\nv_add_u32 v{vGq}, s{sT0}, v{vGq}")
    if not agather: a(f"v_subrev_u32 v{vG1}, {OP0-QP0}, v{vGq}")
    a(f"s_lshl_b32 s{sT0}, s{sG}, 7\ns_add_u32 s{sT0}, s{sT0}, {ML0}\nv_lshlrev_b32 v{vGm}, 4, v{vC}\nv_add_u32 v{vGm}, s{sT0}, v{vGm}")
    a(f"s_lshl_b32 s{sT0}, s{sW}, 10\nv_lshlrev_b32 v{vRAW}, 4, v{vL}\nv_add_u32 v{vRAW}, s{sT0}, v{vRAW}")
    a(f"s_lshl_b32 s{sT0}, s{sW}, 4\nv_lshlrev_b32 v{vSL}, 2, v{vG4}\nv_add_u32 v{vSL}, s{sT0}, v{vSL}")
    stamp()
    if b1b is not None:
        a("s_barrier")
        while issued < min(W, npre): issued += nxt_free()
    wi = 0
    while issued < npre:
        while order[wi] is None: wi += 1
        a.wait(order[wi]); wi += 1
        tr(1)
        issued += nxt_free()
        if issued < npre and issued - wi < W: issued += nxt_free()
    fin_tag(q=not agather)
    a.wait("K15")
    tr()
    stamp()
    if not agather:
        xr = poll("G1", "G1b", [vGa + 1, vGa + 3, vGa + 5, vGa + 7], vF, g1("0"), q=True, reissue2=(g1txt if fastq else None))
        a(f"v_cmp_ne_u32 vcc, 0, v{xr}\ns_cmp_eq_u64 vcc, 0\ns_cselect_b32 s{sREG}, {FASTD if fast else 0}, 0")
        nxt(vint[0])
        qv = [vGa, vGa + 2, vGa + 4, vGa + 6]
        red8(qv)
        a(f"v_cvt_pk_bf16_f32 v{vGa}, v{qv[0]}, v{qv[1]}\nv_cvt_pk_bf16_f32 v{vGa+1}, v{qv[2]}, v{qv[3]}")
        a(f"s_lshl_b32 s{sT0}, s{sW}, 6\nv_lshlrev_b32 v{t0}, 3, v{vR8}\nv_add_u32 v{t0}, s{sT0}, v{t0}")
        a(f"s_mov_b64 s[{sEX}:{sEX+1}], exec\ns_mov_b32 exec_lo, 0x01010101\ns_mov_b32 exec_hi, 0x01010101")
        a(f"ds_write_b64 v{t0}, v[{vGa}:{vGa+1}] offset:{L_QB}")
        a(f"s_mov_b64 exec, s[{sEX}:{sEX+1}]")
        a(f"v_add_u32 v{vGq}, s{sREG}, v{vGq}\nv_add_u32 v{vGm}, s{sREG}, v{vGm}")
        a("s_waitcnt lgkmcnt(0)")
    tr()
    a("s_barrier")
    tr()
    for tt in range(4): a(f"ds_read_b128 v[{vBq+4*tt}:{vBq+4*tt+3}], v{vQA[tt]}")
    if agather:
        a(f"v_mov_b32 v{t2}, 0\nds_read_b32 v{t3}, v{t2} offset:{L_FLAG+8}")
        nxt(vint[0])
    a.vmem("xd", f"buffer_load_dword v{vXD}, v{vOUT}, {srd(SX)}, 0 offen")
    if not agather: nxt(vint[1])
    ex = 1 if agather else 0
    for tt in range(4):
        a(f"s_waitcnt lgkmcnt({3-tt+ex})")
        for u in range(4): mfma(vD + 4 * u, vK + 4 * (4 * u + tt), vBq + 4 * tt, tt == 0)
    if agather:
        a(f"s_waitcnt lgkmcnt(0)\nv_add_u32 v{vGq}, v{t3}, v{vGq}\nv_add_u32 v{vGm}, v{t3}, v{vGm}")
        nxt(vint[1])
    tr()
    nxt(vint[2])
    sc = vF[:4]
    for r_ in (1, 2, 3):
        for u in range(4):
            src0 = vD + 4 * u if r_ == 1 else sc[u]
            a(f"v_cndmask_b32 v{sc[u]}, v{src0}, v{vD+4*u+r_}, s[{sC[r_]}:{sC[r_]+1}]")
    for m in ("quad_perm:[1,0,3,2]", "quad_perm:[2,3,0,1]"):
        for u in range(4): dpp("add_f32", sc[u], m)
    def round2():
        for u in (0, 2): a(f"v_cvt_pk_bf16_f32 v{t0+u//2}, v{sc[u]}, v{sc[u+1]}")
        for u in (0, 2): a(f"v_lshlrev_b32 v{sc[u]}, 16, v{t0+u//2}\nv_and_b32 v{sc[u+1]}, 0xffff0000, v{t0+u//2}")
    round2()
    for u in range(4): a(f"v_mul_f32 v{sc[u]}, s{sSCALE}, v{sc[u]}")
    round2()
    a(f"v_max3_f32 v{t0}, v{sc[0]}, v{sc[1]}, v{sc[2]}\nv_max_f32 v{t0}, v{t0}, v{sc[3]}")
    for m in ("row_ror:4", "row_ror:8"): dpp("max_f32", t0, m)
    a(f"ds_write_b32 v{vSL}, v{t0} offset:{L_MX}")
    nxt(vint[3])
    a(f"v_mov_b32 v{t1}, 0")
    tr()
    a("s_waitcnt lgkmcnt(0)\ns_barrier")
    tr()
    mx = vD
    for i in range(4): a(f"ds_read_b128 v[{mx+4*i}:{mx+4*i+3}], v{t1} offset:{L_MX+16*i}")
    nxt(vint[4])
    a("s_waitcnt lgkmcnt(0)")
    a(f"v_max3_f32 v{mx}, v{mx}, v{mx+1}, v{mx+2}\nv_max3_f32 v{mx+3}, v{mx+3}, v{mx+4}, v{mx+5}\nv_max3_f32 v{mx+6}, v{mx+6}, v{mx+7}, v{mx+8}\nv_max3_f32 v{mx+9}, v{mx+9}, v{mx+10}, v{mx+11}\nv_max3_f32 v{mx+12}, v{mx+12}, v{mx+13}, v{mx+14}")
    a(f"v_max3_f32 v{mx}, v{mx}, v{mx+3}, v{mx+6}\nv_max3_f32 v{mx+9}, v{mx+9}, v{mx+12}, v{mx+15}\nv_max_f32 v{vMX}, v{mx}, v{mx+9}")
    for u in range(4): a(f"v_sub_f32 v{sc[u]}, v{sc[u]}, v{vMX}")
    for u in range(4): a(f"v_mul_f32 v{sc[u]}, s{sLOG2E}, v{sc[u]}")
    for u in range(4): a(f"v_exp_f32 v{sc[u]}, v{sc[u]}")
    for u in range(4): a(f"v_cvt_pk_bf16_f32 v{vPP+u}, v{sc[u]}, v{sc[u]}")
    Bs = [vB0, vB1]
    def build(dst, pp, d=None):
        for w in range(4):
            if d is None: a(f"v_and_b32 v{dst+w}, v{pp}, v{vM[w]}")
            else: a(f"v_and_b32_dpp v{dst+w}, v{pp}, v{vM[w]} {d} row_mask:0xf bank_mask:0xf")
    a(f"v_add_f32 v{t0}, v{sc[0]}, v{sc[1]}\nv_add_f32 v{t1}, v{sc[2]}, v{sc[3]}\nv_add_f32 v{t0}, v{t0}, v{t1}")
    build(Bs[0], vPP, "row_newbcast:0")
    for m in ("row_ror:4", "row_ror:8"): dpp("add_f32", t0, m)
    a(f"ds_write_b32 v{vSL}, v{t0} offset:{L_LS}")
    a(f"v_mov_b32 v{t1}, 0\nds_write_b32 v{t1}, v{vMX} offset:{L_FLAG+4}")
    tr()
    stamp()
    for t in range(16):
        if t + 1 < 16: build(Bs[(t + 1) % 2], vPP + (t + 1) // 4, f"row_newbcast:{4*((t+1)%4)}")
        a.wait(f"V{t}"); tr(1); mfma(vDo, vV + 4 * t, Bs[t % 2], t == 0); nxt(pvn)
    assert not queue
    tr()
    stamp()
    a(f"ds_write_b128 v{vRAW}, v[{vDo}:{vDo+3}] offset:{L_RO}")
    a("s_waitcnt lgkmcnt(0)\ns_barrier")
    tr()
    poll("G2", "G2", [vGa + 9, vGa + 11], vF, g2txt, mask=sHV)
    tr()
    hv = [vGa + 8, vGa + 10]
    red8(hv)
    a(f"v_cvt_pk_bf16_f32 v{t0}, v{hv[0]}, v{hv[1]}\nv_lshlrev_b32 v{hv[0]}, 16, v{t0}\nv_and_b32 v{hv[1]}, 0xffff0000, v{t0}")
    ev = [vF[0], vF[1]]
    for j in range(2): a(f"v_mul_f32 v{ev[j]}, s{sLOG2E}, v{hv[j]}")
    for j in range(2): a(f"v_exp_f32 v{ev[j]}, -v{ev[j]}")
    for j in range(2): a(f"v_add_f32 v{ev[j]}, 1.0, v{ev[j]}")
    for j in range(2): a(f"v_rcp_f32 v{ev[j]}, v{ev[j]}")
    for j in range(2): a(f"v_mul_f32 v{hv[j]}, v{hv[j]}, v{ev[j]}")
    for j in range(2): a(f"v_cvt_pk_bf16_f32 v{hv[j]}, v{hv[j]}, v{hv[j]}")
    for j in range(2): a(f"v_cndmask_b32 v{hv[j]}, 0, v{hv[j]}, s[{sHV}:{sHV+1}]")
    build(Bs[0], hv[0]); build(Bs[1], hv[1])
    g3txt = (f"buffer_load_dwordx4 v[{vGa}:{vGa+3}], v{vGq}, {srd(SWS)}, 0 offen {ldf}\n"
             f"buffer_load_dwordx4 v[{vGa+4}:{vGa+7}], v{vGq}, {srd(SWS)}, 0 offen offset:16 {ldf}\n"
             f"buffer_load_dwordx4 v[{vGa+8}:{vGa+11}], v{vGm}, {srd(SWS)}, 0 offen {ldf}")
    a.wait("w20"); mfma(vDy, vW2, Bs[0], True)
    a.wait("w21"); mfma(vDy, vW2 + 4, Bs[1], False)
    tr()
    stamp()
    a(g3txt)
    poll("G3", None, [vGa + 1, vGa + 3, vGa + 5, vGa + 7, vGa + 9, vGa + 11], vF, g3txt)
    tr()
    stamp()
    vm_, vl_ = vGa + 8, vGa + 10
    a(f"v_mov_b32 v{t0}, v{vm_}")
    red8([t0], "max_f32")
    a(f"v_sub_f32 v{t0}, v{vm_}, v{t0}\nv_mul_f32 v{t0}, s{sLOG2E}, v{t0}\nv_exp_f32 v{t0}, v{t0}")
    ov = [vGa, vGa + 2, vGa + 4, vGa + 6]
    a(f"v_mul_f32 v{vl_}, v{vl_}, v{t0}")
    for v in ov: a(f"v_mul_f32 v{v}, v{v}, v{t0}")
    red8([vl_] + ov)
    a(f"v_rcp_f32 v{vl_}, v{vl_}")
    for v in ov: a(f"v_mul_f32 v{v}, v{v}, v{vl_}")
    for v in ov: a(f"v_cvt_pk_bf16_f32 v{v}, v{v}, v{v}")
    build(Bs[0], ov[0])
    for t in range(4):
        if t + 1 < 4: build(Bs[(t + 1) % 2], ov[t + 1])
        mfma(vDy, vWO + 4 * t, Bs[t % 2], False)
    a(f"s_lshl_b32 s{sT0}, s{sS}, 14\ns_lshl_b32 s{sT1}, s{sCQ}, 5\ns_add_u32 s{sT0}, s{sT0}, s{sT1}\ns_add_u32 s{sT0}, s{sT0}, {YP0}")
    a(f"v_lshrrev_b32 v{t0}, 1, v{vL}\nv_lshlrev_b32 v{t0}, 9, v{t0}\nv_and_b32 v{t1}, 1, v{vL}\nv_lshl_add_u32 v{t0}, v{t1}, 4, v{t0}\nv_add_u32 v{vGq}, s{sT0}, v{t0}")
    a(f"ds_write_b128 v{vRAW}, v[{vDy}:{vDy+3}] offset:{L_RY}")
    tr()
    a("s_waitcnt lgkmcnt(0)\ns_barrier")
    tr()
    stamp()
    lfin = "L_main_fin"
    a(f"s_and_b32 s{sT0}, s{sG}, 1\ns_or_b32 s{sT0}, s{sT0}, s{sW}\ns_cmp_eq_u32 s{sT0}, 0\ns_cbranch_scc0 {lfin}")
    g4txt = f"buffer_load_dwordx4 v[{vGa}:{vGa+3}], v{vGq}, {srd(SWS)}, 0 offen {ldf}"
    a(g4txt)
    a(f"v_lshlrev_b32 v{t2}, 16, v{vXD}\nv_and_b32 v{t3}, 0xffff0000, v{vXD}")
    poll("G4", None, [vGa + 1, vGa + 3], vF, g4txt)
    yv = [vGa, vGa + 2]
    for m in ("quad_perm:[2,3,0,1]", "row_ror:4", "row_ror:8"):
        for v in yv: dpp("add_f32", v, m)
    for sw in ("v_permlane16_swap_b32", "v_permlane32_swap_b32"):
        a(f"v_mov_b32 v{vF[0]}, v{yv[0]}\nv_mov_b32 v{vF[1]}, v{yv[1]}")
        a(f"{sw} v{yv[0]}, v{vF[0]}\n{sw} v{yv[1]}, v{vF[1]}")
        a(f"v_add_f32 v{yv[0]}, v{yv[0]}, v{vF[0]}\nv_add_f32 v{yv[1]}, v{yv[1]}, v{vF[1]}")
    a(f"v_add_f32 v{yv[0]}, v{yv[0]}, v{t2}\nv_add_f32 v{yv[1]}, v{yv[1]}, v{t3}\nv_cvt_pk_bf16_f32 v{yv[0]}, v{yv[0]}, v{yv[1]}")
    a("s_mov_b64 exec, 3")
    a(f"buffer_store_dword v{yv[0]}, v{vOUT}, {srd(SOUT)}, 0 offen")
    a(f"s_or_b32 s{sT0}, s{sS}, s{sG}\ns_cmp_eq_u32 s{sT0}, 0\ns_cbranch_scc0 {lfin}")
    a(f"s_mov_b64 exec, 1\nv_mov_b32 v{t0}, 0\nv_mov_b32 v{t1}, s{sTAG}\nbuffer_store_dword v{t1}, v{t0}, {srd(SWS)}, 0 offen" + ("" if eplain else " " + stf))
    a.label(lfin)
    stamp()
    dump(trace_too=True)
    a("s_endpgm")

    a.label("L_aux")
    a(f"s_cmp_eq_u32 s{sW}, 6\ns_cbranch_scc1 L_gath")
    vXA = 8
    vF = list(range(12, 20)); vE = list(range(20, 28))
    vSel = [[28 + 2 * w + p for p in range(2)] for w in range(4)]
    vPair = 36; vB = [44, 48]; vDp = 52; vWt = 64
    vOff, vRd, vPub, vVal = 6, 7, 56, 60
    u0, u1, u2, u3 = 57, 58, 59, 128
    vMU, vSD, vR = 129, 130, 131
    SWt = SA
    a(f"v_lshlrev_b32 v{u0}, 4, v{vL}")
    a(f"s_cmp_eq_u32 s{sW}, 5\ns_cbranch_scc1 L_w1_addr")
    a(f"v_lshlrev_b32 v{vOff}, 17, v{vG4}\nv_lshl_add_u32 v{vOff}, v{vI}, 4, v{vOff}")
    a(f"s_lshl_b32 s{sT0}, s{sS}, 19\ns_lshl_b32 s{sT1}, s{sG}, 8\ns_add_u32 s{sOFF}, s{sT0}, s{sT1}")
    a("s_waitcnt lgkmcnt(0)")
    mk(SX, 4, 1024)
    a.vm = []
    a.vmem("xa", f"buffer_load_dwordx4 v[{vXA}:{vXA+3}], v{u0}, {srd(SX)}, 0 offen")
    mk(SWt, 10, 63 * 8192 + 256, sOFF)
    a(f"s_mov_b32 s{sO1}, 0")
    for t in range(16):
        a.vmem(f"w{t}", f"buffer_load_dwordx4 v[{vWt+4*t}:{vWt+4*t+3}], v{vOff}, {srd(SWt)}, s{sO1} offen nt")
        if t < 15: a(f"s_add_u32 s{sO1}, s{sO1}, 8192")
    vm_wq = list(a.vm)
    a("s_branch L_aux_ld")
    a.label("L_w1_addr")
    a(f"s_and_b32 s{sT0}, s2, 7\ns_lshr_b32 s{sT1}, s2, 3\ns_mul_i32 s{sT0}, s{sT0}, 22\ns_add_u32 s{sT0}, s{sT0}, s{sT1}\ns_lshr_b32 s{sBLK}, s{sT0}, 3\ns_and_b32 s{sSROW}, s{sT0}, 7\ns_cmp_lt_u32 s{sT1}, 22\ns_cselect_b32 s{sHAS}, 1, 0")
    a(f"v_mul_u32_u24 v{vOff}, 22016, v{vR8}\nv_lshl_add_u32 v{vOff}, v{vC}, 4, v{vOff}")
    a(f"s_cmp_eq_u32 s{sBLK}, 21\ns_cselect_b32 s{sT0}, 4, 8\nv_cmp_le_u32 vcc, s{sT0}, v{vC}\nv_mov_b32 v{u1}, {OOB}\nv_cndmask_b32 v{vOff}, v{vOff}, v{u1}, vcc")
    a(f"s_mul_i32 s{sT0}, s{sSROW}, {64*2752}\ns_lshl_b32 s{sT1}, s{sBLK}, 7\ns_add_u32 s{sOFF}, s{sT0}, s{sT1}")
    a("s_waitcnt lgkmcnt(0)")
    mk(SX, 4, 1024)
    a(f"buffer_load_dwordx4 v[{vXA}:{vXA+3}], v{u0}, {srd(SX)}, 0 offen")
    a(f"s_add_u32 s{SWt}, s16, s{sOFF}\ns_addc_u32 s{SWt+1}, s17, 0\ns_sub_u32 s{sT0}, 1409024, s{sOFF}\ns_cmp_eq_u32 s{sHAS}, 1\ns_cselect_b32 s{SWt+2}, s{sT0}, 0\ns_mov_b32 s{SWt+3}, 0x20000")
    a(f"s_mov_b32 s{sO1}, 0")
    for t in range(8):
        a(f"buffer_load_dwordx4 v[{vWt+4*t}:{vWt+4*t+3}], v{vOff}, {srd(SWt)}, s{sO1} offen nt")
        if t < 7: a(f"s_add_u32 s{sO1}, s{sO1}, 2752")
    a.label("L_aux_ld")
    stamp()
    a("s_barrier")
    mk(SWS, 24, ws_lim)
    a(f"v_mov_b32 v{u1}, 0x0c0c0100\nv_mov_b32 v{u2}, 0x01000c0c\ns_mov_b32 s{sMK}, 0xaaaaaaaa\ns_mov_b32 s{sMK+1}, 0xaaaaaaaa\nv_cndmask_b32 v{vE[0]}, v{u1}, v{u2}, s[{sMK}:{sMK+1}]")
    a(f"v_mov_b32 v{u1}, 0x0c0c0302\nv_mov_b32 v{u2}, 0x03020c0c\nv_cndmask_b32 v{vE[1]}, v{u1}, v{u2}, s[{sMK}:{sMK+1}]\nv_mov_b32 v{u1}, 0x0c0c0c0c")
    for w in range(4):
        m = 0x03030303 << (2 * w)
        a(f"s_mov_b32 s{sMK}, {m:#x}\ns_mov_b32 s{sMK+1}, {m:#x}")
        for p in range(2): a(f"v_cndmask_b32 v{vSel[w][p]}, v{u1}, v{vE[p]}, s[{sMK}:{sMK+1}]")
    lx1, lx2 = a.newlabel("Lx"), a.newlabel("Lx")
    a(f"s_cmp_eq_u32 s{sW}, 5\ns_cbranch_scc1 {lx1}\ns_waitcnt vmcnt(16)\ns_branch {lx2}")
    a.label(lx1); a("s_waitcnt vmcnt(8)"); a.label(lx2)
    for j in range(4): a(f"v_lshlrev_b32 v{vF[2*j]}, 16, v{vXA+j}\nv_and_b32 v{vF[2*j+1]}, 0xffff0000, v{vXA+j}")
    def wave_sum(v, sdst):
        for m in ("quad_perm:[1,0,3,2]", "quad_perm:[2,3,0,1]", "row_half_mirror", "row_mirror"): dpp("add_f32", v, m)
        a(f"v_add_f32_dpp v{v}, v{v}, v{v} row_bcast:15 row_mask:0xa bank_mask:0xf")
        a(f"v_add_f32_dpp v{v}, v{v}, v{v} row_bcast:31 row_mask:0xc bank_mask:0xf")
        a(f"v_readlane_b32 s{sdst}, v{v}, 63")
    a(f"v_add_f32 v{u0}, v{vF[0]}, v{vF[1]}\nv_add_f32 v{u1}, v{vF[2]}, v{vF[3]}\nv_add_f32 v{u2}, v{vF[4]}, v{vF[5]}\nv_add_f32 v{u3}, v{vF[6]}, v{vF[7]}")
    a(f"v_add_f32 v{u0}, v{u0}, v{u1}\nv_add_f32 v{u2}, v{u2}, v{u3}\nv_add_f32 v{u0}, v{u0}, v{u2}")
    wave_sum(u0, sT0)
    a(f"v_mov_b32 v{u1}, 0x3b000000\nv_mul_f32 v{vMU}, s{sT0}, v{u1}")
    for j in range(8): a(f"v_sub_f32 v{vE[j]}, v{vF[j]}, v{vMU}")
    a(f"v_mul_f32 v{u0}, v{vE[0]}, v{vE[0]}\nv_mul_f32 v{u2}, v{vE[1]}, v{vE[1]}")
    for j in range(2, 8, 2): a(f"v_fmac_f32 v{u0}, v{vE[j]}, v{vE[j]}\nv_fmac_f32 v{u2}, v{vE[j+1]}, v{vE[j+1]}")
    a(f"v_add_f32 v{u0}, v{u0}, v{u2}")
    def rbf(v): a(f"v_cvt_pk_bf16_f32 v{v}, v{v}, v{v}\nv_and_b32 v{v}, 0xffff0000, v{v}")
    rbf(vMU)
    for j in range(8): a(f"v_sub_f32 v{vF[j]}, v{vF[j]}, v{vMU}")
    wave_sum(u0, sT0)
    for j in range(0, 8, 2): a(f"v_cvt_pk_bf16_f32 v{vE[j//2]}, v{vF[j]}, v{vF[j+1]}")
    a(f"v_mul_f32 v{u0}, s{sT0}, v{u1}")
    for j in range(0, 8, 2): a(f"v_lshlrev_b32 v{vF[j]}, 16, v{vE[j//2]}\nv_and_b32 v{vF[j+1]}, 0xffff0000, v{vE[j//2]}")
    rbf(u0)
    a(f"v_add_f32 v{u0}, 0x3727c5ac, v{u0}")
    rbf(u0)
    a(f"v_sqrt_f32 v{vSD}, v{u0}")
    rbf(vSD)
    a(f"v_rcp_f32 v{vR}, v{vSD}")
    for j in range(8): a(f"v_mul_f32 v{vF[j]}, v{vF[j]}, v{vR}")
    for j in range(0, 8, 2): a(f"v_cvt_pk_bf16_f32 v{vXA+j//2}, v{vF[j]}, v{vF[j+1]}")
    a(f"s_sub_u32 s{sT0}, s{sW}, 4\ns_lshl_b32 s{sT0}, s{sT0}, 10\nv_lshlrev_b32 v{u0}, 4, v{vL}\nv_add_u32 v{u0}, s{sT0}, v{u0}")
    a(f"ds_write_b128 v{u0}, v[{vXA}:{vXA+3}] offset:{L_XN0}")
    stamp()
    a(f"s_cmp_eq_u32 s{sW}, 5\ns_cbranch_scc1 L_prod_w1")
    a(f"s_lshl_b32 s{sT0}, s{sS}, 7\nv_lshlrev_b32 v{u1}, 5, v{vG4}\nv_add_u32 v{u1}, s{sT0}, v{u1}")
    a(f"ds_read_b128 v[{vPair}:{vPair+3}], v{u1} offset:{L_XN0}\nds_read_b128 v[{vPair+4}:{vPair+7}], v{u1} offset:{L_XN0+16}")
    a(f"v_lshrrev_b32 v{vRd}, 4, v{vL}\nv_lshlrev_b32 v{vRd}, 6, v{vRd}\nv_and_b32 v{u2}, 3, v{vL}\nv_lshl_add_u32 v{vRd}, v{u2}, 3, v{vRd}\nv_bfe_u32 v{u2}, v{vL}, 2, 2\nv_add_lshl_u32 v{vRd}, v{vRd}, v{u2}, 2")
    a(f"s_lshl_b32 s{sT0}, s{sG}, 3\ns_add_u32 s{sT0}, s{sT0}, s{sS}\ns_lshl_b32 s{sT0}, s{sT0}, 10\ns_add_u32 s{sT0}, s{sT0}, {QP0}\nv_lshlrev_b32 v{vPub}, 4, v{vL}\nv_add_u32 v{vPub}, s{sT0}, v{vPub}")
    a("s_waitcnt lgkmcnt(0)")
    get_tag()
    def pbuild(dst, t):
        for w in range(4): a(f"v_perm_b32 v{dst+w}, v{vPair+t//2}, v{vPair+t//2}, v{vSel[w][t%2]}")
    a.vm = vm_wq
    pbuild(vB[0], 0)
    for t in range(16):
        if t + 1 < 16: pbuild(vB[(t + 1) % 2], t + 1)
        a.wait(f"w{t}")
        if b1b is not None and t == b1b: a("s_barrier")
        mfma(vDp, vWt + 4 * t, vB[t % 2], t == 0)
    fin_tag()
    a(f"v_lshlrev_b32 v{u0}, 4, v{vL}\nv_mov_b32 v{vVal+1}, s{sTAGQ}\nv_mov_b32 v{vVal+3}, s{sTAGQ}")
    a(f"ds_write_b128 v{u0}, v[{vDp}:{vDp+3}] offset:{L_RQ}")
    a(f"ds_read_b32 v{vVal}, v{vRd} offset:{L_RQ}\nds_read_b32 v{vVal+2}, v{vRd} offset:{L_RQ+16}")
    a("s_waitcnt lgkmcnt(0)")
    if fastq: a(f"s_mov_b32 s{sFQ}, {FASTQ:#x}\nbuffer_store_dwordx4 v[{vVal}:{vVal+3}], v{vPub}, {srd(SWS)}, s{sFQ} offen")
    a(f"buffer_store_dwordx4 v[{vVal}:{vVal+3}], v{vPub}, {srd(SWS)}, 0 offen {stf}")
    if agather: a(f"v_mov_b32 v{u0}, 0\nv_mov_b32 v{u1}, s{sTAG}\nds_write_b32 v{u0}, v{u1} offset:{L_FLAG}")
    a("s_branch L_prod_done")
    a.label("L_prod_w1")
    a(f"s_lshl_b32 s{sT0}, s{sSROW}, 7\nv_lshlrev_b32 v{u1}, 4, v{vR8}\nv_add_u32 v{u1}, s{sT0}, v{u1}")
    a(f"ds_read_b128 v[{vPair}:{vPair+3}], v{u1} offset:{L_XN1}")
    addr_d(vRd, vL, u2)
    a(f"s_mul_i32 s{sT0}, s{sSROW}, {HP_STRIDE}\ns_lshl_b32 s{sT1}, s{sBLK}, 9\ns_add_u32 s{sT0}, s{sT0}, s{sT1}\ns_add_u32 s{sT0}, s{sT0}, {HP0}\ns_cmp_eq_u32 s{sHAS}, 1\ns_cselect_b32 s{sT0}, s{sT0}, {OOB}")
    a(f"v_lshlrev_b32 v{vPub}, 3, v{vL}\nv_add_u32 v{vPub}, s{sT0}, v{vPub}")
    a("s_waitcnt lgkmcnt(0)")
    get_tag()
    pbuild(vB[0], 0)
    for t in range(8):
        if t + 1 < 8: pbuild(vB[(t + 1) % 2], t + 1)
        a(f"s_waitcnt vmcnt({7-t})")
        if b1b is not None and t == 0: a("s_barrier")
        mfma(vDp, vWt + 4 * t, vB[t % 2], t == 0)
    fin_tag(q=False)
    a(f"v_lshlrev_b32 v{u0}, 4, v{vL}\nv_mov_b32 v{vVal+1}, s{sTAG}")
    a(f"ds_write_b128 v{u0}, v[{vDp}:{vDp+3}] offset:{L_RH}")
    a(f"ds_read_b32 v{vVal}, v{vRd} offset:{L_RH}\nds_read_b32 v{vVal+2}, v{vRd} offset:{L_RH+640}")
    a(f"s_waitcnt lgkmcnt(0)\nv_add_f32 v{vVal}, v{vVal}, v{vVal+2}")
    a(f"buffer_store_dwordx2 v[{vVal}:{vVal+1}], v{vPub}, {srd(SWS)}, 0 offen {stf}")
    a.label("L_prod_done")
    stamp()
    a(f"s_sub_u32 s{sT0}, s{sW}, 4\ns_lshl_b32 s{sT0}, s{sT0}, 6\nv_add_u32 v{u0}, s{sT0}, v{vL}")
    addr_d(vRd, u0, u2)
    a(f"s_lshl_b32 s{sT0}, s{sG}, 3\ns_add_u32 s{sT0}, s{sT0}, s{sS}\ns_lshl_b32 s{sT0}, s{sT0}, 10\ns_add_u32 s{sT0}, s{sT0}, {OP0}\nv_lshlrev_b32 v{vPub}, 3, v{u0}\nv_add_u32 v{vPub}, s{sT0}, v{vPub}")
    a(f"v_mov_b32 v{vVal+1}, s{sTAG}\ns_mov_b32 s{sREG}, {FASTD}")
    a("s_waitcnt lgkmcnt(0)\ns_barrier\ns_barrier\ns_barrier")
    o = L_RO // 256
    a(f"ds_read2st64_b32 v[{vF[0]}:{vF[1]}], v{vRd} offset0:{o} offset1:{o+4}\nds_read2st64_b32 v[{vF[2]}:{vF[3]}], v{vRd} offset0:{o+8} offset1:{o+12}")
    a(f"s_waitcnt lgkmcnt(0)\nv_add_f32 v{vF[0]}, v{vF[0]}, v{vF[1]}\nv_add_f32 v{vF[2]}, v{vF[2]}, v{vF[3]}\nv_add_f32 v{vVal}, v{vF[0]}, v{vF[2]}")
    if fast: a(f"buffer_store_dwordx2 v[{vVal}:{vVal+1}], v{vPub}, {srd(SWS)}, s{sREG} offen")
    a(f"buffer_store_dwordx2 v[{vVal}:{vVal+1}], v{vPub}, {srd(SWS)}, 0 offen {stf}")
    stamp()
    a(f"s_cmp_eq_u32 s{sW}, 5\ns_cbranch_scc0 L_ypub\ns_barrier\ns_branch L_aux_fin")
    a.label("L_ypub")
    addr_d(vRd, vL, u2)
    a(f"v_add_u32 v{u0}, 640, v{vRd}")
    a(f"s_lshl_b32 s{sT0}, s{sS}, 5\ns_add_u32 s{sT0}, s{sT0}, s{sG}\ns_lshl_b32 s{sT0}, s{sT0}, 9\ns_add_u32 s{sT0}, s{sT0}, {YP0}\nv_lshlrev_b32 v{vPub}, 3, v{vL}\nv_add_u32 v{vPub}, s{sT0}, v{vPub}")
    a("s_barrier")
    o = L_RY // 256
    a(f"ds_read2st64_b32 v[{vF[0]}:{vF[1]}], v{vRd} offset0:{o} offset1:{o+4}\nds_read2st64_b32 v[{vF[2]}:{vF[3]}], v{vRd} offset0:{o+8} offset1:{o+12}")
    a(f"ds_read2st64_b32 v[{vF[4]}:{vF[5]}], v{u0} offset0:{o} offset1:{o+4}\nds_read2st64_b32 v[{vF[6]}:{vF[7]}], v{u0} offset0:{o+8} offset1:{o+12}")
    a("s_waitcnt lgkmcnt(0)")
    a(f"v_add_f32 v{vF[0]}, v{vF[0]}, v{vF[1]}\nv_add_f32 v{vF[2]}, v{vF[2]}, v{vF[3]}\nv_add_f32 v{vF[4]}, v{vF[4]}, v{vF[5]}\nv_add_f32 v{vF[6]}, v{vF[6]}, v{vF[7]}")
    a(f"v_add_f32 v{vF[0]}, v{vF[0]}, v{vF[2]}\nv_add_f32 v{vF[4]}, v{vF[4]}, v{vF[6]}\nv_add_f32 v{vVal}, v{vF[0]}, v{vF[4]}")
    a(f"buffer_store_dwordx2 v[{vVal}:{vVal+1}], v{vPub}, {srd(SWS)}, 0 offen {stf}")
    stamp()
    a.label("L_aux_fin")
    dump()
    a("s_endpgm")

    a.label("L_gath")
    St.n = 0
    vGo, vGd = 6, 64
    tmp = list(range(12, 28))
    a(f"s_lshl_b32 s{sT0}, s{sG}, 13\ns_add_u32 s{sT0}, s{sT0}, {QP0}\nv_lshlrev_b32 v{vGo}, 10, v{vC}\nv_lshl_add_u32 v{vGo}, v{vR8}, 7, v{vGo}\nv_add_u32 v{vGo}, s{sT0}, v{vGo}")
    a(f"v_mov_b32 v28, 0\nv_mov_b32 v29, 0\nv_mov_b32 v30, 0\nv_mov_b32 v31, 0\nds_write_b128 v28, v[28:31] offset:{L_ZB}")
    a("s_waitcnt lgkmcnt(0)")
    get_tag()
    if tlb:
        a(f"s_lshl_b32 s{sT0}, s{sG}, 21\ns_add_u32 s{sT0}, s{sT0}, 0x180000\ns_add_u32 s40, s8, s{sT0}\ns_addc_u32 s41, s9, 0\ns_load_dword s44, s[40:41], 0")
        a(f"s_lshl_b32 s{sT0}, s{sG}, 17\ns_add_u32 s42, s12, s{sT0}\ns_addc_u32 s43, s13, 0\ns_load_dword s45, s[42:43], 0")
        a(f"s_mul_i32 s{sT0}, s{sG}, {43*1024}\ns_add_u32 s36, s18, s{sT0}\ns_addc_u32 s37, s19, 0\ns_load_dword s46, s[36:37], 0")
        a(f"s_load_dword s47, s[20:21], 0")
    a(f"s_mov_b32 s{SWS}, s24\ns_mov_b32 s{SWS+1}, s25\ns_mov_b32 s{SWS+2}, {ws_lim}\ns_mov_b32 s{SWS+3}, 0x20000")
    stamp()
    a("s_barrier")
    if b1b is not None: a("s_barrier")
    fin_tag()
    if touch:
        a(f"s_lshl_b32 s{sT0}, s{sG}, 3\ns_add_u32 s{sT0}, s{sT0}, s{sS}\ns_lshl_b32 s{sT0}, s{sT0}, 10\nv_lshlrev_b32 v40, 4, v{vL}\nv_add_u32 v40, s{sT0}, v40")
        a(f"v_add_u32 v41, {QP0}, v40\nbuffer_load_dwordx4 v[44:47], v41, {srd(SWS)}, 0 offen {ldf}")
        a(f"v_add_u32 v41, {OP0}, v40\nbuffer_load_dwordx4 v[48:51], v41, {srd(SWS)}, 0 offen {ldf}")
        a(f"s_lshl_b32 s{sT0}, s{sS}, 5\ns_add_u32 s{sT0}, s{sT0}, s{sG}\ns_lshl_b32 s{sT0}, s{sT0}, 9\ns_add_u32 s{sT0}, s{sT0}, {YP0}\nv_lshlrev_b32 v41, 3, v{vL}\nv_add_u32 v41, s{sT0}, v41")
        a(f"buffer_load_dwordx2 v[52:53], v41, {srd(SWS)}, 0 offen {ldf}")
    a(f"s_lshl_b32 s{sT0}, s{sG}, 7\ns_lshl_b32 s{sT1}, s{sS}, 4\ns_add_u32 s{sT0}, s{sT0}, s{sT1}\ns_add_u32 s{sT0}, s{sT0}, {ML0}")
    a(f"v_lshlrev_b32 v34, 3, v{vL}\nv_add_u32 v34, s{sT0}, v34\nv_cmp_gt_u32 vcc, 2, v{vL}\nv_mov_b32 v35, {OOB}\nv_cndmask_b32 v34, v35, v34, vcc")
    a(f"v_mov_b32 v37, s{sTAG}\ns_mov_b32 s{sFQ}, {FASTQ if fastq else 0:#x}")
    if agather:
        lsp, lgo = a.newlabel("Lsp"), a.newlabel("Lgo")
        a.label(lsp)
        a(f"ds_read_b32 v32, v28 offset:{L_FLAG}\ns_waitcnt lgkmcnt(0)\nv_readfirstlane_b32 s{sT0}, v32\ns_cmp_eq_u32 s{sT0}, s{sTAG}\ns_cbranch_scc1 {lgo}")
        a(f"s_sleep 1\ns_sub_u32 s{sRETRY}, s{sRETRY}, 1\ns_cmp_gt_i32 s{sRETRY}, 0\ns_cbranch_scc1 {lsp}")
        a.label(lgo)
        a(f"s_mov_b32 s{sRETRY}, 100000")
        stamp()
        def g1a(so): return "\n".join(f"buffer_load_dwordx4 v[{vGd+4*k}:{vGd+4*k+3}], v{vGo}, {srd(SWS)}, {so} offen offset:{16*k} {ldf}" for k in range(8))
        first = g1a(f"s{sFQ}") if fastq else g1a("0")
        a(first)
        xr = poll("G1", None, [vGd + 2 * k + 1 for k in range(16)], tmp, first, q=True, reissue2=(g1a("0") if fastq else None))
        a(f"v_cmp_ne_u32 vcc, 0, v{xr}\ns_cmp_eq_u64 vcc, 0\ns_cselect_b32 s{sT1}, {FASTD if fast else 0}, 0\nv_mov_b32 v33, s{sT1}\nds_write_b32 v28, v33 offset:{L_FLAG+8}")
        stamp()
        qv = [vGd + 2 * k for k in range(16)]
        red8(qv)
        for k in range(8): a(f"v_cvt_pk_bf16_f32 v{12+k}, v{qv[2*k]}, v{qv[2*k+1]}")
        a(f"v_lshlrev_b32 v33, 5, v{vR8}")
        a(f"s_mov_b64 s[{sEX}:{sEX+1}], exec\ns_mov_b32 exec_lo, 0x01010101\ns_mov_b32 exec_hi, 0x01010101")
        a(f"ds_write_b128 v33, v[12:15] offset:{L_QB}\nds_write_b128 v33, v[16:19] offset:{L_QB+16}")
        a(f"s_mov_b64 exec, s[{sEX}:{sEX+1}]")
    a(f"s_mov_b32 s{sREG}, {FASTD}\ns_waitcnt vmcnt(0) lgkmcnt(0)")
    stamp()
    a("s_barrier\ns_barrier\ns_barrier")
    ls = 40
    for i in range(4): a(f"ds_read_b128 v[{ls+4*i}:{ls+4*i+3}], v28 offset:{L_LS+16*i}")
    a(f"ds_read_b32 v38, v28 offset:{L_FLAG+4}")
    a(f"v_cmp_eq_u32 vcc, 0, v{vL}\ns_waitcnt lgkmcnt(0)")
    for st in (1, 2, 4, 8):
        for i in range(0, 16, 2 * st): a(f"v_add_f32 v{ls+i}, v{ls+i}, v{ls+i+st}")
    a(f"v_cndmask_b32 v36, v{ls}, v38, vcc")
    if fast: a(f"buffer_store_dwordx2 v[36:37], v34, {srd(SWS)}, s{sREG} offen")
    a(f"buffer_store_dwordx2 v[36:37], v34, {srd(SWS)}, 0 offen {stf}")
    stamp()
    a("s_barrier")
    dump()
    a.label("L_end")
    a("s_endpgm")
    return wrap(a.text(), 256, 448, lds, vgpr=256, sgpr=102)

if __name__ == "__main__":
    out = sys.argv[1]
    kw = {}
    for arg in sys.argv[2:]:
        k, v = arg.split("=")
        if k == "vint": kw[k] = tuple(int(c) for c in v)
        else: kw[k] = int(v, 0) if re.fullmatch(r"-?(0x)?[0-9a-fA-F]+", v) and not v.startswith("sc") else v.replace("+", " ")
    open(out, "w").write(gen(**kw))
```

```python
import sys, re
from asmlib import *

QP0, HP0, OP0, ML0, YP0, WSLIM = 0x1000, 0x42000, 0x60000, 0xA0000, 0xB0000, 0x170000
FASTQ = 0x120000
FASTD = 0x70000
HP_STRIDE = 1408 * 8
STAMP0 = 0x180000
OOB = 0x10000000
TAGC = 0x9E3779B9

L_RO, L_RY = 0, 4096
L_XN0, L_XN1, L_RQ, L_RH = 8192, 9216, 10240, 11264
L_QB, L_ZB, L_FLAG, L_MX, L_LS = 12288, 12544, 12560, 12608, 12672
LDS_TOTAL = 98304

sW, sG, sS, sTAG = 26, 27, 28, 29
SA, SB, SWO, SW2, SWS, SX, SOUT = 32, 36, 40, 44, 48, 52, 56
sT0, sT1, sT2, sT3 = 30, 31, 60, 61
sO1, sO2, sO3 = 62, 63, 64
sC = [None, 66, 68, 70]
sSCALE, sLOG2E = 72, 73
sEX = 74
sRETRY, sFQ = 76, 77
sHV = 78
sCQ = 80
sBLK, sSROW, sHAS = 81, 82, 83
sMK = 84
sOFF, sTAGQ, sREG = 86, 87, 91
sOFW, sOF2, sN2 = 96, 97, 98
def srd(r): return f"s[{r}:{r+3}]"

def gen(stamps=False, trace=0, W=10, W0=4, vrest=10, vint=(6, 1, 1, 1, 0), pvn=3, stf='sc1', ldf='sc1', touch=1, tlb=1,
        prefetch=1, fast=1, fastq=1, agather=1, lds=LDS_TOTAL, g2pos=0, b1b=None, eplain=1, g1b=0, Wv=None):
    a = Asm()
    ST = [92, 4, 6, 8, 10, 12, 14, 16, 18, 20]
    RT = {'G1': 88, 'G2': 89, 'G3': 90, 'G4': 90}
    class St: n = 0
    class Tr: n = 0
    def stamp():
        if stamps:
            i = St.n; St.n += 1
            assert i < 10
            a(f"s_memrealtime s[{ST[i]}:{ST[i]+1}]")
    def tr(level=2):
        if trace == level:
            a(f"s_memrealtime s[94:95]\ns_waitcnt lgkmcnt(0)\nv_writelane_b32 v27, s94, {Tr.n}")
            Tr.n += 1
    def dump(trace_too=False):
        if stamps:
            n = St.n
            if trace and trace_too:
                a(f"s_mov_b64 exec, -1\ns_lshl_b32 s{sT0}, s2, 2\ns_add_u32 s{sT0}, s{sT0}, s{sW}\ns_lshl_b32 s{sT0}, s{sT0}, 8\ns_add_u32 s{sT0}, s{sT0}, 0x1C0000\nv_lshlrev_b32 v2, 2, v1\nv_add_u32 v2, s{sT0}, v2")
                a(f"s_waitcnt lgkmcnt(0)\nbuffer_store_dword v27, v2, {srd(SWS)}, 0 offen")
            a("s_mov_b64 exec, 1\ns_waitcnt lgkmcnt(0) vmcnt(0)")
            a(f"s_lshl_b32 s{sT0}, s2, 3\ns_add_u32 s{sT0}, s{sT0}, s{sW}\ns_lshl_b32 s{sT0}, s{sT0}, 7\ns_add_u32 s{sT0}, s{sT0}, {STAMP0}\nv_mov_b32 v2, s{sT0}")
            a(f"v_mov_b32 v3, s100\nbuffer_store_dword v3, v2, {srd(SWS)}, 0 offen")
            a(f"v_mov_b32 v4, {n}\nbuffer_store_dword v4, v2, {srd(SWS)}, 0 offen offset:4")
            for i in range(n):
                a(f"v_mov_b32 v{30+i}, s{ST[i]}\nbuffer_store_dword v{30+i}, v2, {srd(SWS)}, 0 offen offset:{8+4*i}")
            for i, r in enumerate([88, 89, 90, sRETRY]):
                a(f"v_mov_b32 v{50+i}, s{r}\nbuffer_store_dword v{50+i}, v2, {srd(SWS)}, 0 offen offset:{64+4*i}")
        St.n = 0; Tr.n = 0

    vL, vI, vG4, vC, vR8 = 1, 2, 3, 4, 5
    def mk(r, p, nrec, offreg=None):
        if offreg is not None: a(f"s_add_u32 s{r}, s{p}, s{offreg}\ns_addc_u32 s{r+1}, s{p+1}, 0")
        else: a(f"s_mov_b32 s{r}, s{p}\ns_mov_b32 s{r+1}, s{p+1}")
        a(f"s_mov_b32 s{r+2}, {nrec}\ns_mov_b32 s{r+3}, 0x20000")
    def mfma(D, A, B, first):
        a(f"v_mfma_f32_16x16x32_bf16 v[{D}:{D+3}], v[{A}:{A+3}], v[{B}:{B+3}], " + ("0" if first else f"v[{D}:{D+3}]"))
    def dpp(op, v, m): a(f"v_{op}_dpp v{v}, v{v}, v{v} {m} row_mask:0xf bank_mask:0xf")
    def tagcheck(regs, tmp, mask=None, q=False):
        sT = sTAGQ if q else sTAG
        xs, regs, k = [], list(regs), 0
        while regs:
            if len(regs) >= 2:
                a(f"v_bitop3_b32 v{tmp[k]}, v{regs[0]}, v{regs[1]}, s{sT} bitop3:0x7e"); regs = regs[2:]
            else:
                a(f"v_xor_b32 v{tmp[k]}, s{sT}, v{regs[0]}"); regs = regs[1:]
            xs.append(tmp[k]); k += 1
        while len(xs) > 1:
            if len(xs) >= 3:
                a(f"v_or3_b32 v{xs[0]}, v{xs[0]}, v{xs[1]}, v{xs[2]}"); xs = xs[3:] + [xs[0]]
            else:
                a(f"v_or_b32 v{xs[0]}, v{xs[0]}, v{xs[1]}"); xs = [xs[0]]
        if q:
            a(f"v_and_b32 v{tmp[-1]}, 0xfffffff0, v{xs[0]}\nv_cmp_ne_u32 vcc, 0, v{tmp[-1]}")
            return xs[0]
        a(f"v_cmp_ne_u32 vcc, 0, v{xs[0]}")
        if mask is not None: a(f"s_and_b64 vcc, vcc, s[{mask}:{mask+1}]")
    def poll(name, waitname, regs, tmp, reissue, mask=None, q=False, reissue2=None):
        ok, rt = a.newlabel("Lok"), a.newlabel("Lrt")
        if waitname: a.wait(waitname)
        else: a("s_waitcnt vmcnt(0)")
        xr = tagcheck(regs, tmp, mask, q)
        a(f"s_cbranch_vccz {ok}")
        a.label(rt)
        for txt in ([reissue] if reissue2 is None else [reissue, reissue2]):
            a(f"s_sub_u32 s{sRETRY}, s{sRETRY}, 1")
            a(txt)
            a("s_waitcnt vmcnt(0)")
            tagcheck(regs, tmp, mask, q)
            a(f"s_cbranch_vccz {ok}")
        a(f"s_cmp_gt_i32 s{sRETRY}, 0\ns_cbranch_scc1 {rt}")
        a.label(ok)
        if stamps: a(f"s_mov_b32 s{RT[name]}, s{sRETRY}")
        return xr
    def red8(vals, op="add_f32"):
        for m in ("quad_perm:[1,0,3,2]", "quad_perm:[2,3,0,1]", "row_half_mirror"):
            for v in vals: dpp(op, v, m)
    def get_tag(): a(f"s_load_dword s{sTAG}, s[24:25], 0")
    def fin_tag(q=True):
        if q: a(f"s_getreg_b32 s{sTAGQ}, hwreg(HW_REG_XCC_ID, 0, 4)")
        a(f"s_waitcnt lgkmcnt(0)\ns_add_u32 s{sTAG}, s{sTAG}, {TAGC:#x}")
        if q: a(f"s_and_b32 s{sT3}, s{sTAG}, 0xfffffff0\ns_or_b32 s{sTAGQ}, s{sTAGQ}, s{sT3}")
    def addr_d(dst, d, tmp):
        a(f"v_lshrrev_b32 v{dst}, 5, v{d}\nv_lshlrev_b32 v{dst}, 6, v{dst}\nv_and_b32 v{tmp}, 7, v{d}\nv_lshl_add_u32 v{dst}, v{tmp}, 2, v{dst}\nv_bfe_u32 v{tmp}, v{d}, 3, 2\nv_add_lshl_u32 v{dst}, v{dst}, v{tmp}, 2")
    ws_lim = WSLIM if not stamps else 0x240000

    a("s_cmp_ge_u32 s2, 256\ns_cbranch_scc1 L_end")
    if stamps: a("s_memrealtime s[100:101]")
    a("s_load_dwordx16 s[4:19], s[0:1], 0")
    a("s_load_dwordx4 s[20:23], s[0:1], 64")
    a("s_load_dwordx2 s[24:25], s[0:1], 80")
    if prefetch:
        a("s_getpc_b64 s[84:85]")
        a.label("L_pc")
        a(f"v_lshlrev_b32 v8, 7, v0\nv_cmp_gt_u32 vcc, (L_end-L_pc)/128, v0\ns_and_saveexec_b64 s[{sEX}:{sEX+1}], vcc\ns_cbranch_execz L_pf_done")
        a("v_mov_b32 v9, s85\nv_add_co_u32 v8, vcc, s84, v8\nv_addc_co_u32 v9, vcc, 0, v9, vcc\nglobal_load_dword v248, v[8:9], off")
        a.label("L_pf_done")
        a(f"s_mov_b64 exec, s[{sEX}:{sEX+1}]")
    a(f"v_lshrrev_b32 v{vI}, 6, v0\nv_and_b32 v{vL}, 63, v0\nv_readfirstlane_b32 s{sW}, v{vI}")
    a(f"s_and_b32 s{sT0}, s2, 7\ns_lshr_b32 s{sT1}, s2, 3\ns_lshl_b32 s{sG}, s{sT0}, 2\ns_and_b32 s{sT2}, s{sT1}, 3\ns_add_u32 s{sG}, s{sG}, s{sT2}\ns_lshr_b32 s{sS}, s2, 5")
    a(f"v_and_b32 v{vI}, 15, v{vL}\nv_lshrrev_b32 v{vG4}, 4, v{vL}\nv_and_b32 v{vC}, 7, v{vL}\nv_lshrrev_b32 v{vR8}, 3, v{vL}")
    a(f"s_mov_b32 s{sRETRY}, 100000")
    if stamps: a(f"s_mov_b32 s88, 100000\ns_mov_b32 s89, 100000\ns_mov_b32 s90, 100000")
    a(f"s_cmp_ge_u32 s{sW}, 4\ns_cbranch_scc1 L_aux")

    vKo, vVo, vWOo, vW2o, vGq, vGm, vGh, vRAW, vSL = 6, 7, 8, 9, 10, 11, 12, 13, 14
    vQA = [15, 16, 17, 18]
    vOUT = 19; vM = [20, 21, 22, 23]; vXD, vMX, vG1 = 24, 25, 26
    vK, vV, vW2, vWO, vBq, vD = 28, 92, 156, 164, 180, 196
    vB0, vB1, vGa, vPP = 212, 216, 220, 232
    vF = list(range(236, 244)); t0, t1, t2, t3 = 244, 245, 246, 247
    vDo, vDy = 200, 204
    SK, SV = SA, SB
    a.vm = []
    a(f"v_lshrrev_b32 v{vKo}, 2, v{vI}\nv_and_b32 v{t0}, 3, v{vI}\nv_lshlrev_b32 v{vKo}, 12, v{vKo}\nv_lshl_add_u32 v{t0}, v{vG4}, 2, v{t0}\nv_lshl_add_u32 v{vKo}, v{t0}, 4, v{vKo}")
    a(f"s_lshl_b32 s{sT0}, s{sG}, 21\ns_lshl_b32 s{sT1}, s{sS}, 16\ns_add_u32 s{sT0}, s{sT0}, s{sT1}\ns_lshl_b32 s{sT1}, s{sW}, 10\ns_add_u32 s{sT0}, s{sT0}, s{sT1}\ns_add_u32 s{sOFF}, s{sT0}, 0x180000")
    a(f"s_mov_b32 s{sO1}, 16384\ns_mov_b32 s{sO2}, 32768\ns_mov_b32 s{sO3}, 49152")
    a(f"v_lshlrev_b32 v{vVo}, 12, v{vG4}\nv_lshl_add_u32 v{vVo}, v{vI}, 4, v{vVo}")
    a(f"v_lshlrev_b32 v{t0}, 4, v{t0}\nv_add_u32 v{t0}, {L_QB}, v{t0}\nv_mov_b32 v{t1}, {L_ZB}")
    for tt in range(4):
        m = 0x000F000F << (4 * tt)
        a(f"s_mov_b32 s{sMK}, {m:#x}\ns_mov_b32 s{sMK+1}, {m:#x}\nv_cndmask_b32 v{vQA[tt]}, v{t1}, v{t0}, s[{sMK}:{sMK+1}]")
    for c in range(1, 4):
        m = 0x11111111 << c
        a(f"s_mov_b32 s{sC[c]}, {m:#x}\ns_mov_b32 s{sC[c]+1}, {m:#x}")
    a(f"s_mov_b32 s{sSCALE}, 0x3db504f3\ns_mov_b32 s{sLOG2E}, 0x3fb8aa3b\ns_mov_b32 s{sFQ}, {FASTQ if fastq else 0:#x}")
    a("s_waitcnt lgkmcnt(0)")
    mk(SK, 6, 62464, sOFF); mk(SV, 8, 62464, sOFF)
    get_tag()
    so4 = ["0", f"s{sO1}", f"s{sO2}", f"s{sO3}"]
    def ldK(t): a.vmem(f"K{t}", f"buffer_load_dwordx4 v[{vK+4*t}:{vK+4*t+3}], v{vKo}, {srd(SK)}, {so4[t%4]} offen offset:{(t//4)*256} nt")
    def ldV(t): a.vmem(f"V{t}", f"buffer_load_dwordx4 v[{vV+4*t}:{vV+4*t+3}], v{vVo}, {srd(SV)}, {so4[t%4]} offen offset:{(t//4)*256} nt")
    def ldWO(t): a.vmem(f"wo{t}", f"buffer_load_dwordx4 v[{vWO+4*t}:{vWO+4*t+3}], v{vWOo}, {srd(SWO)}, 0 offen offset:{t*1024} nt")
    def ldW2(t): a.vmem(f"w2{t}", f"buffer_load_dwordx4 v[{vW2+4*t}:{vW2+4*t+3}], v{vW2o}, {srd(SW2)}, 0 offen offset:{t*1024} nt")
    g2txt = f"buffer_load_dwordx4 v[{vGa+8}:{vGa+11}], v{vGh}, {srd(SWS)}, 0 offen {ldf}"
    def ldG2(): a.vmem("G2", g2txt)
    def g1(so):
        return (f"buffer_load_dwordx4 v[{vGa}:{vGa+3}], v{vG1}, {srd(SWS)}, {so} offen {ldf}\n"
                f"buffer_load_dwordx4 v[{vGa+4}:{vGa+7}], v{vG1}, {srd(SWS)}, {so} offen offset:16 {ldf}")
    g1txt = g1(f"s{sFQ}") if fastq else g1("0")
    def ldG1():
        t_ = g1txt.split("\n"); a.vmem("G1a", t_[0]); a.vmem("G1b", t_[1])
    def ldG1B():
        a.vmem("G1c", f"buffer_load_dwordx4 v[{vWO}:{vWO+3}], v{vG1}, {srd(SWS)}, s{sFQ} offen {ldf}")
        a.vmem("G1d", f"buffer_load_dwordx4 v[{vWO+4}:{vWO+7}], v{vG1}, {srd(SWS)}, s{sFQ} offen offset:16 {ldf}")
    tailq = {0: [("G2", 0), ("W2", 0), ("W2", 1)] + [("WO", t) for t in range(4)],
             1: [("W2", 0), ("W2", 1)] + [("WO", t) for t in range(4)] + [("G2", 0)]}[g2pos]
    vs = [("V", t) for t in range(16)]
    if g1b and not agather: vs = vs[:g1b] + [("G1B", 0)] + vs[g1b:]
    queue = [("K", t) for t in range(16)] + ([] if agather else [("G1", 0)]) + vs + tailq
    order = [(f"{k}{t}" if k in ("K", "V") else None) for k, t in queue]
    def nxt(n=1):
        for _ in range(n):
            if not queue: return
            k, t = queue.pop(0)
            {"K": lambda: ldK(t), "V": lambda: ldV(t), "G1": ldG1, "G1B": ldG1B, "G2": ldG2, "W2": lambda: ldW2(t), "WO": lambda: ldWO(t)}[k]()
    stamp()
    a("s_barrier")
    npre = 16 + (0 if agather else 1) + vrest + (1 if (g1b and not agather and g1b <= vrest) else 0)
    def nxt_free():
        n = 1; nxt()
        while queue and queue[0][0] in ("G1", "G1B"): nxt(); n += 1
        return n
    issued = 0
    while issued < min(W0, npre): issued += nxt_free()
    a(f"s_lshr_b32 s{sCQ}, s{sG}, 1")
    a(f"v_lshlrev_b32 v{vWOo}, 12, v{vR8}\nv_lshl_add_u32 v{vWOo}, v{vC}, 4, v{vWOo}")
    a(f"v_lshlrev_b32 v{vW2o}, 11, v{vR8}\nv_lshl_add_u32 v{vW2o}, v{vC}, 4, v{vW2o}")
    a(f"s_lshl_b32 s{sT0}, s{sG}, 7\ns_lshl_b32 s{sT1}, s{sW}, 5\ns_add_u32 s{sT0}, s{sT0}, s{sT1}\ns_lshl_b32 s{sT0}, s{sT0}, 10\ns_lshl_b32 s{sT1}, s{sS}, 7\ns_add_u32 s{sT0}, s{sT0}, s{sT1}")
    mk(SWO, 12, 31 * 1024 + 128, sT0)
    a(f"s_mul_i32 s{sT0}, s{sCQ}, 86\ns_and_b32 s{sT1}, s{sG}, 1\ns_mul_i32 s{sT2}, s{sT1}, 44\ns_add_u32 s{sT0}, s{sT0}, s{sT2}\ns_mul_i32 s{sT2}, s{sW}, 12\ns_add_u32 s{sT0}, s{sT0}, s{sT2}")
    a(f"s_lshl_b32 s{sT1}, s{sT1}, 1\ns_sub_u32 s{sT1}, 44, s{sT1}\ns_sub_u32 s{sT1}, s{sT1}, s{sT2}\ns_min_u32 s{sT3}, s{sT1}, 12")
    a(f"v_mul_u32_u24 v{vGh}, {HP_STRIDE}, v{vC}\nv_lshl_add_u32 v{vGh}, v{vR8}, 4, v{vGh}\ns_lshl_b32 s{sT1}, s{sT0}, 3\ns_add_u32 s{sT1}, s{sT1}, {HP0}\nv_add_u32 v{vGh}, s{sT1}, v{vGh}")
    a(f"v_lshlrev_b32 v{t0}, 1, v{vR8}\nv_cmp_gt_u32 s[{sHV}:{sHV+1}], s{sT3}, v{t0}\nv_mov_b32 v{t1}, {OOB}\nv_cndmask_b32 v{vGh}, v{t1}, v{vGh}, s[{sHV}:{sHV+1}]")
    a(f"s_lshl_b32 s{sT0}, s{sT0}, 10\ns_lshl_b32 s{sT1}, s{sS}, 7\ns_add_u32 s{sT0}, s{sT0}, s{sT1}")
    a(f"s_add_u32 s{SW2}, s18, s{sT0}\ns_addc_u32 s{SW2+1}, s19, 0\ns_sub_u32 s{sT3}, s{sT3}, 1\ns_lshl_b32 s{sT3}, s{sT3}, 10\ns_add_u32 s{SW2+2}, s{sT3}, 128\ns_mov_b32 s{SW2+3}, 0x20000")
    mk(SWS, 24, ws_lim); mk(SX, 4, 1024); mk(SOUT, 20, 1024)
    a(f"s_lshl_b32 s{sT0}, s{sS}, 7\ns_lshl_b32 s{sT1}, s{sCQ}, 3\ns_add_u32 s{sT0}, s{sT0}, s{sT1}\nv_and_b32 v{vOUT}, 1, v{vL}\nv_lshlrev_b32 v{vOUT}, 2, v{vOUT}\nv_add_u32 v{vOUT}, s{sT0}, v{vOUT}")
    a(f"v_and_b32 v{t0}, 1, v{vL}\nv_lshlrev_b32 v{t0}, 4, v{t0}\nv_mov_b32 v{t1}, 0xffff\nv_lshlrev_b32 v{t0}, v{t0}, v{t1}")
    for w in range(4):
        m = 0x03030303 << (2 * w)
        a(f"s_mov_b32 s{sMK}, {m:#x}\ns_mov_b32 s{sMK+1}, {m:#x}\nv_cndmask_b32 v{vM[w]}, 0, v{t0}, s[{sMK}:{sMK+1}]")
    a(f"s_lshl_b32 s{sT0}, s{sG}, 13\ns_lshl_b32 s{sT1}, s{sW}, 8\ns_add_u32 s{sT0}, s{sT0}, s{sT1}\ns_add_u32 s{sT0}, s{sT0}, {OP0}")
    a(f"v_lshlrev_b32 v{vGq}, 10, v{vC}\nv_lshl_add_u32 v{vGq}, v{vR8}, 5, v{vGq}\nv_add_u32 v{vGq}, s{sT0}, v{vGq}")
    if not agather: a(f"v_subrev_u32 v{vG1}, {OP0-QP0}, v{vGq}")
    a(f"s_lshl_b32 s{sT0}, s{sG}, 7\ns_add_u32 s{sT0}, s{sT0}, {ML0}\nv_lshlrev_b32 v{vGm}, 4, v{vC}\nv_add_u32 v{vGm}, s{sT0}, v{vGm}")
    a(f"s_lshl_b32 s{sT0}, s{sW}, 10\nv_lshlrev_b32 v{vRAW}, 4, v{vL}\nv_add_u32 v{vRAW}, s{sT0}, v{vRAW}")
    a(f"s_lshl_b32 s{sT0}, s{sW}, 4\nv_lshlrev_b32 v{vSL}, 2, v{vG4}\nv_add_u32 v{vSL}, s{sT0}, v{vSL}")
    stamp()
    if b1b is not None:
        a("s_barrier")
        while issued < min(W, npre): issued += nxt_free()
    wi = 0
    while issued < npre:
        while order[wi] is None: wi += 1
        a.wait(order[wi]); wi += 1
        tr(1)
        issued += nxt_free()
        wcur = W if (Wv is None or (queue and queue[0][0] == "K")) else Wv
        if issued < npre and issued - wi < wcur: issued += nxt_free()
    fin_tag(q=not agather)
    a.wait("K15")
    tr()
    stamp()
    if not agather:
        g1regs = [vGa + 1, vGa + 3, vGa + 5, vGa + 7]
        if g1b:
            lg = a.newlabel("Lg1ok")
            a.wait("G1b")
            xr = tagcheck(g1regs, vF, None, True)
            a(f"s_cbranch_vccz {lg}")
            a.wait("G1d")
            for j in range(8): a(f"v_mov_b32 v{vGa+j}, v{vWO+j}")
            poll("G1", "G1d", g1regs, vF, g1("0"), q=True, reissue2=(g1txt if fastq else None))
            a.label(lg)
        else:
            xr = poll("G1", "G1b", g1regs, vF, g1("0"), q=True, reissue2=(g1txt if fastq else None))
        a(f"v_cmp_ne_u32 vcc, 0, v{xr}\ns_cmp_eq_u64 vcc, 0\ns_cselect_b32 s{sREG}, {FASTD if fast else 0}, 0")
        nxt(vint[0])
        qv = [vGa, vGa + 2, vGa + 4, vGa + 6]
        red8(qv)
        a(f"v_cvt_pk_bf16_f32 v{vGa}, v{qv[0]}, v{qv[1]}\nv_cvt_pk_bf16_f32 v{vGa+1}, v{qv[2]}, v{qv[3]}")
        a(f"s_lshl_b32 s{sT0}, s{sW}, 6\nv_lshlrev_b32 v{t0}, 3, v{vR8}\nv_add_u32 v{t0}, s{sT0}, v{t0}")
        a(f"s_mov_b64 s[{sEX}:{sEX+1}], exec\ns_mov_b32 exec_lo, 0x01010101\ns_mov_b32 exec_hi, 0x01010101")
        a(f"ds_write_b64 v{t0}, v[{vGa}:{vGa+1}] offset:{L_QB}")
        a(f"s_mov_b64 exec, s[{sEX}:{sEX+1}]")
        a(f"v_add_u32 v{vGq}, s{sREG}, v{vGq}\nv_add_u32 v{vGm}, s{sREG}, v{vGm}")
        a("s_waitcnt lgkmcnt(0)")
    tr()
    a("s_barrier")
    tr()
    for tt in range(4): a(f"ds_read_b128 v[{vBq+4*tt}:{vBq+4*tt+3}], v{vQA[tt]}")
    if agather:
        a(f"v_mov_b32 v{t2}, 0\nds_read_b32 v{t3}, v{t2} offset:{L_FLAG+8}")
        nxt(vint[0])
    a.vmem("xd", f"buffer_load_dword v{vXD}, v{vOUT}, {srd(SX)}, 0 offen")
    if not agather: nxt(vint[1])
    ex = 1 if agather else 0
    for tt in range(4):
        a(f"s_waitcnt lgkmcnt({3-tt+ex})")
        for u in range(4): mfma(vD + 4 * u, vK + 4 * (4 * u + tt), vBq + 4 * tt, tt == 0)
    if agather:
        a(f"s_waitcnt lgkmcnt(0)\nv_add_u32 v{vGq}, v{t3}, v{vGq}\nv_add_u32 v{vGm}, v{t3}, v{vGm}")
        nxt(vint[1])
    tr()
    nxt(vint[2])
    sc = vF[:4]
    for r_ in (1, 2, 3):
        for u in range(4):
            src0 = vD + 4 * u if r_ == 1 else sc[u]
            a(f"v_cndmask_b32 v{sc[u]}, v{src0}, v{vD+4*u+r_}, s[{sC[r_]}:{sC[r_]+1}]")
    for m in ("quad_perm:[1,0,3,2]", "quad_perm:[2,3,0,1]"):
        for u in range(4): dpp("add_f32", sc[u], m)
    def round2():
        for u in (0, 2): a(f"v_cvt_pk_bf16_f32 v{t0+u//2}, v{sc[u]}, v{sc[u+1]}")
        for u in (0, 2): a(f"v_lshlrev_b32 v{sc[u]}, 16, v{t0+u//2}\nv_and_b32 v{sc[u+1]}, 0xffff0000, v{t0+u//2}")
    round2()
    for u in range(4): a(f"v_mul_f32 v{sc[u]}, s{sSCALE}, v{sc[u]}")
    round2()
    a(f"v_max3_f32 v{t0}, v{sc[0]}, v{sc[1]}, v{sc[2]}\nv_max_f32 v{t0}, v{t0}, v{sc[3]}")
    for m in ("row_ror:4", "row_ror:8"): dpp("max_f32", t0, m)
    a(f"ds_write_b32 v{vSL}, v{t0} offset:{L_MX}")
    nxt(vint[3])
    a(f"v_mov_b32 v{t1}, 0")
    tr()
    a("s_waitcnt lgkmcnt(0)\ns_barrier")
    tr()
    mx = vD
    for i in range(4): a(f"ds_read_b128 v[{mx+4*i}:{mx+4*i+3}], v{t1} offset:{L_MX+16*i}")
    nxt(vint[4])
    a("s_waitcnt lgkmcnt(0)")
    a(f"v_max3_f32 v{mx}, v{mx}, v{mx+1}, v{mx+2}\nv_max3_f32 v{mx+3}, v{mx+3}, v{mx+4}, v{mx+5}\nv_max3_f32 v{mx+6}, v{mx+6}, v{mx+7}, v{mx+8}\nv_max3_f32 v{mx+9}, v{mx+9}, v{mx+10}, v{mx+11}\nv_max3_f32 v{mx+12}, v{mx+12}, v{mx+13}, v{mx+14}")
    a(f"v_max3_f32 v{mx}, v{mx}, v{mx+3}, v{mx+6}\nv_max3_f32 v{mx+9}, v{mx+9}, v{mx+12}, v{mx+15}\nv_max_f32 v{vMX}, v{mx}, v{mx+9}")
    for u in range(4): a(f"v_sub_f32 v{sc[u]}, v{sc[u]}, v{vMX}")
    for u in range(4): a(f"v_mul_f32 v{sc[u]}, s{sLOG2E}, v{sc[u]}")
    for u in range(4): a(f"v_exp_f32 v{sc[u]}, v{sc[u]}")
    for u in range(4): a(f"v_cvt_pk_bf16_f32 v{vPP+u}, v{sc[u]}, v{sc[u]}")
    Bs = [vB0, vB1]
    def build(dst, pp, d=None):
        for w in range(4):
            if d is None: a(f"v_and_b32 v{dst+w}, v{pp}, v{vM[w]}")
            else: a(f"v_and_b32_dpp v{dst+w}, v{pp}, v{vM[w]} {d} row_mask:0xf bank_mask:0xf")
    a(f"v_add_f32 v{t0}, v{sc[0]}, v{sc[1]}\nv_add_f32 v{t1}, v{sc[2]}, v{sc[3]}\nv_add_f32 v{t0}, v{t0}, v{t1}")
    build(Bs[0], vPP, "row_newbcast:0")
    for m in ("row_ror:4", "row_ror:8"): dpp("add_f32", t0, m)
    a(f"ds_write_b32 v{vSL}, v{t0} offset:{L_LS}")
    a(f"v_mov_b32 v{t1}, 0\nds_write_b32 v{t1}, v{vMX} offset:{L_FLAG+4}")
    tr()
    stamp()
    for t in range(16):
        if t + 1 < 16: build(Bs[(t + 1) % 2], vPP + (t + 1) // 4, f"row_newbcast:{4*((t+1)%4)}")
        a.wait(f"V{t}"); tr(1); mfma(vDo, vV + 4 * t, Bs[t % 2], t == 0); nxt(pvn)
    assert not queue
    tr()
    stamp()
    a(f"ds_write_b128 v{vRAW}, v[{vDo}:{vDo+3}] offset:{L_RO}")
    a("s_waitcnt lgkmcnt(0)\ns_barrier")
    tr()
    poll("G2", "G2", [vGa + 9, vGa + 11], vF, g2txt, mask=sHV)
    tr()
    hv = [vGa + 8, vGa + 10]
    red8(hv)
    a(f"v_cvt_pk_bf16_f32 v{t0}, v{hv[0]}, v{hv[1]}\nv_lshlrev_b32 v{hv[0]}, 16, v{t0}\nv_and_b32 v{hv[1]}, 0xffff0000, v{t0}")
    ev = [vF[0], vF[1]]
    for j in range(2): a(f"v_mul_f32 v{ev[j]}, s{sLOG2E}, v{hv[j]}")
    for j in range(2): a(f"v_exp_f32 v{ev[j]}, -v{ev[j]}")
    for j in range(2): a(f"v_add_f32 v{ev[j]}, 1.0, v{ev[j]}")
    for j in range(2): a(f"v_rcp_f32 v{ev[j]}, v{ev[j]}")
    for j in range(2): a(f"v_mul_f32 v{hv[j]}, v{hv[j]}, v{ev[j]}")
    for j in range(2): a(f"v_cvt_pk_bf16_f32 v{hv[j]}, v{hv[j]}, v{hv[j]}")
    for j in range(2): a(f"v_cndmask_b32 v{hv[j]}, 0, v{hv[j]}, s[{sHV}:{sHV+1}]")
    build(Bs[0], hv[0]); build(Bs[1], hv[1])
    g3txt = (f"buffer_load_dwordx4 v[{vGa}:{vGa+3}], v{vGq}, {srd(SWS)}, 0 offen {ldf}\n"
             f"buffer_load_dwordx4 v[{vGa+4}:{vGa+7}], v{vGq}, {srd(SWS)}, 0 offen offset:16 {ldf}\n"
             f"buffer_load_dwordx4 v[{vGa+8}:{vGa+11}], v{vGm}, {srd(SWS)}, 0 offen {ldf}")
    a.wait("w20"); mfma(vDy, vW2, Bs[0], True)
    a.wait("w21"); mfma(vDy, vW2 + 4, Bs[1], False)
    tr()
    stamp()
    a(g3txt)
    poll("G3", None, [vGa + 1, vGa + 3, vGa + 5, vGa + 7, vGa + 9, vGa + 11], vF, g3txt)
    tr()
    stamp()
    vm_, vl_ = vGa + 8, vGa + 10
    a(f"v_mov_b32 v{t0}, v{vm_}")
    red8([t0], "max_f32")
    a(f"v_sub_f32 v{t0}, v{vm_}, v{t0}\nv_mul_f32 v{t0}, s{sLOG2E}, v{t0}\nv_exp_f32 v{t0}, v{t0}")
    ov = [vGa, vGa + 2, vGa + 4, vGa + 6]
    a(f"v_mul_f32 v{vl_}, v{vl_}, v{t0}")
    for v in ov: a(f"v_mul_f32 v{v}, v{v}, v{t0}")
    red8([vl_] + ov)
    a(f"v_rcp_f32 v{vl_}, v{vl_}")
    for v in ov: a(f"v_mul_f32 v{v}, v{v}, v{vl_}")
    for v in ov: a(f"v_cvt_pk_bf16_f32 v{v}, v{v}, v{v}")
    build(Bs[0], ov[0])
    for t in range(4):
        if t + 1 < 4: build(Bs[(t + 1) % 2], ov[t + 1])
        mfma(vDy, vWO + 4 * t, Bs[t % 2], False)
    a(f"s_lshl_b32 s{sT0}, s{sS}, 14\ns_lshl_b32 s{sT1}, s{sCQ}, 5\ns_add_u32 s{sT0}, s{sT0}, s{sT1}\ns_add_u32 s{sT0}, s{sT0}, {YP0}")
    a(f"v_lshrrev_b32 v{t0}, 1, v{vL}\nv_lshlrev_b32 v{t0}, 9, v{t0}\nv_and_b32 v{t1}, 1, v{vL}\nv_lshl_add_u32 v{t0}, v{t1}, 4, v{t0}\nv_add_u32 v{vGq}, s{sT0}, v{t0}")
    a(f"ds_write_b128 v{vRAW}, v[{vDy}:{vDy+3}] offset:{L_RY}")
    tr()
    a("s_waitcnt lgkmcnt(0)\ns_barrier")
    tr()
    stamp()
    lfin = "L_main_fin"
    a(f"s_and_b32 s{sT0}, s{sG}, 1\ns_or_b32 s{sT0}, s{sT0}, s{sW}\ns_cmp_eq_u32 s{sT0}, 0\ns_cbranch_scc0 {lfin}")
    g4txt = f"buffer_load_dwordx4 v[{vGa}:{vGa+3}], v{vGq}, {srd(SWS)}, 0 offen {ldf}"
    a(g4txt)
    a(f"v_lshlrev_b32 v{t2}, 16, v{vXD}\nv_and_b32 v{t3}, 0xffff0000, v{vXD}")
    poll("G4", None, [vGa + 1, vGa + 3], vF, g4txt)
    yv = [vGa, vGa + 2]
    for m in ("quad_perm:[2,3,0,1]", "row_ror:4", "row_ror:8"):
        for v in yv: dpp("add_f32", v, m)
    for sw in ("v_permlane16_swap_b32", "v_permlane32_swap_b32"):
        a(f"v_mov_b32 v{vF[0]}, v{yv[0]}\nv_mov_b32 v{vF[1]}, v{yv[1]}")
        a(f"{sw} v{yv[0]}, v{vF[0]}\n{sw} v{yv[1]}, v{vF[1]}")
        a(f"v_add_f32 v{yv[0]}, v{yv[0]}, v{vF[0]}\nv_add_f32 v{yv[1]}, v{yv[1]}, v{vF[1]}")
    a(f"v_add_f32 v{yv[0]}, v{yv[0]}, v{t2}\nv_add_f32 v{yv[1]}, v{yv[1]}, v{t3}\nv_cvt_pk_bf16_f32 v{yv[0]}, v{yv[0]}, v{yv[1]}")
    a("s_mov_b64 exec, 3")
    a(f"buffer_store_dword v{yv[0]}, v{vOUT}, {srd(SOUT)}, 0 offen")
    a(f"s_or_b32 s{sT0}, s{sS}, s{sG}\ns_cmp_eq_u32 s{sT0}, 0\ns_cbranch_scc0 {lfin}")
    a(f"s_mov_b64 exec, 1\nv_mov_b32 v{t0}, 0\nv_mov_b32 v{t1}, s{sTAG}\nbuffer_store_dword v{t1}, v{t0}, {srd(SWS)}, 0 offen" + ("" if eplain else " " + stf))
    a.label(lfin)
    stamp()
    dump(trace_too=True)
    a("s_endpgm")

    a.label("L_aux")
    a(f"s_cmp_eq_u32 s{sW}, 6\ns_cbranch_scc1 L_gath")
    vXA = 8
    vF = list(range(12, 20)); vE = list(range(20, 28))
    vSel = [[28 + 2 * w + p for p in range(2)] for w in range(4)]
    vPair = 36; vB = [44, 48]; vDp = 52; vWt = 64
    vOff, vRd, vPub, vVal = 6, 7, 56, 60
    u0, u1, u2, u3 = 57, 58, 59, 128
    vMU, vSD, vR = 129, 130, 131
    SWt = SA
    a(f"v_lshlrev_b32 v{u0}, 4, v{vL}")
    a(f"s_cmp_eq_u32 s{sW}, 5\ns_cbranch_scc1 L_w1_addr")
    a(f"v_lshlrev_b32 v{vOff}, 17, v{vG4}\nv_lshl_add_u32 v{vOff}, v{vI}, 4, v{vOff}")
    a(f"s_lshl_b32 s{sT0}, s{sS}, 19\ns_lshl_b32 s{sT1}, s{sG}, 8\ns_add_u32 s{sOFF}, s{sT0}, s{sT1}")
    a("s_waitcnt lgkmcnt(0)")
    mk(SX, 4, 1024)
    a.vm = []
    a.vmem("xa", f"buffer_load_dwordx4 v[{vXA}:{vXA+3}], v{u0}, {srd(SX)}, 0 offen")
    mk(SWt, 10, 63 * 8192 + 256, sOFF)
    a(f"s_mov_b32 s{sO1}, 0")
    for t in range(16):
        a.vmem(f"w{t}", f"buffer_load_dwordx4 v[{vWt+4*t}:{vWt+4*t+3}], v{vOff}, {srd(SWt)}, s{sO1} offen nt")
        if t < 15: a(f"s_add_u32 s{sO1}, s{sO1}, 8192")
    vm_wq = list(a.vm)
    a("s_branch L_aux_ld")
    a.label("L_w1_addr")
    a(f"s_and_b32 s{sT0}, s2, 7\ns_lshr_b32 s{sT1}, s2, 3\ns_mul_i32 s{sT0}, s{sT0}, 22\ns_add_u32 s{sT0}, s{sT0}, s{sT1}\ns_lshr_b32 s{sBLK}, s{sT0}, 3\ns_and_b32 s{sSROW}, s{sT0}, 7\ns_cmp_lt_u32 s{sT1}, 22\ns_cselect_b32 s{sHAS}, 1, 0")
    a(f"v_mul_u32_u24 v{vOff}, 22016, v{vR8}\nv_lshl_add_u32 v{vOff}, v{vC}, 4, v{vOff}")
    a(f"s_cmp_eq_u32 s{sBLK}, 21\ns_cselect_b32 s{sT0}, 4, 8\nv_cmp_le_u32 vcc, s{sT0}, v{vC}\nv_mov_b32 v{u1}, {OOB}\nv_cndmask_b32 v{vOff}, v{vOff}, v{u1}, vcc")
    a(f"s_mul_i32 s{sT0}, s{sSROW}, {64*2752}\ns_lshl_b32 s{sT1}, s{sBLK}, 7\ns_add_u32 s{sOFF}, s{sT0}, s{sT1}")
    a("s_waitcnt lgkmcnt(0)")
    mk(SX, 4, 1024)
    a(f"buffer_load_dwordx4 v[{vXA}:{vXA+3}], v{u0}, {srd(SX)}, 0 offen")
    a(f"s_add_u32 s{SWt}, s16, s{sOFF}\ns_addc_u32 s{SWt+1}, s17, 0\ns_sub_u32 s{sT0}, 1409024, s{sOFF}\ns_cmp_eq_u32 s{sHAS}, 1\ns_cselect_b32 s{SWt+2}, s{sT0}, 0\ns_mov_b32 s{SWt+3}, 0x20000")
    a(f"s_mov_b32 s{sO1}, 0")
    for t in range(8):
        a(f"buffer_load_dwordx4 v[{vWt+4*t}:{vWt+4*t+3}], v{vOff}, {srd(SWt)}, s{sO1} offen nt")
        if t < 7: a(f"s_add_u32 s{sO1}, s{sO1}, 2752")
    a.label("L_aux_ld")
    stamp()
    a("s_barrier")
    mk(SWS, 24, ws_lim)
    a(f"v_mov_b32 v{u1}, 0x0c0c0100\nv_mov_b32 v{u2}, 0x01000c0c\ns_mov_b32 s{sMK}, 0xaaaaaaaa\ns_mov_b32 s{sMK+1}, 0xaaaaaaaa\nv_cndmask_b32 v{vE[0]}, v{u1}, v{u2}, s[{sMK}:{sMK+1}]")
    a(f"v_mov_b32 v{u1}, 0x0c0c0302\nv_mov_b32 v{u2}, 0x03020c0c\nv_cndmask_b32 v{vE[1]}, v{u1}, v{u2}, s[{sMK}:{sMK+1}]\nv_mov_b32 v{u1}, 0x0c0c0c0c")
    for w in range(4):
        m = 0x03030303 << (2 * w)
        a(f"s_mov_b32 s{sMK}, {m:#x}\ns_mov_b32 s{sMK+1}, {m:#x}")
        for p in range(2): a(f"v_cndmask_b32 v{vSel[w][p]}, v{u1}, v{vE[p]}, s[{sMK}:{sMK+1}]")
    lx1, lx2 = a.newlabel("Lx"), a.newlabel("Lx")
    a(f"s_cmp_eq_u32 s{sW}, 5\ns_cbranch_scc1 {lx1}\ns_waitcnt vmcnt(16)\ns_branch {lx2}")
    a.label(lx1); a("s_waitcnt vmcnt(8)"); a.label(lx2)
    for j in range(4): a(f"v_lshlrev_b32 v{vF[2*j]}, 16, v{vXA+j}\nv_and_b32 v{vF[2*j+1]}, 0xffff0000, v{vXA+j}")
    def wave_sum(v, sdst):
        for m in ("quad_perm:[1,0,3,2]", "quad_perm:[2,3,0,1]", "row_half_mirror", "row_mirror"): dpp("add_f32", v, m)
        a(f"v_add_f32_dpp v{v}, v{v}, v{v} row_bcast:15 row_mask:0xa bank_mask:0xf")
        a(f"v_add_f32_dpp v{v}, v{v}, v{v} row_bcast:31 row_mask:0xc bank_mask:0xf")
        a(f"v_readlane_b32 s{sdst}, v{v}, 63")
    a(f"v_add_f32 v{u0}, v{vF[0]}, v{vF[1]}\nv_add_f32 v{u1}, v{vF[2]}, v{vF[3]}\nv_add_f32 v{u2}, v{vF[4]}, v{vF[5]}\nv_add_f32 v{u3}, v{vF[6]}, v{vF[7]}")
    a(f"v_add_f32 v{u0}, v{u0}, v{u1}\nv_add_f32 v{u2}, v{u2}, v{u3}\nv_add_f32 v{u0}, v{u0}, v{u2}")
    wave_sum(u0, sT0)
    a(f"v_mov_b32 v{u1}, 0x3b000000\nv_mul_f32 v{vMU}, s{sT0}, v{u1}")
    for j in range(8): a(f"v_sub_f32 v{vE[j]}, v{vF[j]}, v{vMU}")
    a(f"v_mul_f32 v{u0}, v{vE[0]}, v{vE[0]}\nv_mul_f32 v{u2}, v{vE[1]}, v{vE[1]}")
    for j in range(2, 8, 2): a(f"v_fmac_f32 v{u0}, v{vE[j]}, v{vE[j]}\nv_fmac_f32 v{u2}, v{vE[j+1]}, v{vE[j+1]}")
    a(f"v_add_f32 v{u0}, v{u0}, v{u2}")
    def rbf(v): a(f"v_cvt_pk_bf16_f32 v{v}, v{v}, v{v}\nv_and_b32 v{v}, 0xffff0000, v{v}")
    rbf(vMU)
    for j in range(8): a(f"v_sub_f32 v{vF[j]}, v{vF[j]}, v{vMU}")
    wave_sum(u0, sT0)
    for j in range(0, 8, 2): a(f"v_cvt_pk_bf16_f32 v{vE[j//2]}, v{vF[j]}, v{vF[j+1]}")
    a(f"v_mul_f32 v{u0}, s{sT0}, v{u1}")
    for j in range(0, 8, 2): a(f"v_lshlrev_b32 v{vF[j]}, 16, v{vE[j//2]}\nv_and_b32 v{vF[j+1]}, 0xffff0000, v{vE[j//2]}")
    rbf(u0)
    a(f"v_add_f32 v{u0}, 0x3727c5ac, v{u0}")
    rbf(u0)
    a(f"v_sqrt_f32 v{vSD}, v{u0}")
    rbf(vSD)
    a(f"v_rcp_f32 v{vR}, v{vSD}")
    for j in range(8): a(f"v_mul_f32 v{vF[j]}, v{vF[j]}, v{vR}")
    for j in range(0, 8, 2): a(f"v_cvt_pk_bf16_f32 v{vXA+j//2}, v{vF[j]}, v{vF[j+1]}")
    a(f"s_sub_u32 s{sT0}, s{sW}, 4\ns_lshl_b32 s{sT0}, s{sT0}, 10\nv_lshlrev_b32 v{u0}, 4, v{vL}\nv_add_u32 v{u0}, s{sT0}, v{u0}")
    a(f"ds_write_b128 v{u0}, v[{vXA}:{vXA+3}] offset:{L_XN0}")
    stamp()
    a(f"s_cmp_eq_u32 s{sW}, 5\ns_cbranch_scc1 L_prod_w1")
    a(f"s_lshl_b32 s{sT0}, s{sS}, 7\nv_lshlrev_b32 v{u1}, 5, v{vG4}\nv_add_u32 v{u1}, s{sT0}, v{u1}")
    a(f"ds_read_b128 v[{vPair}:{vPair+3}], v{u1} offset:{L_XN0}\nds_read_b128 v[{vPair+4}:{vPair+7}], v{u1} offset:{L_XN0+16}")
    a(f"v_lshrrev_b32 v{vRd}, 4, v{vL}\nv_lshlrev_b32 v{vRd}, 6, v{vRd}\nv_and_b32 v{u2}, 3, v{vL}\nv_lshl_add_u32 v{vRd}, v{u2}, 3, v{vRd}\nv_bfe_u32 v{u2}, v{vL}, 2, 2\nv_add_lshl_u32 v{vRd}, v{vRd}, v{u2}, 2")
    a(f"s_lshl_b32 s{sT0}, s{sG}, 3\ns_add_u32 s{sT0}, s{sT0}, s{sS}\ns_lshl_b32 s{sT0}, s{sT0}, 10\ns_add_u32 s{sT0}, s{sT0}, {QP0}\nv_lshlrev_b32 v{vPub}, 4, v{vL}\nv_add_u32 v{vPub}, s{sT0}, v{vPub}")
    a("s_waitcnt lgkmcnt(0)")
    get_tag()
    def pbuild(dst, t):
        for w in range(4): a(f"v_perm_b32 v{dst+w}, v{vPair+t//2}, v{vPair+t//2}, v{vSel[w][t%2]}")
    a.vm = vm_wq
    pbuild(vB[0], 0)
    for t in range(16):
        if t + 1 < 16: pbuild(vB[(t + 1) % 2], t + 1)
        a.wait(f"w{t}")
        if b1b is not None and t == b1b: a("s_barrier")
        mfma(vDp, vWt + 4 * t, vB[t % 2], t == 0)
    fin_tag()
    a(f"v_lshlrev_b32 v{u0}, 4, v{vL}\nv_mov_b32 v{vVal+1}, s{sTAGQ}\nv_mov_b32 v{vVal+3}, s{sTAGQ}")
    a(f"ds_write_b128 v{u0}, v[{vDp}:{vDp+3}] offset:{L_RQ}")
    a(f"ds_read_b32 v{vVal}, v{vRd} offset:{L_RQ}\nds_read_b32 v{vVal+2}, v{vRd} offset:{L_RQ+16}")
    a("s_waitcnt lgkmcnt(0)")
    if fastq: a(f"s_mov_b32 s{sFQ}, {FASTQ:#x}\nbuffer_store_dwordx4 v[{vVal}:{vVal+3}], v{vPub}, {srd(SWS)}, s{sFQ} offen")
    a(f"buffer_store_dwordx4 v[{vVal}:{vVal+3}], v{vPub}, {srd(SWS)}, 0 offen {stf}")
    if agather: a(f"v_mov_b32 v{u0}, 0\nv_mov_b32 v{u1}, s{sTAG}\nds_write_b32 v{u0}, v{u1} offset:{L_FLAG}")
    a("s_branch L_prod_done")
    a.label("L_prod_w1")
    a(f"s_lshl_b32 s{sT0}, s{sSROW}, 7\nv_lshlrev_b32 v{u1}, 4, v{vR8}\nv_add_u32 v{u1}, s{sT0}, v{u1}")
    a(f"ds_read_b128 v[{vPair}:{vPair+3}], v{u1} offset:{L_XN1}")
    addr_d(vRd, vL, u2)
    a(f"s_mul_i32 s{sT0}, s{sSROW}, {HP_STRIDE}\ns_lshl_b32 s{sT1}, s{sBLK}, 9\ns_add_u32 s{sT0}, s{sT0}, s{sT1}\ns_add_u32 s{sT0}, s{sT0}, {HP0}\ns_cmp_eq_u32 s{sHAS}, 1\ns_cselect_b32 s{sT0}, s{sT0}, {OOB}")
    a(f"v_lshlrev_b32 v{vPub}, 3, v{vL}\nv_add_u32 v{vPub}, s{sT0}, v{vPub}")
    a("s_waitcnt lgkmcnt(0)")
    get_tag()
    pbuild(vB[0], 0)
    for t in range(8):
        if t + 1 < 8: pbuild(vB[(t + 1) % 2], t + 1)
        a(f"s_waitcnt vmcnt({7-t})")
        if b1b is not None and t == 0: a("s_barrier")
        mfma(vDp, vWt + 4 * t, vB[t % 2], t == 0)
    fin_tag(q=False)
    a(f"v_lshlrev_b32 v{u0}, 4, v{vL}\nv_mov_b32 v{vVal+1}, s{sTAG}")
    a(f"ds_write_b128 v{u0}, v[{vDp}:{vDp+3}] offset:{L_RH}")
    a(f"ds_read_b32 v{vVal}, v{vRd} offset:{L_RH}\nds_read_b32 v{vVal+2}, v{vRd} offset:{L_RH+640}")
    a(f"s_waitcnt lgkmcnt(0)\nv_add_f32 v{vVal}, v{vVal}, v{vVal+2}")
    a(f"buffer_store_dwordx2 v[{vVal}:{vVal+1}], v{vPub}, {srd(SWS)}, 0 offen {stf}")
    a.label("L_prod_done")
    stamp()
    a(f"s_sub_u32 s{sT0}, s{sW}, 4\ns_lshl_b32 s{sT0}, s{sT0}, 6\nv_add_u32 v{u0}, s{sT0}, v{vL}")
    addr_d(vRd, u0, u2)
    a(f"s_lshl_b32 s{sT0}, s{sG}, 3\ns_add_u32 s{sT0}, s{sT0}, s{sS}\ns_lshl_b32 s{sT0}, s{sT0}, 10\ns_add_u32 s{sT0}, s{sT0}, {OP0}\nv_lshlrev_b32 v{vPub}, 3, v{u0}\nv_add_u32 v{vPub}, s{sT0}, v{vPub}")
    a(f"v_mov_b32 v{vVal+1}, s{sTAG}\ns_mov_b32 s{sREG}, {FASTD}")
    a("s_waitcnt lgkmcnt(0)\ns_barrier\ns_barrier\ns_barrier")
    o = L_RO // 256
    a(f"ds_read2st64_b32 v[{vF[0]}:{vF[1]}], v{vRd} offset0:{o} offset1:{o+4}\nds_read2st64_b32 v[{vF[2]}:{vF[3]}], v{vRd} offset0:{o+8} offset1:{o+12}")
    a(f"s_waitcnt lgkmcnt(0)\nv_add_f32 v{vF[0]}, v{vF[0]}, v{vF[1]}\nv_add_f32 v{vF[2]}, v{vF[2]}, v{vF[3]}\nv_add_f32 v{vVal}, v{vF[0]}, v{vF[2]}")
    if fast: a(f"buffer_store_dwordx2 v[{vVal}:{vVal+1}], v{vPub}, {srd(SWS)}, s{sREG} offen")
    a(f"buffer_store_dwordx2 v[{vVal}:{vVal+1}], v{vPub}, {srd(SWS)}, 0 offen {stf}")
    stamp()
    a(f"s_cmp_eq_u32 s{sW}, 5\ns_cbranch_scc0 L_ypub\ns_barrier\ns_branch L_aux_fin")
    a.label("L_ypub")
    addr_d(vRd, vL, u2)
    a(f"v_add_u32 v{u0}, 640, v{vRd}")
    a(f"s_lshl_b32 s{sT0}, s{sS}, 5\ns_add_u32 s{sT0}, s{sT0}, s{sG}\ns_lshl_b32 s{sT0}, s{sT0}, 9\ns_add_u32 s{sT0}, s{sT0}, {YP0}\nv_lshlrev_b32 v{vPub}, 3, v{vL}\nv_add_u32 v{vPub}, s{sT0}, v{vPub}")
    a("s_barrier")
    o = L_RY // 256
    a(f"ds_read2st64_b32 v[{vF[0]}:{vF[1]}], v{vRd} offset0:{o} offset1:{o+4}\nds_read2st64_b32 v[{vF[2]}:{vF[3]}], v{vRd} offset0:{o+8} offset1:{o+12}")
    a(f"ds_read2st64_b32 v[{vF[4]}:{vF[5]}], v{u0} offset0:{o} offset1:{o+4}\nds_read2st64_b32 v[{vF[6]}:{vF[7]}], v{u0} offset0:{o+8} offset1:{o+12}")
    a("s_waitcnt lgkmcnt(0)")
    a(f"v_add_f32 v{vF[0]}, v{vF[0]}, v{vF[1]}\nv_add_f32 v{vF[2]}, v{vF[2]}, v{vF[3]}\nv_add_f32 v{vF[4]}, v{vF[4]}, v{vF[5]}\nv_add_f32 v{vF[6]}, v{vF[6]}, v{vF[7]}")
    a(f"v_add_f32 v{vF[0]}, v{vF[0]}, v{vF[2]}\nv_add_f32 v{vF[4]}, v{vF[4]}, v{vF[6]}\nv_add_f32 v{vVal}, v{vF[0]}, v{vF[4]}")
    a(f"buffer_store_dwordx2 v[{vVal}:{vVal+1}], v{vPub}, {srd(SWS)}, 0 offen {stf}")
    stamp()
    a.label("L_aux_fin")
    dump()
    a("s_endpgm")

    a.label("L_gath")
    St.n = 0
    vGo, vGd = 6, 64
    tmp = list(range(12, 28))
    a(f"s_lshl_b32 s{sT0}, s{sG}, 13\ns_add_u32 s{sT0}, s{sT0}, {QP0}\nv_lshlrev_b32 v{vGo}, 10, v{vC}\nv_lshl_add_u32 v{vGo}, v{vR8}, 7, v{vGo}\nv_add_u32 v{vGo}, s{sT0}, v{vGo}")
    a(f"v_mov_b32 v28, 0\nv_mov_b32 v29, 0\nv_mov_b32 v30, 0\nv_mov_b32 v31, 0\nds_write_b128 v28, v[28:31] offset:{L_ZB}")
    a("s_waitcnt lgkmcnt(0)")
    get_tag()
    if tlb:
        a(f"s_lshl_b32 s{sT0}, s{sG}, 21\ns_add_u32 s{sT0}, s{sT0}, 0x180000\ns_add_u32 s40, s8, s{sT0}\ns_addc_u32 s41, s9, 0\ns_load_dword s44, s[40:41], 0")
        a(f"s_lshl_b32 s{sT0}, s{sG}, 17\ns_add_u32 s42, s12, s{sT0}\ns_addc_u32 s43, s13, 0\ns_load_dword s45, s[42:43], 0")
        a(f"s_mul_i32 s{sT0}, s{sG}, {43*1024}\ns_add_u32 s36, s18, s{sT0}\ns_addc_u32 s37, s19, 0\ns_load_dword s46, s[36:37], 0")
    a(f"s_mov_b32 s{SWS}, s24\ns_mov_b32 s{SWS+1}, s25\ns_mov_b32 s{SWS+2}, {ws_lim}\ns_mov_b32 s{SWS+3}, 0x20000")
    stamp()
    a("s_barrier")
    if b1b is not None: a("s_barrier")
    fin_tag()
    if touch:
        a(f"s_lshl_b32 s{sT0}, s{sG}, 3\ns_add_u32 s{sT0}, s{sT0}, s{sS}\ns_lshl_b32 s{sT0}, s{sT0}, 10\nv_lshlrev_b32 v40, 4, v{vL}\nv_add_u32 v40, s{sT0}, v40")
        if touch == 1:
            a(f"v_add_u32 v41, {QP0}, v40\nbuffer_load_dwordx4 v[44:47], v41, {srd(SWS)}, 0 offen {ldf}")
            a(f"v_add_u32 v41, {OP0}, v40\nbuffer_load_dwordx4 v[48:51], v41, {srd(SWS)}, 0 offen {ldf}")
        a(f"s_lshl_b32 s{sT0}, s{sS}, 5\ns_add_u32 s{sT0}, s{sT0}, s{sG}\ns_lshl_b32 s{sT0}, s{sT0}, 9\ns_add_u32 s{sT0}, s{sT0}, {YP0}\nv_lshlrev_b32 v41, 3, v{vL}\nv_add_u32 v41, s{sT0}, v41")
        a(f"buffer_load_dwordx2 v[52:53], v41, {srd(SWS)}, 0 offen {ldf}")
    a(f"s_lshl_b32 s{sT0}, s{sG}, 7\ns_lshl_b32 s{sT1}, s{sS}, 4\ns_add_u32 s{sT0}, s{sT0}, s{sT1}\ns_add_u32 s{sT0}, s{sT0}, {ML0}")
    a(f"v_lshlrev_b32 v34, 3, v{vL}\nv_add_u32 v34, s{sT0}, v34\nv_cmp_gt_u32 vcc, 2, v{vL}\nv_mov_b32 v35, {OOB}\nv_cndmask_b32 v34, v35, v34, vcc")
    a(f"v_mov_b32 v37, s{sTAG}\ns_mov_b32 s{sFQ}, {FASTQ if fastq else 0:#x}")
    if agather:
        lsp, lgo = a.newlabel("Lsp"), a.newlabel("Lgo")
        a.label(lsp)
        a(f"ds_read_b32 v32, v28 offset:{L_FLAG}\ns_waitcnt lgkmcnt(0)\nv_readfirstlane_b32 s{sT0}, v32\ns_cmp_eq_u32 s{sT0}, s{sTAG}\ns_cbranch_scc1 {lgo}")
        a(f"s_sleep 1\ns_sub_u32 s{sRETRY}, s{sRETRY}, 1\ns_cmp_gt_i32 s{sRETRY}, 0\ns_cbranch_scc1 {lsp}")
        a.label(lgo)
        a(f"s_mov_b32 s{sRETRY}, 100000")
        stamp()
        def g1a(so): return "\n".join(f"buffer_load_dwordx4 v[{vGd+4*k}:{vGd+4*k+3}], v{vGo}, {srd(SWS)}, {so} offen offset:{16*k} {ldf}" for k in range(8))
        first = g1a(f"s{sFQ}") if fastq else g1a("0")
        a(first)
        xr = poll("G1", None, [vGd + 2 * k + 1 for k in range(16)], tmp, first, q=True, reissue2=(g1a("0") if fastq else None))
        a(f"v_cmp_ne_u32 vcc, 0, v{xr}\ns_cmp_eq_u64 vcc, 0\ns_cselect_b32 s{sT1}, {FASTD if fast else 0}, 0\nv_mov_b32 v33, s{sT1}\nds_write_b32 v28, v33 offset:{L_FLAG+8}")
        stamp()
        qv = [vGd + 2 * k for k in range(16)]
        red8(qv)
        for k in range(8): a(f"v_cvt_pk_bf16_f32 v{12+k}, v{qv[2*k]}, v{qv[2*k+1]}")
        a(f"v_lshlrev_b32 v33, 5, v{vR8}")
        a(f"s_mov_b64 s[{sEX}:{sEX+1}], exec\ns_mov_b32 exec_lo, 0x01010101\ns_mov_b32 exec_hi, 0x01010101")
        a(f"ds_write_b128 v33, v[12:15] offset:{L_QB}\nds_write_b128 v33, v[16:19] offset:{L_QB+16}")
        a(f"s_mov_b64 exec, s[{sEX}:{sEX+1}]")
    a(f"s_mov_b32 s{sREG}, {FASTD}\ns_waitcnt vmcnt(0) lgkmcnt(0)")
    stamp()
    a("s_barrier\ns_barrier\ns_barrier")
    ls = 40
    for i in range(4): a(f"ds_read_b128 v[{ls+4*i}:{ls+4*i+3}], v28 offset:{L_LS+16*i}")
    a(f"ds_read_b32 v38, v28 offset:{L_FLAG+4}")
    a(f"v_cmp_eq_u32 vcc, 0, v{vL}\ns_waitcnt lgkmcnt(0)")
    for st in (1, 2, 4, 8):
        for i in range(0, 16, 2 * st): a(f"v_add_f32 v{ls+i}, v{ls+i}, v{ls+i+st}")
    a(f"v_cndmask_b32 v36, v{ls}, v38, vcc")
    if fast: a(f"buffer_store_dwordx2 v[36:37], v34, {srd(SWS)}, s{sREG} offen")
    a(f"buffer_store_dwordx2 v[36:37], v34, {srd(SWS)}, 0 offen {stf}")
    stamp()
    a("s_barrier")
    dump()
    a.label("L_end")
    a("s_endpgm")
    return wrap(a.text(), 256, 448, lds, vgpr=256, sgpr=102)

if __name__ == "__main__":
    out = sys.argv[1]
    kw = {}
    for arg in sys.argv[2:]:
        k, v = arg.split("=")
        if k == "vint": kw[k] = tuple(int(c) for c in v)
        else: kw[k] = int(v, 0) if re.fullmatch(r"-?(0x)?[0-9a-fA-F]+", v) and not v.startswith("sc") else v.replace("+", " ")
    open(out, "w").write(gen(**kw))
```

```python
import sys, re
from asmlib import *

QP0, HP0, OP0, ML0, YP0, WSLIM = 0x1000, 0x42000, 0x60000, 0xA0000, 0xB0000, 0x170000
FASTQ = 0x120000
FASTD = 0x70000
HP_STRIDE = 1408 * 8
STAMP0 = 0x180000
OOB = 0x10000000
TAGC = 0x9E3779B9

L_RO, L_RY = 0, 4096
L_XN0, L_XN1, L_RQ, L_RH = 8192, 9216, 10240, 11264
L_QB, L_ZB, L_FLAG, L_MX, L_LS = 12288, 12544, 12560, 12608, 12672
LDS_TOTAL = 98304

sW, sG, sS, sTAG = 26, 27, 28, 29
SA, SB, SWO, SW2, SWS, SX, SOUT = 32, 36, 40, 44, 48, 52, 56
sT0, sT1, sT2, sT3 = 30, 31, 60, 61
sO1, sO2, sO3 = 62, 63, 64
sC = [None, 66, 68, 70]
sSCALE, sLOG2E = 72, 73
sEX = 74
sRETRY, sFQ = 76, 77
sHV = 78
sCQ = 80
sBLK, sSROW, sHAS = 81, 82, 83
sMK = 84
sOFF, sTAGQ, sREG = 86, 87, 91
sOFW, sOF2, sN2 = 96, 97, 98
def srd(r): return f"s[{r}:{r+3}]"

def gen(stamps=False, trace=0, W=10, W0=4, vrest=10, vint=(6, 1, 1, 1, 0), pvn=3, stf='sc1', ldf='sc1', touch=1, tlb=1,
        prefetch=1, fast=1, fastq=1, agather=1, lds=LDS_TOTAL, g2pos=0, b1b=None, eplain=1, g1b=0, Wv=None, b1=1, g1pos=0):
    a = Asm()
    ST = [92, 4, 6, 8, 10, 12, 14, 16, 18, 20]
    RT = {'G1': 88, 'G2': 89, 'G3': 90, 'G4': 90}
    class St: n = 0
    class Tr: n = 0
    def stamp():
        if stamps:
            i = St.n; St.n += 1
            assert i < 10
            a(f"s_memrealtime s[{ST[i]}:{ST[i]+1}]")
    def tr(level=2):
        if trace == level:
            a(f"s_memrealtime s[94:95]\ns_waitcnt lgkmcnt(0)\nv_writelane_b32 v27, s94, {Tr.n}")
            Tr.n += 1
    def dump(trace_too=False):
        if stamps:
            n = St.n
            if trace and trace_too:
                a(f"s_mov_b64 exec, -1\ns_lshl_b32 s{sT0}, s2, 2\ns_add_u32 s{sT0}, s{sT0}, s{sW}\ns_lshl_b32 s{sT0}, s{sT0}, 8\ns_add_u32 s{sT0}, s{sT0}, 0x1C0000\nv_lshlrev_b32 v2, 2, v1\nv_add_u32 v2, s{sT0}, v2")
                a(f"s_waitcnt lgkmcnt(0)\nbuffer_store_dword v27, v2, {srd(SWS)}, 0 offen")
            a("s_mov_b64 exec, 1\ns_waitcnt lgkmcnt(0) vmcnt(0)")
            a(f"s_lshl_b32 s{sT0}, s2, 3\ns_add_u32 s{sT0}, s{sT0}, s{sW}\ns_lshl_b32 s{sT0}, s{sT0}, 7\ns_add_u32 s{sT0}, s{sT0}, {STAMP0}\nv_mov_b32 v2, s{sT0}")
            a(f"v_mov_b32 v3, s100\nbuffer_store_dword v3, v2, {srd(SWS)}, 0 offen")
            a(f"v_mov_b32 v4, {n}\nbuffer_store_dword v4, v2, {srd(SWS)}, 0 offen offset:4")
            for i in range(n):
                a(f"v_mov_b32 v{30+i}, s{ST[i]}\nbuffer_store_dword v{30+i}, v2, {srd(SWS)}, 0 offen offset:{8+4*i}")
            for i, r in enumerate([88, 89, 90, sRETRY]):
                a(f"v_mov_b32 v{50+i}, s{r}\nbuffer_store_dword v{50+i}, v2, {srd(SWS)}, 0 offen offset:{64+4*i}")
        St.n = 0; Tr.n = 0

    vL, vI, vG4, vC, vR8 = 1, 2, 3, 4, 5
    def mk(r, p, nrec, offreg=None):
        if offreg is not None: a(f"s_add_u32 s{r}, s{p}, s{offreg}\ns_addc_u32 s{r+1}, s{p+1}, 0")
        else: a(f"s_mov_b32 s{r}, s{p}\ns_mov_b32 s{r+1}, s{p+1}")
        a(f"s_mov_b32 s{r+2}, {nrec}\ns_mov_b32 s{r+3}, 0x20000")
    def mfma(D, A, B, first):
        a(f"v_mfma_f32_16x16x32_bf16 v[{D}:{D+3}], v[{A}:{A+3}], v[{B}:{B+3}], " + ("0" if first else f"v[{D}:{D+3}]"))
    def dpp(op, v, m): a(f"v_{op}_dpp v{v}, v{v}, v{v} {m} row_mask:0xf bank_mask:0xf")
    def tagcheck(regs, tmp, mask=None, q=False):
        sT = sTAGQ if q else sTAG
        xs, regs, k = [], list(regs), 0
        while regs:
            if len(regs) >= 2:
                a(f"v_bitop3_b32 v{tmp[k]}, v{regs[0]}, v{regs[1]}, s{sT} bitop3:0x7e"); regs = regs[2:]
            else:
                a(f"v_xor_b32 v{tmp[k]}, s{sT}, v{regs[0]}"); regs = regs[1:]
            xs.append(tmp[k]); k += 1
        while len(xs) > 1:
            if len(xs) >= 3:
                a(f"v_or3_b32 v{xs[0]}, v{xs[0]}, v{xs[1]}, v{xs[2]}"); xs = xs[3:] + [xs[0]]
            else:
                a(f"v_or_b32 v{xs[0]}, v{xs[0]}, v{xs[1]}"); xs = [xs[0]]
        if q:
            a(f"v_and_b32 v{tmp[-1]}, 0xfffffff0, v{xs[0]}\nv_cmp_ne_u32 vcc, 0, v{tmp[-1]}")
            return xs[0]
        a(f"v_cmp_ne_u32 vcc, 0, v{xs[0]}")
        if mask is not None: a(f"s_and_b64 vcc, vcc, s[{mask}:{mask+1}]")
    def poll(name, waitname, regs, tmp, reissue, mask=None, q=False, reissue2=None):
        ok, rt = a.newlabel("Lok"), a.newlabel("Lrt")
        if waitname: a.wait(waitname)
        else: a("s_waitcnt vmcnt(0)")
        xr = tagcheck(regs, tmp, mask, q)
        a(f"s_cbranch_vccz {ok}")
        a.label(rt)
        for txt in ([reissue] if reissue2 is None else [reissue, reissue2]):
            a(f"s_sub_u32 s{sRETRY}, s{sRETRY}, 1")
            a(txt)
            a("s_waitcnt vmcnt(0)")
            tagcheck(regs, tmp, mask, q)
            a(f"s_cbranch_vccz {ok}")
        a(f"s_cmp_gt_i32 s{sRETRY}, 0\ns_cbranch_scc1 {rt}")
        a.label(ok)
        if stamps: a(f"s_mov_b32 s{RT[name]}, s{sRETRY}")
        return xr
    def red8(vals, op="add_f32"):
        for m in ("quad_perm:[1,0,3,2]", "quad_perm:[2,3,0,1]", "row_half_mirror"):
            for v in vals: dpp(op, v, m)
    def get_tag(): a(f"s_load_dword s{sTAG}, s[24:25], 0")
    def fin_tag(q=True):
        if q: a(f"s_getreg_b32 s{sTAGQ}, hwreg(HW_REG_XCC_ID, 0, 4)")
        a(f"s_waitcnt lgkmcnt(0)\ns_add_u32 s{sTAG}, s{sTAG}, {TAGC:#x}")
        if q: a(f"s_and_b32 s{sT3}, s{sTAG}, 0xfffffff0\ns_or_b32 s{sTAGQ}, s{sTAGQ}, s{sT3}")
    def addr_d(dst, d, tmp):
        a(f"v_lshrrev_b32 v{dst}, 5, v{d}\nv_lshlrev_b32 v{dst}, 6, v{dst}\nv_and_b32 v{tmp}, 7, v{d}\nv_lshl_add_u32 v{dst}, v{tmp}, 2, v{dst}\nv_bfe_u32 v{tmp}, v{d}, 3, 2\nv_add_lshl_u32 v{dst}, v{dst}, v{tmp}, 2")
    ws_lim = WSLIM if not stamps else 0x240000

    a("s_cmp_ge_u32 s2, 256\ns_cbranch_scc1 L_end")
    if stamps: a("s_memrealtime s[100:101]")
    a("s_load_dwordx16 s[4:19], s[0:1], 0")
    a("s_load_dwordx4 s[20:23], s[0:1], 64")
    a("s_load_dwordx2 s[24:25], s[0:1], 80")
    if prefetch:
        a("s_getpc_b64 s[84:85]")
        a.label("L_pc")
        a(f"v_lshlrev_b32 v8, 7, v0\nv_cmp_gt_u32 vcc, (L_end-L_pc)/128, v0\ns_and_saveexec_b64 s[{sEX}:{sEX+1}], vcc\ns_cbranch_execz L_pf_done")
        a("v_mov_b32 v9, s85\nv_add_co_u32 v8, vcc, s84, v8\nv_addc_co_u32 v9, vcc, 0, v9, vcc\nglobal_load_dword v248, v[8:9], off")
        a.label("L_pf_done")
        a(f"s_mov_b64 exec, s[{sEX}:{sEX+1}]")
    a(f"v_lshrrev_b32 v{vI}, 6, v0\nv_and_b32 v{vL}, 63, v0\nv_readfirstlane_b32 s{sW}, v{vI}")
    a(f"s_and_b32 s{sT0}, s2, 7\ns_lshr_b32 s{sT1}, s2, 3\ns_lshl_b32 s{sG}, s{sT0}, 2\ns_and_b32 s{sT2}, s{sT1}, 3\ns_add_u32 s{sG}, s{sG}, s{sT2}\ns_lshr_b32 s{sS}, s2, 5")
    a(f"v_and_b32 v{vI}, 15, v{vL}\nv_lshrrev_b32 v{vG4}, 4, v{vL}\nv_and_b32 v{vC}, 7, v{vL}\nv_lshrrev_b32 v{vR8}, 3, v{vL}")
    a(f"s_mov_b32 s{sRETRY}, 100000")
    if stamps: a(f"s_mov_b32 s88, 100000\ns_mov_b32 s89, 100000\ns_mov_b32 s90, 100000")
    a(f"s_cmp_ge_u32 s{sW}, 4\ns_cbranch_scc1 L_aux")

    vKo, vVo, vWOo, vW2o, vGq, vGm, vGh, vRAW, vSL = 6, 7, 8, 9, 10, 11, 12, 13, 14
    vQA = [15, 16, 17, 18]
    vOUT = 19; vM = [20, 21, 22, 23]; vXD, vMX, vG1 = 24, 25, 26
    vK, vV, vW2, vWO, vBq, vD = 28, 92, 156, 164, 180, 196
    vB0, vB1, vGa, vPP = 212, 216, 220, 232
    vF = list(range(236, 244)); t0, t1, t2, t3 = 244, 245, 246, 247
    vDo, vDy = 200, 204
    SK, SV = SA, SB
    a.vm = []
    a(f"v_lshrrev_b32 v{vKo}, 2, v{vI}\nv_and_b32 v{t0}, 3, v{vI}\nv_lshlrev_b32 v{vKo}, 12, v{vKo}\nv_lshl_add_u32 v{t0}, v{vG4}, 2, v{t0}\nv_lshl_add_u32 v{vKo}, v{t0}, 4, v{vKo}")
    a(f"s_lshl_b32 s{sT0}, s{sG}, 21\ns_lshl_b32 s{sT1}, s{sS}, 16\ns_add_u32 s{sT0}, s{sT0}, s{sT1}\ns_lshl_b32 s{sT1}, s{sW}, 10\ns_add_u32 s{sT0}, s{sT0}, s{sT1}\ns_add_u32 s{sOFF}, s{sT0}, 0x180000")
    a(f"s_mov_b32 s{sO1}, 16384\ns_mov_b32 s{sO2}, 32768\ns_mov_b32 s{sO3}, 49152")
    a(f"v_lshlrev_b32 v{vVo}, 12, v{vG4}\nv_lshl_add_u32 v{vVo}, v{vI}, 4, v{vVo}")
    a(f"v_lshlrev_b32 v{t0}, 4, v{t0}\nv_add_u32 v{t0}, {L_QB}, v{t0}\nv_mov_b32 v{t1}, {L_ZB}")
    for tt in range(4):
        m = 0x000F000F << (4 * tt)
        a(f"s_mov_b32 s{sMK}, {m:#x}\ns_mov_b32 s{sMK+1}, {m:#x}\nv_cndmask_b32 v{vQA[tt]}, v{t1}, v{t0}, s[{sMK}:{sMK+1}]")
    for c in range(1, 4):
        m = 0x11111111 << c
        a(f"s_mov_b32 s{sC[c]}, {m:#x}\ns_mov_b32 s{sC[c]+1}, {m:#x}")
    a(f"s_mov_b32 s{sSCALE}, 0x3db504f3\ns_mov_b32 s{sLOG2E}, 0x3fb8aa3b\ns_mov_b32 s{sFQ}, {FASTQ if fastq else 0:#x}")
    a("s_waitcnt lgkmcnt(0)")
    mk(SK, 6, 62464, sOFF); mk(SV, 8, 62464, sOFF)
    get_tag()
    so4 = ["0", f"s{sO1}", f"s{sO2}", f"s{sO3}"]
    def ldK(t): a.vmem(f"K{t}", f"buffer_load_dwordx4 v[{vK+4*t}:{vK+4*t+3}], v{vKo}, {srd(SK)}, {so4[t%4]} offen offset:{(t//4)*256} nt")
    def ldV(t): a.vmem(f"V{t}", f"buffer_load_dwordx4 v[{vV+4*t}:{vV+4*t+3}], v{vVo}, {srd(SV)}, {so4[t%4]} offen offset:{(t//4)*256} nt")
    def ldWO(t): a.vmem(f"wo{t}", f"buffer_load_dwordx4 v[{vWO+4*t}:{vWO+4*t+3}], v{vWOo}, {srd(SWO)}, 0 offen offset:{t*1024} nt")
    def ldW2(t): a.vmem(f"w2{t}", f"buffer_load_dwordx4 v[{vW2+4*t}:{vW2+4*t+3}], v{vW2o}, {srd(SW2)}, 0 offen offset:{t*1024} nt")
    g2txt = f"buffer_load_dwordx4 v[{vGa+8}:{vGa+11}], v{vGh}, {srd(SWS)}, 0 offen {ldf}"
    def ldG2(): a.vmem("G2", g2txt)
    def g1(so):
        return (f"buffer_load_dwordx4 v[{vGa}:{vGa+3}], v{vG1}, {srd(SWS)}, {so} offen {ldf}\n"
                f"buffer_load_dwordx4 v[{vGa+4}:{vGa+7}], v{vG1}, {srd(SWS)}, {so} offen offset:16 {ldf}")
    g1txt = g1(f"s{sFQ}") if fastq else g1("0")
    def ldG1():
        t_ = g1txt.split("\n"); a.vmem("G1a", t_[0]); a.vmem("G1b", t_[1])
    def ldG1B():
        a.vmem("G1c", f"buffer_load_dwordx4 v[{vWO}:{vWO+3}], v{vG1}, {srd(SWS)}, s{sFQ} offen {ldf}")
        a.vmem("G1d", f"buffer_load_dwordx4 v[{vWO+4}:{vWO+7}], v{vG1}, {srd(SWS)}, s{sFQ} offen offset:16 {ldf}")
    tailq = {0: [("G2", 0), ("W2", 0), ("W2", 1)] + [("WO", t) for t in range(4)],
             1: [("W2", 0), ("W2", 1)] + [("WO", t) for t in range(4)] + [("G2", 0)]}[g2pos]
    vs = [("V", t) for t in range(16)]
    if g1b and not agather: vs = vs[:g1b] + [("G1B", 0)] + vs[g1b:]
    if g1pos and not agather:
        queue = [("K", t) for t in range(16)] + vs[:g1pos] + [("G1", 0)] + vs[g1pos:] + tailq
    else:
        queue = [("K", t) for t in range(16)] + ([] if agather else [("G1", 0)]) + vs + tailq
    order = [(f"{k}{t}" if k in ("K", "V") else None) for k, t in queue]
    def nxt(n=1):
        for _ in range(n):
            if not queue: return
            k, t = queue.pop(0)
            {"K": lambda: ldK(t), "V": lambda: ldV(t), "G1": ldG1, "G1B": ldG1B, "G2": ldG2, "W2": lambda: ldW2(t), "WO": lambda: ldWO(t)}[k]()
    stamp()
    if b1: a("s_barrier")
    npre = 16 + (0 if agather else 1) + vrest + (1 if (g1b and not agather and g1b <= vrest) else 0)
    def nxt_free():
        n = 1; nxt()
        while queue and queue[0][0] in ("G1", "G1B"): nxt(); n += 1
        return n
    issued = 0
    while issued < min(W0, npre): issued += nxt_free()
    a(f"s_lshr_b32 s{sCQ}, s{sG}, 1")
    a(f"v_lshlrev_b32 v{vWOo}, 12, v{vR8}\nv_lshl_add_u32 v{vWOo}, v{vC}, 4, v{vWOo}")
    a(f"v_lshlrev_b32 v{vW2o}, 11, v{vR8}\nv_lshl_add_u32 v{vW2o}, v{vC}, 4, v{vW2o}")
    a(f"s_lshl_b32 s{sT0}, s{sG}, 7\ns_lshl_b32 s{sT1}, s{sW}, 5\ns_add_u32 s{sT0}, s{sT0}, s{sT1}\ns_lshl_b32 s{sT0}, s{sT0}, 10\ns_lshl_b32 s{sT1}, s{sS}, 7\ns_add_u32 s{sT0}, s{sT0}, s{sT1}")
    mk(SWO, 12, 31 * 1024 + 128, sT0)
    a(f"s_mul_i32 s{sT0}, s{sCQ}, 86\ns_and_b32 s{sT1}, s{sG}, 1\ns_mul_i32 s{sT2}, s{sT1}, 44\ns_add_u32 s{sT0}, s{sT0}, s{sT2}\ns_mul_i32 s{sT2}, s{sW}, 12\ns_add_u32 s{sT0}, s{sT0}, s{sT2}")
    a(f"s_lshl_b32 s{sT1}, s{sT1}, 1\ns_sub_u32 s{sT1}, 44, s{sT1}\ns_sub_u32 s{sT1}, s{sT1}, s{sT2}\ns_min_u32 s{sT3}, s{sT1}, 12")
    a(f"v_mul_u32_u24 v{vGh}, {HP_STRIDE}, v{vC}\nv_lshl_add_u32 v{vGh}, v{vR8}, 4, v{vGh}\ns_lshl_b32 s{sT1}, s{sT0}, 3\ns_add_u32 s{sT1}, s{sT1}, {HP0}\nv_add_u32 v{vGh}, s{sT1}, v{vGh}")
    a(f"v_lshlrev_b32 v{t0}, 1, v{vR8}\nv_cmp_gt_u32 s[{sHV}:{sHV+1}], s{sT3}, v{t0}\nv_mov_b32 v{t1}, {OOB}\nv_cndmask_b32 v{vGh}, v{t1}, v{vGh}, s[{sHV}:{sHV+1}]")
    a(f"s_lshl_b32 s{sT0}, s{sT0}, 10\ns_lshl_b32 s{sT1}, s{sS}, 7\ns_add_u32 s{sT0}, s{sT0}, s{sT1}")
    a(f"s_add_u32 s{SW2}, s18, s{sT0}\ns_addc_u32 s{SW2+1}, s19, 0\ns_sub_u32 s{sT3}, s{sT3}, 1\ns_lshl_b32 s{sT3}, s{sT3}, 10\ns_add_u32 s{SW2+2}, s{sT3}, 128\ns_mov_b32 s{SW2+3}, 0x20000")
    mk(SWS, 24, ws_lim); mk(SX, 4, 1024); mk(SOUT, 20, 1024)
    a(f"s_lshl_b32 s{sT0}, s{sS}, 7\ns_lshl_b32 s{sT1}, s{sCQ}, 3\ns_add_u32 s{sT0}, s{sT0}, s{sT1}\nv_and_b32 v{vOUT}, 1, v{vL}\nv_lshlrev_b32 v{vOUT}, 2, v{vOUT}\nv_add_u32 v{vOUT}, s{sT0}, v{vOUT}")
    a(f"v_and_b32 v{t0}, 1, v{vL}\nv_lshlrev_b32 v{t0}, 4, v{t0}\nv_mov_b32 v{t1}, 0xffff\nv_lshlrev_b32 v{t0}, v{t0}, v{t1}")
    for w in range(4):
        m = 0x03030303 << (2 * w)
        a(f"s_mov_b32 s{sMK}, {m:#x}\ns_mov_b32 s{sMK+1}, {m:#x}\nv_cndmask_b32 v{vM[w]}, 0, v{t0}, s[{sMK}:{sMK+1}]")
    a(f"s_lshl_b32 s{sT0}, s{sG}, 13\ns_lshl_b32 s{sT1}, s{sW}, 8\ns_add_u32 s{sT0}, s{sT0}, s{sT1}\ns_add_u32 s{sT0}, s{sT0}, {OP0}")
    a(f"v_lshlrev_b32 v{vGq}, 10, v{vC}\nv_lshl_add_u32 v{vGq}, v{vR8}, 5, v{vGq}\nv_add_u32 v{vGq}, s{sT0}, v{vGq}")
    if not agather: a(f"v_subrev_u32 v{vG1}, {OP0-QP0}, v{vGq}")
    a(f"s_lshl_b32 s{sT0}, s{sG}, 7\ns_add_u32 s{sT0}, s{sT0}, {ML0}\nv_lshlrev_b32 v{vGm}, 4, v{vC}\nv_add_u32 v{vGm}, s{sT0}, v{vGm}")
    a(f"s_lshl_b32 s{sT0}, s{sW}, 10\nv_lshlrev_b32 v{vRAW}, 4, v{vL}\nv_add_u32 v{vRAW}, s{sT0}, v{vRAW}")
    a(f"s_lshl_b32 s{sT0}, s{sW}, 4\nv_lshlrev_b32 v{vSL}, 2, v{vG4}\nv_add_u32 v{vSL}, s{sT0}, v{vSL}")
    stamp()
    if b1b is not None:
        a("s_barrier")
        while issued < min(W, npre): issued += nxt_free()
    wi = 0
    while issued < npre:
        while order[wi] is None: wi += 1
        a.wait(order[wi]); wi += 1
        tr(1)
        issued += nxt_free()
        wcur = W if (Wv is None or (queue and queue[0][0] == "K")) else Wv
        if issued < npre and issued - wi < wcur: issued += nxt_free()
    fin_tag(q=not agather)
    a.wait("K15")
    tr()
    stamp()
    if not agather:
        g1regs = [vGa + 1, vGa + 3, vGa + 5, vGa + 7]
        if g1b:
            lg = a.newlabel("Lg1ok")
            a.wait("G1b")
            xr = tagcheck(g1regs, vF, None, True)
            a(f"s_cbranch_vccz {lg}")
            a.wait("G1d")
            for j in range(8): a(f"v_mov_b32 v{vGa+j}, v{vWO+j}")
            poll("G1", "G1d", g1regs, vF, g1("0"), q=True, reissue2=(g1txt if fastq else None))
            a.label(lg)
        else:
            xr = poll("G1", "G1b", g1regs, vF, g1("0"), q=True, reissue2=(g1txt if fastq else None))
        a(f"v_cmp_ne_u32 vcc, 0, v{xr}\ns_cmp_eq_u64 vcc, 0\ns_cselect_b32 s{sREG}, {FASTD if fast else 0}, 0")
        nxt(vint[0])
        qv = [vGa, vGa + 2, vGa + 4, vGa + 6]
        red8(qv)
        a(f"v_cvt_pk_bf16_f32 v{vGa}, v{qv[0]}, v{qv[1]}\nv_cvt_pk_bf16_f32 v{vGa+1}, v{qv[2]}, v{qv[3]}")
        a(f"s_lshl_b32 s{sT0}, s{sW}, 6\nv_lshlrev_b32 v{t0}, 3, v{vR8}\nv_add_u32 v{t0}, s{sT0}, v{t0}")
        a(f"s_mov_b64 s[{sEX}:{sEX+1}], exec\ns_mov_b32 exec_lo, 0x01010101\ns_mov_b32 exec_hi, 0x01010101")
        a(f"ds_write_b64 v{t0}, v[{vGa}:{vGa+1}] offset:{L_QB}")
        a(f"s_mov_b64 exec, s[{sEX}:{sEX+1}]")
        a(f"v_add_u32 v{vGq}, s{sREG}, v{vGq}\nv_add_u32 v{vGm}, s{sREG}, v{vGm}")
        a("s_waitcnt lgkmcnt(0)")
    tr()
    a("s_barrier")
    tr()
    for tt in range(4): a(f"ds_read_b128 v[{vBq+4*tt}:{vBq+4*tt+3}], v{vQA[tt]}")
    if agather:
        a(f"v_mov_b32 v{t2}, 0\nds_read_b32 v{t3}, v{t2} offset:{L_FLAG+8}")
        nxt(vint[0])
    a.vmem("xd", f"buffer_load_dword v{vXD}, v{vOUT}, {srd(SX)}, 0 offen")
    if not agather: nxt(vint[1])
    ex = 1 if agather else 0
    for tt in range(4):
        a(f"s_waitcnt lgkmcnt({3-tt+ex})")
        for u in range(4): mfma(vD + 4 * u, vK + 4 * (4 * u + tt), vBq + 4 * tt, tt == 0)
    if agather:
        a(f"s_waitcnt lgkmcnt(0)\nv_add_u32 v{vGq}, v{t3}, v{vGq}\nv_add_u32 v{vGm}, v{t3}, v{vGm}")
        nxt(vint[1])
    tr()
    nxt(vint[2])
    sc = vF[:4]
    for r_ in (1, 2, 3):
        for u in range(4):
            src0 = vD + 4 * u if r_ == 1 else sc[u]
            a(f"v_cndmask_b32 v{sc[u]}, v{src0}, v{vD+4*u+r_}, s[{sC[r_]}:{sC[r_]+1}]")
    for m in ("quad_perm:[1,0,3,2]", "quad_perm:[2,3,0,1]"):
        for u in range(4): dpp("add_f32", sc[u], m)
    def round2():
        for u in (0, 2): a(f"v_cvt_pk_bf16_f32 v{t0+u//2}, v{sc[u]}, v{sc[u+1]}")
        for u in (0, 2): a(f"v_lshlrev_b32 v{sc[u]}, 16, v{t0+u//2}\nv_and_b32 v{sc[u+1]}, 0xffff0000, v{t0+u//2}")
    round2()
    for u in range(4): a(f"v_mul_f32 v{sc[u]}, s{sSCALE}, v{sc[u]}")
    round2()
    a(f"v_max3_f32 v{t0}, v{sc[0]}, v{sc[1]}, v{sc[2]}\nv_max_f32 v{t0}, v{t0}, v{sc[3]}")
    for m in ("row_ror:4", "row_ror:8"): dpp("max_f32", t0, m)
    a(f"ds_write_b32 v{vSL}, v{t0} offset:{L_MX}")
    nxt(vint[3])
    a(f"v_mov_b32 v{t1}, 0")
    tr()
    a("s_waitcnt lgkmcnt(0)\ns_barrier")
    tr()
    mx = vD
    for i in range(4): a(f"ds_read_b128 v[{mx+4*i}:{mx+4*i+3}], v{t1} offset:{L_MX+16*i}")
    nxt(vint[4])
    a("s_waitcnt lgkmcnt(0)")
    a(f"v_max3_f32 v{mx}, v{mx}, v{mx+1}, v{mx+2}\nv_max3_f32 v{mx+3}, v{mx+3}, v{mx+4}, v{mx+5}\nv_max3_f32 v{mx+6}, v{mx+6}, v{mx+7}, v{mx+8}\nv_max3_f32 v{mx+9}, v{mx+9}, v{mx+10}, v{mx+11}\nv_max3_f32 v{mx+12}, v{mx+12}, v{mx+13}, v{mx+14}")
    a(f"v_max3_f32 v{mx}, v{mx}, v{mx+3}, v{mx+6}\nv_max3_f32 v{mx+9}, v{mx+9}, v{mx+12}, v{mx+15}\nv_max_f32 v{vMX}, v{mx}, v{mx+9}")
    for u in range(4): a(f"v_sub_f32 v{sc[u]}, v{sc[u]}, v{vMX}")
    for u in range(4): a(f"v_mul_f32 v{sc[u]}, s{sLOG2E}, v{sc[u]}")
    for u in range(4): a(f"v_exp_f32 v{sc[u]}, v{sc[u]}")
    for u in range(4): a(f"v_cvt_pk_bf16_f32 v{vPP+u}, v{sc[u]}, v{sc[u]}")
    Bs = [vB0, vB1]
    def build(dst, pp, d=None):
        for w in range(4):
            if d is None: a(f"v_and_b32 v{dst+w}, v{pp}, v{vM[w]}")
            else: a(f"v_and_b32_dpp v{dst+w}, v{pp}, v{vM[w]} {d} row_mask:0xf bank_mask:0xf")
    a(f"v_add_f32 v{t0}, v{sc[0]}, v{sc[1]}\nv_add_f32 v{t1}, v{sc[2]}, v{sc[3]}\nv_add_f32 v{t0}, v{t0}, v{t1}")
    build(Bs[0], vPP, "row_newbcast:0")
    for m in ("row_ror:4", "row_ror:8"): dpp("add_f32", t0, m)
    a(f"ds_write_b32 v{vSL}, v{t0} offset:{L_LS}")
    a(f"v_mov_b32 v{t1}, 0\nds_write_b32 v{t1}, v{vMX} offset:{L_FLAG+4}")
    tr()
    stamp()
    for t in range(16):
        if t + 1 < 16: build(Bs[(t + 1) % 2], vPP + (t + 1) // 4, f"row_newbcast:{4*((t+1)%4)}")
        a.wait(f"V{t}"); tr(1); mfma(vDo, vV + 4 * t, Bs[t % 2], t == 0); nxt(pvn)
    assert not queue
    tr()
    stamp()
    a(f"ds_write_b128 v{vRAW}, v[{vDo}:{vDo+3}] offset:{L_RO}")
    a("s_waitcnt lgkmcnt(0)\ns_barrier")
    tr()
    poll("G2", "G2", [vGa + 9, vGa + 11], vF, g2txt, mask=sHV)
    tr()
    hv = [vGa + 8, vGa + 10]
    red8(hv)
    a(f"v_cvt_pk_bf16_f32 v{t0}, v{hv[0]}, v{hv[1]}\nv_lshlrev_b32 v{hv[0]}, 16, v{t0}\nv_and_b32 v{hv[1]}, 0xffff0000, v{t0}")
    ev = [vF[0], vF[1]]
    for j in range(2): a(f"v_mul_f32 v{ev[j]}, s{sLOG2E}, v{hv[j]}")
    for j in range(2): a(f"v_exp_f32 v{ev[j]}, -v{ev[j]}")
    for j in range(2): a(f"v_add_f32 v{ev[j]}, 1.0, v{ev[j]}")
    for j in range(2): a(f"v_rcp_f32 v{ev[j]}, v{ev[j]}")
    for j in range(2): a(f"v_mul_f32 v{hv[j]}, v{hv[j]}, v{ev[j]}")
    for j in range(2): a(f"v_cvt_pk_bf16_f32 v{hv[j]}, v{hv[j]}, v{hv[j]}")
    for j in range(2): a(f"v_cndmask_b32 v{hv[j]}, 0, v{hv[j]}, s[{sHV}:{sHV+1}]")
    build(Bs[0], hv[0]); build(Bs[1], hv[1])
    g3txt = (f"buffer_load_dwordx4 v[{vGa}:{vGa+3}], v{vGq}, {srd(SWS)}, 0 offen {ldf}\n"
             f"buffer_load_dwordx4 v[{vGa+4}:{vGa+7}], v{vGq}, {srd(SWS)}, 0 offen offset:16 {ldf}\n"
             f"buffer_load_dwordx4 v[{vGa+8}:{vGa+11}], v{vGm}, {srd(SWS)}, 0 offen {ldf}")
    a.wait("w20"); mfma(vDy, vW2, Bs[0], True)
    a.wait("w21"); mfma(vDy, vW2 + 4, Bs[1], False)
    tr()
    stamp()
    a(g3txt)
    poll("G3", None, [vGa + 1, vGa + 3, vGa + 5, vGa + 7, vGa + 9, vGa + 11], vF, g3txt)
    tr()
    stamp()
    vm_, vl_ = vGa + 8, vGa + 10
    a(f"v_mov_b32 v{t0}, v{vm_}")
    red8([t0], "max_f32")
    a(f"v_sub_f32 v{t0}, v{vm_}, v{t0}\nv_mul_f32 v{t0}, s{sLOG2E}, v{t0}\nv_exp_f32 v{t0}, v{t0}")
    ov = [vGa, vGa + 2, vGa + 4, vGa + 6]
    a(f"v_mul_f32 v{vl_}, v{vl_}, v{t0}")
    for v in ov: a(f"v_mul_f32 v{v}, v{v}, v{t0}")
    red8([vl_] + ov)
    a(f"v_rcp_f32 v{vl_}, v{vl_}")
    for v in ov: a(f"v_mul_f32 v{v}, v{v}, v{vl_}")
    for v in ov: a(f"v_cvt_pk_bf16_f32 v{v}, v{v}, v{v}")
    build(Bs[0], ov[0])
    for t in range(4):
        if t + 1 < 4: build(Bs[(t + 1) % 2], ov[t + 1])
        mfma(vDy, vWO + 4 * t, Bs[t % 2], False)
    a(f"s_lshl_b32 s{sT0}, s{sS}, 14\ns_lshl_b32 s{sT1}, s{sCQ}, 5\ns_add_u32 s{sT0}, s{sT0}, s{sT1}\ns_add_u32 s{sT0}, s{sT0}, {YP0}")
    a(f"v_lshrrev_b32 v{t0}, 1, v{vL}\nv_lshlrev_b32 v{t0}, 9, v{t0}\nv_and_b32 v{t1}, 1, v{vL}\nv_lshl_add_u32 v{t0}, v{t1}, 4, v{t0}\nv_add_u32 v{vGq}, s{sT0}, v{t0}")
    a(f"ds_write_b128 v{vRAW}, v[{vDy}:{vDy+3}] offset:{L_RY}")
    tr()
    a("s_waitcnt lgkmcnt(0)\ns_barrier")
    tr()
    stamp()
    lfin = "L_main_fin"
    a(f"s_and_b32 s{sT0}, s{sG}, 1\ns_or_b32 s{sT0}, s{sT0}, s{sW}\ns_cmp_eq_u32 s{sT0}, 0\ns_cbranch_scc0 {lfin}")
    g4txt = f"buffer_load_dwordx4 v[{vGa}:{vGa+3}], v{vGq}, {srd(SWS)}, 0 offen {ldf}"
    a(g4txt)
    a(f"v_lshlrev_b32 v{t2}, 16, v{vXD}\nv_and_b32 v{t3}, 0xffff0000, v{vXD}")
    poll("G4", None, [vGa + 1, vGa + 3], vF, g4txt)
    yv = [vGa, vGa + 2]
    for m in ("quad_perm:[2,3,0,1]", "row_ror:4", "row_ror:8"):
        for v in yv: dpp("add_f32", v, m)
    for sw in ("v_permlane16_swap_b32", "v_permlane32_swap_b32"):
        a(f"v_mov_b32 v{vF[0]}, v{yv[0]}\nv_mov_b32 v{vF[1]}, v{yv[1]}")
        a(f"{sw} v{yv[0]}, v{vF[0]}\n{sw} v{yv[1]}, v{vF[1]}")
        a(f"v_add_f32 v{yv[0]}, v{yv[0]}, v{vF[0]}\nv_add_f32 v{yv[1]}, v{yv[1]}, v{vF[1]}")
    a(f"v_add_f32 v{yv[0]}, v{yv[0]}, v{t2}\nv_add_f32 v{yv[1]}, v{yv[1]}, v{t3}\nv_cvt_pk_bf16_f32 v{yv[0]}, v{yv[0]}, v{yv[1]}")
    a("s_mov_b64 exec, 3")
    a(f"buffer_store_dword v{yv[0]}, v{vOUT}, {srd(SOUT)}, 0 offen")
    a(f"s_or_b32 s{sT0}, s{sS}, s{sG}\ns_cmp_eq_u32 s{sT0}, 0\ns_cbranch_scc0 {lfin}")
    a(f"s_mov_b64 exec, 1\nv_mov_b32 v{t0}, 0\nv_mov_b32 v{t1}, s{sTAG}\nbuffer_store_dword v{t1}, v{t0}, {srd(SWS)}, 0 offen" + ("" if eplain else " " + stf))
    a.label(lfin)
    stamp()
    dump(trace_too=True)
    a("s_endpgm")

    a.label("L_aux")
    a(f"s_cmp_eq_u32 s{sW}, 6\ns_cbranch_scc1 L_gath")
    vXA = 8
    vF = list(range(12, 20)); vE = list(range(20, 28))
    vSel = [[28 + 2 * w + p for p in range(2)] for w in range(4)]
    vPair = 36; vB = [44, 48]; vDp = 52; vWt = 64
    vOff, vRd, vPub, vVal = 6, 7, 56, 60
    u0, u1, u2, u3 = 57, 58, 59, 128
    vMU, vSD, vR = 129, 130, 131
    SWt = SA
    a(f"v_lshlrev_b32 v{u0}, 4, v{vL}")
    a(f"s_cmp_eq_u32 s{sW}, 5\ns_cbranch_scc1 L_w1_addr")
    a(f"v_lshlrev_b32 v{vOff}, 17, v{vG4}\nv_lshl_add_u32 v{vOff}, v{vI}, 4, v{vOff}")
    a(f"s_lshl_b32 s{sT0}, s{sS}, 19\ns_lshl_b32 s{sT1}, s{sG}, 8\ns_add_u32 s{sOFF}, s{sT0}, s{sT1}")
    a("s_waitcnt lgkmcnt(0)")
    mk(SX, 4, 1024)
    a.vm = []
    a.vmem("xa", f"buffer_load_dwordx4 v[{vXA}:{vXA+3}], v{u0}, {srd(SX)}, 0 offen")
    mk(SWt, 10, 63 * 8192 + 256, sOFF)
    a(f"s_mov_b32 s{sO1}, 0")
    for t in range(16):
        a.vmem(f"w{t}", f"buffer_load_dwordx4 v[{vWt+4*t}:{vWt+4*t+3}], v{vOff}, {srd(SWt)}, s{sO1} offen nt")
        if t < 15: a(f"s_add_u32 s{sO1}, s{sO1}, 8192")
    vm_wq = list(a.vm)
    a("s_branch L_aux_ld")
    a.label("L_w1_addr")
    a(f"s_and_b32 s{sT0}, s2, 7\ns_lshr_b32 s{sT1}, s2, 3\ns_mul_i32 s{sT0}, s{sT0}, 22\ns_add_u32 s{sT0}, s{sT0}, s{sT1}\ns_lshr_b32 s{sBLK}, s{sT0}, 3\ns_and_b32 s{sSROW}, s{sT0}, 7\ns_cmp_lt_u32 s{sT1}, 22\ns_cselect_b32 s{sHAS}, 1, 0")
    a(f"v_mul_u32_u24 v{vOff}, 22016, v{vR8}\nv_lshl_add_u32 v{vOff}, v{vC}, 4, v{vOff}")
    a(f"s_cmp_eq_u32 s{sBLK}, 21\ns_cselect_b32 s{sT0}, 4, 8\nv_cmp_le_u32 vcc, s{sT0}, v{vC}\nv_mov_b32 v{u1}, {OOB}\nv_cndmask_b32 v{vOff}, v{vOff}, v{u1}, vcc")
    a(f"s_mul_i32 s{sT0}, s{sSROW}, {64*2752}\ns_lshl_b32 s{sT1}, s{sBLK}, 7\ns_add_u32 s{sOFF}, s{sT0}, s{sT1}")
    a("s_waitcnt lgkmcnt(0)")
    mk(SX, 4, 1024)
    a(f"buffer_load_dwordx4 v[{vXA}:{vXA+3}], v{u0}, {srd(SX)}, 0 offen")
    a(f"s_add_u32 s{SWt}, s16, s{sOFF}\ns_addc_u32 s{SWt+1}, s17, 0\ns_sub_u32 s{sT0}, 1409024, s{sOFF}\ns_cmp_eq_u32 s{sHAS}, 1\ns_cselect_b32 s{SWt+2}, s{sT0}, 0\ns_mov_b32 s{SWt+3}, 0x20000")
    a(f"s_mov_b32 s{sO1}, 0")
    for t in range(8):
        a(f"buffer_load_dwordx4 v[{vWt+4*t}:{vWt+4*t+3}], v{vOff}, {srd(SWt)}, s{sO1} offen nt")
        if t < 7: a(f"s_add_u32 s{sO1}, s{sO1}, 2752")
    a.label("L_aux_ld")
    stamp()
    if b1: a("s_barrier")
    mk(SWS, 24, ws_lim)
    a(f"v_mov_b32 v{u1}, 0x0c0c0100\nv_mov_b32 v{u2}, 0x01000c0c\ns_mov_b32 s{sMK}, 0xaaaaaaaa\ns_mov_b32 s{sMK+1}, 0xaaaaaaaa\nv_cndmask_b32 v{vE[0]}, v{u1}, v{u2}, s[{sMK}:{sMK+1}]")
    a(f"v_mov_b32 v{u1}, 0x0c0c0302\nv_mov_b32 v{u2}, 0x03020c0c\nv_cndmask_b32 v{vE[1]}, v{u1}, v{u2}, s[{sMK}:{sMK+1}]\nv_mov_b32 v{u1}, 0x0c0c0c0c")
    for w in range(4):
        m = 0x03030303 << (2 * w)
        a(f"s_mov_b32 s{sMK}, {m:#x}\ns_mov_b32 s{sMK+1}, {m:#x}")
        for p in range(2): a(f"v_cndmask_b32 v{vSel[w][p]}, v{u1}, v{vE[p]}, s[{sMK}:{sMK+1}]")
    lx1, lx2 = a.newlabel("Lx"), a.newlabel("Lx")
    a(f"s_cmp_eq_u32 s{sW}, 5\ns_cbranch_scc1 {lx1}\ns_waitcnt vmcnt(16)\ns_branch {lx2}")
    a.label(lx1); a("s_waitcnt vmcnt(8)"); a.label(lx2)
    for j in range(4): a(f"v_lshlrev_b32 v{vF[2*j]}, 16, v{vXA+j}\nv_and_b32 v{vF[2*j+1]}, 0xffff0000, v{vXA+j}")
    def wave_sum(v, sdst):
        for m in ("quad_perm:[1,0,3,2]", "quad_perm:[2,3,0,1]", "row_half_mirror", "row_mirror"): dpp("add_f32", v, m)
        a(f"v_add_f32_dpp v{v}, v{v}, v{v} row_bcast:15 row_mask:0xa bank_mask:0xf")
        a(f"v_add_f32_dpp v{v}, v{v}, v{v} row_bcast:31 row_mask:0xc bank_mask:0xf")
        a(f"v_readlane_b32 s{sdst}, v{v}, 63")
    a(f"v_add_f32 v{u0}, v{vF[0]}, v{vF[1]}\nv_add_f32 v{u1}, v{vF[2]}, v{vF[3]}\nv_add_f32 v{u2}, v{vF[4]}, v{vF[5]}\nv_add_f32 v{u3}, v{vF[6]}, v{vF[7]}")
    a(f"v_add_f32 v{u0}, v{u0}, v{u1}\nv_add_f32 v{u2}, v{u2}, v{u3}\nv_add_f32 v{u0}, v{u0}, v{u2}")
    wave_sum(u0, sT0)
    a(f"v_mov_b32 v{u1}, 0x3b000000\nv_mul_f32 v{vMU}, s{sT0}, v{u1}")
    for j in range(8): a(f"v_sub_f32 v{vE[j]}, v{vF[j]}, v{vMU}")
    a(f"v_mul_f32 v{u0}, v{vE[0]}, v{vE[0]}\nv_mul_f32 v{u2}, v{vE[1]}, v{vE[1]}")
    for j in range(2, 8, 2): a(f"v_fmac_f32 v{u0}, v{vE[j]}, v{vE[j]}\nv_fmac_f32 v{u2}, v{vE[j+1]}, v{vE[j+1]}")
    a(f"v_add_f32 v{u0}, v{u0}, v{u2}")
    def rbf(v): a(f"v_cvt_pk_bf16_f32 v{v}, v{v}, v{v}\nv_and_b32 v{v}, 0xffff0000, v{v}")
    rbf(vMU)
    for j in range(8): a(f"v_sub_f32 v{vF[j]}, v{vF[j]}, v{vMU}")
    wave_sum(u0, sT0)
    for j in range(0, 8, 2): a(f"v_cvt_pk_bf16_f32 v{vE[j//2]}, v{vF[j]}, v{vF[j+1]}")
    a(f"v_mul_f32 v{u0}, s{sT0}, v{u1}")
    for j in range(0, 8, 2): a(f"v_lshlrev_b32 v{vF[j]}, 16, v{vE[j//2]}\nv_and_b32 v{vF[j+1]}, 0xffff0000, v{vE[j//2]}")
    rbf(u0)
    a(f"v_add_f32 v{u0}, 0x3727c5ac, v{u0}")
    rbf(u0)
    a(f"v_sqrt_f32 v{vSD}, v{u0}")
    rbf(vSD)
    a(f"v_rcp_f32 v{vR}, v{vSD}")
    for j in range(8): a(f"v_mul_f32 v{vF[j]}, v{vF[j]}, v{vR}")
    for j in range(0, 8, 2): a(f"v_cvt_pk_bf16_f32 v{vXA+j//2}, v{vF[j]}, v{vF[j+1]}")
    a(f"s_sub_u32 s{sT0}, s{sW}, 4\ns_lshl_b32 s{sT0}, s{sT0}, 10\nv_lshlrev_b32 v{u0}, 4, v{vL}\nv_add_u32 v{u0}, s{sT0}, v{u0}")
    a(f"ds_write_b128 v{u0}, v[{vXA}:{vXA+3}] offset:{L_XN0}")
    stamp()
    a(f"s_cmp_eq_u32 s{sW}, 5\ns_cbranch_scc1 L_prod_w1")
    a(f"s_lshl_b32 s{sT0}, s{sS}, 7\nv_lshlrev_b32 v{u1}, 5, v{vG4}\nv_add_u32 v{u1}, s{sT0}, v{u1}")
    a(f"ds_read_b128 v[{vPair}:{vPair+3}], v{u1} offset:{L_XN0}\nds_read_b128 v[{vPair+4}:{vPair+7}], v{u1} offset:{L_XN0+16}")
    a(f"v_lshrrev_b32 v{vRd}, 4, v{vL}\nv_lshlrev_b32 v{vRd}, 6, v{vRd}\nv_and_b32 v{u2}, 3, v{vL}\nv_lshl_add_u32 v{vRd}, v{u2}, 3, v{vRd}\nv_bfe_u32 v{u2}, v{vL}, 2, 2\nv_add_lshl_u32 v{vRd}, v{vRd}, v{u2}, 2")
    a(f"s_lshl_b32 s{sT0}, s{sG}, 3\ns_add_u32 s{sT0}, s{sT0}, s{sS}\ns_lshl_b32 s{sT0}, s{sT0}, 10\ns_add_u32 s{sT0}, s{sT0}, {QP0}\nv_lshlrev_b32 v{vPub}, 4, v{vL}\nv_add_u32 v{vPub}, s{sT0}, v{vPub}")
    a("s_waitcnt lgkmcnt(0)")
    get_tag()
    def pbuild(dst, t):
        for w in range(4): a(f"v_perm_b32 v{dst+w}, v{vPair+t//2}, v{vPair+t//2}, v{vSel[w][t%2]}")
    a.vm = vm_wq
    pbuild(vB[0], 0)
    for t in range(16):
        if t + 1 < 16: pbuild(vB[(t + 1) % 2], t + 1)
        a.wait(f"w{t}")
        if b1b is not None and t == b1b: a("s_barrier")
        mfma(vDp, vWt + 4 * t, vB[t % 2], t == 0)
    fin_tag()
    a(f"v_lshlrev_b32 v{u0}, 4, v{vL}\nv_mov_b32 v{vVal+1}, s{sTAGQ}\nv_mov_b32 v{vVal+3}, s{sTAGQ}")
    a(f"ds_write_b128 v{u0}, v[{vDp}:{vDp+3}] offset:{L_RQ}")
    a(f"ds_read_b32 v{vVal}, v{vRd} offset:{L_RQ}\nds_read_b32 v{vVal+2}, v{vRd} offset:{L_RQ+16}")
    a("s_waitcnt lgkmcnt(0)")
    if fastq: a(f"s_mov_b32 s{sFQ}, {FASTQ:#x}\nbuffer_store_dwordx4 v[{vVal}:{vVal+3}], v{vPub}, {srd(SWS)}, s{sFQ} offen")
    a(f"buffer_store_dwordx4 v[{vVal}:{vVal+3}], v{vPub}, {srd(SWS)}, 0 offen {stf}")
    if agather: a(f"v_mov_b32 v{u0}, 0\nv_mov_b32 v{u1}, s{sTAG}\nds_write_b32 v{u0}, v{u1} offset:{L_FLAG}")
    a("s_branch L_prod_done")
    a.label("L_prod_w1")
    a(f"s_lshl_b32 s{sT0}, s{sSROW}, 7\nv_lshlrev_b32 v{u1}, 4, v{vR8}\nv_add_u32 v{u1}, s{sT0}, v{u1}")
    a(f"ds_read_b128 v[{vPair}:{vPair+3}], v{u1} offset:{L_XN1}")
    addr_d(vRd, vL, u2)
    a(f"s_mul_i32 s{sT0}, s{sSROW}, {HP_STRIDE}\ns_lshl_b32 s{sT1}, s{sBLK}, 9\ns_add_u32 s{sT0}, s{sT0}, s{sT1}\ns_add_u32 s{sT0}, s{sT0}, {HP0}\ns_cmp_eq_u32 s{sHAS}, 1\ns_cselect_b32 s{sT0}, s{sT0}, {OOB}")
    a(f"v_lshlrev_b32 v{vPub}, 3, v{vL}\nv_add_u32 v{vPub}, s{sT0}, v{vPub}")
    a("s_waitcnt lgkmcnt(0)")
    get_tag()
    pbuild(vB[0], 0)
    for t in range(8):
        if t + 1 < 8: pbuild(vB[(t + 1) % 2], t + 1)
        a(f"s_waitcnt vmcnt({7-t})")
        if b1b is not None and t == 0: a("s_barrier")
        mfma(vDp, vWt + 4 * t, vB[t % 2], t == 0)
    fin_tag(q=False)
    a(f"v_lshlrev_b32 v{u0}, 4, v{vL}\nv_mov_b32 v{vVal+1}, s{sTAG}")
    a(f"ds_write_b128 v{u0}, v[{vDp}:{vDp+3}] offset:{L_RH}")
    a(f"ds_read_b32 v{vVal}, v{vRd} offset:{L_RH}\nds_read_b32 v{vVal+2}, v{vRd} offset:{L_RH+640}")
    a(f"s_waitcnt lgkmcnt(0)\nv_add_f32 v{vVal}, v{vVal}, v{vVal+2}")
    a(f"buffer_store_dwordx2 v[{vVal}:{vVal+1}], v{vPub}, {srd(SWS)}, 0 offen {stf}")
    a.label("L_prod_done")
    stamp()
    a(f"s_sub_u32 s{sT0}, s{sW}, 4\ns_lshl_b32 s{sT0}, s{sT0}, 6\nv_add_u32 v{u0}, s{sT0}, v{vL}")
    addr_d(vRd, u0, u2)
    a(f"s_lshl_b32 s{sT0}, s{sG}, 3\ns_add_u32 s{sT0}, s{sT0}, s{sS}\ns_lshl_b32 s{sT0}, s{sT0}, 10\ns_add_u32 s{sT0}, s{sT0}, {OP0}\nv_lshlrev_b32 v{vPub}, 3, v{u0}\nv_add_u32 v{vPub}, s{sT0}, v{vPub}")
    a(f"v_mov_b32 v{vVal+1}, s{sTAG}\ns_mov_b32 s{sREG}, {FASTD}")
    a("s_waitcnt lgkmcnt(0)\ns_barrier\ns_barrier\ns_barrier")
    o = L_RO // 256
    a(f"ds_read2st64_b32 v[{vF[0]}:{vF[1]}], v{vRd} offset0:{o} offset1:{o+4}\nds_read2st64_b32 v[{vF[2]}:{vF[3]}], v{vRd} offset0:{o+8} offset1:{o+12}")
    a(f"s_waitcnt lgkmcnt(0)\nv_add_f32 v{vF[0]}, v{vF[0]}, v{vF[1]}\nv_add_f32 v{vF[2]}, v{vF[2]}, v{vF[3]}\nv_add_f32 v{vVal}, v{vF[0]}, v{vF[2]}")
    if fast: a(f"buffer_store_dwordx2 v[{vVal}:{vVal+1}], v{vPub}, {srd(SWS)}, s{sREG} offen")
    a(f"buffer_store_dwordx2 v[{vVal}:{vVal+1}], v{vPub}, {srd(SWS)}, 0 offen {stf}")
    stamp()
    a(f"s_cmp_eq_u32 s{sW}, 5\ns_cbranch_scc0 L_ypub\ns_barrier\ns_branch L_aux_fin")
    a.label("L_ypub")
    addr_d(vRd, vL, u2)
    a(f"v_add_u32 v{u0}, 640, v{vRd}")
    a(f"s_lshl_b32 s{sT0}, s{sS}, 5\ns_add_u32 s{sT0}, s{sT0}, s{sG}\ns_lshl_b32 s{sT0}, s{sT0}, 9\ns_add_u32 s{sT0}, s{sT0}, {YP0}\nv_lshlrev_b32 v{vPub}, 3, v{vL}\nv_add_u32 v{vPub}, s{sT0}, v{vPub}")
    a("s_barrier")
    o = L_RY // 256
    a(f"ds_read2st64_b32 v[{vF[0]}:{vF[1]}], v{vRd} offset0:{o} offset1:{o+4}\nds_read2st64_b32 v[{vF[2]}:{vF[3]}], v{vRd} offset0:{o+8} offset1:{o+12}")
    a(f"ds_read2st64_b32 v[{vF[4]}:{vF[5]}], v{u0} offset0:{o} offset1:{o+4}\nds_read2st64_b32 v[{vF[6]}:{vF[7]}], v{u0} offset0:{o+8} offset1:{o+12}")
    a("s_waitcnt lgkmcnt(0)")
    a(f"v_add_f32 v{vF[0]}, v{vF[0]}, v{vF[1]}\nv_add_f32 v{vF[2]}, v{vF[2]}, v{vF[3]}\nv_add_f32 v{vF[4]}, v{vF[4]}, v{vF[5]}\nv_add_f32 v{vF[6]}, v{vF[6]}, v{vF[7]}")
    a(f"v_add_f32 v{vF[0]}, v{vF[0]}, v{vF[2]}\nv_add_f32 v{vF[4]}, v{vF[4]}, v{vF[6]}\nv_add_f32 v{vVal}, v{vF[0]}, v{vF[4]}")
    a(f"buffer_store_dwordx2 v[{vVal}:{vVal+1}], v{vPub}, {srd(SWS)}, 0 offen {stf}")
    stamp()
    a.label("L_aux_fin")
    dump()
    a("s_endpgm")

    a.label("L_gath")
    St.n = 0
    vGo, vGd = 6, 64
    tmp = list(range(12, 28))
    a(f"s_lshl_b32 s{sT0}, s{sG}, 13\ns_add_u32 s{sT0}, s{sT0}, {QP0}\nv_lshlrev_b32 v{vGo}, 10, v{vC}\nv_lshl_add_u32 v{vGo}, v{vR8}, 7, v{vGo}\nv_add_u32 v{vGo}, s{sT0}, v{vGo}")
    a(f"v_mov_b32 v28, 0\nv_mov_b32 v29, 0\nv_mov_b32 v30, 0\nv_mov_b32 v31, 0\nds_write_b128 v28, v[28:31] offset:{L_ZB}")
    a("s_waitcnt lgkmcnt(0)")
    get_tag()
    if tlb:
        a(f"s_lshl_b32 s{sT0}, s{sG}, 21\ns_add_u32 s{sT0}, s{sT0}, 0x180000\ns_add_u32 s40, s8, s{sT0}\ns_addc_u32 s41, s9, 0\ns_load_dword s44, s[40:41], 0")
        a(f"s_lshl_b32 s{sT0}, s{sG}, 17\ns_add_u32 s42, s12, s{sT0}\ns_addc_u32 s43, s13, 0\ns_load_dword s45, s[42:43], 0")
        a(f"s_mul_i32 s{sT0}, s{sG}, {43*1024}\ns_add_u32 s36, s18, s{sT0}\ns_addc_u32 s37, s19, 0\ns_load_dword s46, s[36:37], 0")
    a(f"s_mov_b32 s{SWS}, s24\ns_mov_b32 s{SWS+1}, s25\ns_mov_b32 s{SWS+2}, {ws_lim}\ns_mov_b32 s{SWS+3}, 0x20000")
    stamp()
    if b1: a("s_barrier")
    if b1b is not None: a("s_barrier")
    fin_tag()
    if touch:
        a(f"s_lshl_b32 s{sT0}, s{sG}, 3\ns_add_u32 s{sT0}, s{sT0}, s{sS}\ns_lshl_b32 s{sT0}, s{sT0}, 10\nv_lshlrev_b32 v40, 4, v{vL}\nv_add_u32 v40, s{sT0}, v40")
        if touch == 1:
            a(f"v_add_u32 v41, {QP0}, v40\nbuffer_load_dwordx4 v[44:47], v41, {srd(SWS)}, 0 offen {ldf}")
            a(f"v_add_u32 v41, {OP0}, v40\nbuffer_load_dwordx4 v[48:51], v41, {srd(SWS)}, 0 offen {ldf}")
        a(f"s_lshl_b32 s{sT0}, s{sS}, 5\ns_add_u32 s{sT0}, s{sT0}, s{sG}\ns_lshl_b32 s{sT0}, s{sT0}, 9\ns_add_u32 s{sT0}, s{sT0}, {YP0}\nv_lshlrev_b32 v41, 3, v{vL}\nv_add_u32 v41, s{sT0}, v41")
        a(f"buffer_load_dwordx2 v[52:53], v41, {srd(SWS)}, 0 offen {ldf}")
    a(f"s_lshl_b32 s{sT0}, s{sG}, 7\ns_lshl_b32 s{sT1}, s{sS}, 4\ns_add_u32 s{sT0}, s{sT0}, s{sT1}\ns_add_u32 s{sT0}, s{sT0}, {ML0}")
    a(f"v_lshlrev_b32 v34, 3, v{vL}\nv_add_u32 v34, s{sT0}, v34\nv_cmp_gt_u32 vcc, 2, v{vL}\nv_mov_b32 v35, {OOB}\nv_cndmask_b32 v34, v35, v34, vcc")
    a(f"v_mov_b32 v37, s{sTAG}\ns_mov_b32 s{sFQ}, {FASTQ if fastq else 0:#x}")
    if agather:
        lsp, lgo = a.newlabel("Lsp"), a.newlabel("Lgo")
        a.label(lsp)
        a(f"ds_read_b32 v32, v28 offset:{L_FLAG}\ns_waitcnt lgkmcnt(0)\nv_readfirstlane_b32 s{sT0}, v32\ns_cmp_eq_u32 s{sT0}, s{sTAG}\ns_cbranch_scc1 {lgo}")
        a(f"s_sleep 1\ns_sub_u32 s{sRETRY}, s{sRETRY}, 1\ns_cmp_gt_i32 s{sRETRY}, 0\ns_cbranch_scc1 {lsp}")
        a.label(lgo)
        a(f"s_mov_b32 s{sRETRY}, 100000")
        stamp()
        def g1a(so): return "\n".join(f"buffer_load_dwordx4 v[{vGd+4*k}:{vGd+4*k+3}], v{vGo}, {srd(SWS)}, {so} offen offset:{16*k} {ldf}" for k in range(8))
        first = g1a(f"s{sFQ}") if fastq else g1a("0")
        a(first)
        xr = poll("G1", None, [vGd + 2 * k + 1 for k in range(16)], tmp, first, q=True, reissue2=(g1a("0") if fastq else None))
        a(f"v_cmp_ne_u32 vcc, 0, v{xr}\ns_cmp_eq_u64 vcc, 0\ns_cselect_b32 s{sT1}, {FASTD if fast else 0}, 0\nv_mov_b32 v33, s{sT1}\nds_write_b32 v28, v33 offset:{L_FLAG+8}")
        stamp()
        qv = [vGd + 2 * k for k in range(16)]
        red8(qv)
        for k in range(8): a(f"v_cvt_pk_bf16_f32 v{12+k}, v{qv[2*k]}, v{qv[2*k+1]}")
        a(f"v_lshlrev_b32 v33, 5, v{vR8}")
        a(f"s_mov_b64 s[{sEX}:{sEX+1}], exec\ns_mov_b32 exec_lo, 0x01010101\ns_mov_b32 exec_hi, 0x01010101")
        a(f"ds_write_b128 v33, v[12:15] offset:{L_QB}\nds_write_b128 v33, v[16:19] offset:{L_QB+16}")
        a(f"s_mov_b64 exec, s[{sEX}:{sEX+1}]")
    a(f"s_mov_b32 s{sREG}, {FASTD}\ns_waitcnt vmcnt(0) lgkmcnt(0)")
    stamp()
    a("s_barrier\ns_barrier\ns_barrier")
    ls = 40
    for i in range(4): a(f"ds_read_b128 v[{ls+4*i}:{ls+4*i+3}], v28 offset:{L_LS+16*i}")
    a(f"ds_read_b32 v38, v28 offset:{L_FLAG+4}")
    a(f"v_cmp_eq_u32 vcc, 0, v{vL}\ns_waitcnt lgkmcnt(0)")
    for st in (1, 2, 4, 8):
        for i in range(0, 16, 2 * st): a(f"v_add_f32 v{ls+i}, v{ls+i}, v{ls+i+st}")
    a(f"v_cndmask_b32 v36, v{ls}, v38, vcc")
    if fast: a(f"buffer_store_dwordx2 v[36:37], v34, {srd(SWS)}, s{sREG} offen")
    a(f"buffer_store_dwordx2 v[36:37], v34, {srd(SWS)}, 0 offen {stf}")
    stamp()
    a("s_barrier")
    dump()
    a.label("L_end")
    a("s_endpgm")
    return wrap(a.text(), 256, 448, lds, vgpr=256, sgpr=102)

if __name__ == "__main__":
    out = sys.argv[1]
    kw = {}
    for arg in sys.argv[2:]:
        k, v = arg.split("=")
        if k == "vint": kw[k] = tuple(int(c) for c in v)
        else: kw[k] = int(v, 0) if re.fullmatch(r"-?(0x)?[0-9a-fA-F]+", v) and not v.startswith("sc") else v.replace("+", " ")
    open(out, "w").write(gen(**kw))
```

```python
import re
NAME = "parallel_sum__sliding_block_cached__dense_activation_silu__decode"
KNAME = NAME + "_kernel"
HEADER = open("cdna_kernels/" + NAME + ".s.ref").read().split("; Override launch")[0]

TRANS = ("v_exp_f32", "v_log_f32", "v_rcp_f32", "v_rsq_f32", "v_sqrt_f32", "v_sin_f32", "v_cos_f32", "v_rcp_iflag_f32")

def regs_of(tok):
    tok = tok.strip()
    neg = tok.lstrip("-")
    if neg.startswith("abs(") and neg.endswith(")"): neg = neg[4:-1]
    if neg.startswith("|") and neg.endswith("|"): neg = neg[1:-1]
    m = re.fullmatch(r"([vsa])(\d+)", neg)
    if m: return [(m.group(1), int(m.group(2)))]
    m = re.fullmatch(r"([vsa])\[(\d+):(\d+)\]", neg)
    if m: return [(m.group(1), i) for i in range(int(m.group(2)), int(m.group(3)) + 1)]
    if neg == "vcc": return [("s", "vcc")]
    if neg in ("vcc_lo", "vcc_hi"): return [("s", "vcc")]
    if neg == "exec": return [("s", "exec")]
    if neg == "m0": return [("s", "m0")]
    return []

class Ins:
    def __init__(self, text):
        self.text = text
        t = text.split(";")[0].strip()
        parts = t.split(None, 1)
        self.mn = parts[0]
        rest = parts[1] if len(parts) > 1 else ""
        ops, depth, cur = [], 0, ""
        for ch in rest:
            if ch == "[": depth += 1
            if ch == "]": depth -= 1
            if ch == "," and depth == 0: ops.append(cur); cur = ""
            else: cur += ch
        if cur.strip(): ops.append(cur)
        toks = []
        self.mods = ""
        for i, o in enumerate(ops):
            o = o.strip()
            if i == len(ops) - 1:
                sp = o.split(None, 1)
                if sp and "[" in sp[0] and "]" not in sp[0]:
                    toks.append(o)
                else:
                    toks.append(sp[0] if sp else "")
                    self.mods = sp[1] if len(sp) > 1 else ""
            else:
                toks.append(o)
        self.ops = toks
        mn = self.mn
        self.is_mfma = mn.startswith("v_mfma")
        self.is_valu = mn.startswith("v_") and not self.is_mfma
        self.is_dpp = "_dpp" in mn or any(k in (self.mods + " " + " ".join(toks)) for k in ("quad_perm", "row_", "wave_"))
        base = re.sub(r"_(e32|e64|dpp|sdwa)$", "", mn)
        self.base = base
        self.is_trans = base in TRANS
        self.is_ds = mn.startswith("ds_")
        self.is_vmem = mn.startswith(("buffer_", "global_", "flat_", "scratch_"))
        self.is_salu = mn.startswith("s_")
        self.vw, self.vr, self.sw, self.sr = set(), set(), set(), set()
        self.srcC = set(); self.ab = set()
        R = [regs_of(t) for t in toks]
        def addr(lst):
            for r in lst:
                (self.vr if r[0] in "va" else self.sr).add(r)
        def addw(lst):
            for r in lst:
                (self.vw if r[0] in "va" else self.sw).add(r)
        if self.is_mfma:
            addw(R[0]); addr(R[1]); addr(R[2]); addr(R[3])
            self.srcC = set(R[3]); self.ab = set(R[1]) | set(R[2])
        elif self.is_valu:
            if base.startswith("v_cmp"):
                addw(R[0]); [addr(x) for x in R[1:]]
                if base.startswith("v_cmpx"): self.sw.add(("s", "exec"))
            elif base in ("v_readfirstlane_b32", "v_readlane_b32"):
                addw(R[0]); [addr(x) for x in R[1:]]
            elif base.startswith("v_permlane") and "swap" in base:
                addw(R[0]); addw(R[1]); addr(R[0]); addr(R[1])
            elif "_co_" in base or base in ("v_div_scale_f32", "v_mad_u64_u32"):
                addw(R[0]); addw(R[1]); [addr(x) for x in R[2:]]
            else:
                addw(R[0]); [addr(x) for x in R[1:]]
                if base in ("v_fmac_f32", "v_dot2c_f32_bf16", "v_writelane_b32", "v_pk_fmac_f16") or self.is_dpp:
                    addr(R[0])
                if base == "v_div_fmas_f32": self.sr.add(("s", "vcc"))
        elif self.is_ds:
            if mn.startswith(("ds_read", "ds_bpermute", "ds_permute", "ds_swizzle")):
                addw(R[0]); [addr(x) for x in R[1:]]
            else:
                [addr(x) for x in R]
        elif self.is_vmem:
            if "_load" in mn and " lds" not in (" " + self.mods):
                addw(R[0]); [addr(x) for x in R[1:]]
            elif "atomic" in mn and "sc0" in self.mods:
                addw(R[0]); [addr(x) for x in R]
            else:
                [addr(x) for x in R]
        elif self.is_salu:
            if mn.startswith(("s_cmp", "s_cbranch", "s_branch", "s_waitcnt", "s_barrier", "s_nop", "s_endpgm", "s_sleep", "s_setprio", "s_bitcmp")):
                [addr(x) for x in R]
            else:
                if R: addw(R[0])
                [addr(x) for x in R[1:]]
                if "saveexec" in mn: self.sw.add(("s", "exec")); self.sr.add(("s", "exec"))
        self.wide_store = self.is_vmem and ("store_dwordx3" in mn or "store_dwordx4" in mn)
        self.store_data = set(R[0]) if (self.wide_store and mn.startswith("buffer_")) else (set(R[1]) if self.wide_store else set())
        if self.is_mfma:
            self.passes = 8 if "32x32x16" in mn else 4
            if "f32_16x16x4_f32" in mn or "32x32x2_f32" in mn: raise NotImplementedError(mn)

BIG = 100
def need_waits(ins, st):
    need = 0
    def req(key, n):
        nonlocal need
        if key in st: need = max(need, n - st[key])
    if ins.is_mfma:
        for r in ins.vr: req(("vw", r), 2)
        req(("sw", ("s", "exec")), 4)
    if ins.is_valu:
        if ins.is_dpp:
            for r in ins.vr: req(("vw", r), 2)
            req(("sw", ("s", "exec")), 5)
        if ins.base in ("v_readfirstlane_b32", "v_readlane_b32"):
            for r in ins.vr: req(("vw", r), 1)
        if ins.base.startswith("v_permlane"):
            for r in ins.vr: req(("vw", r), 2)
            req(("sw", ("s", "exec")), 4)
        if ins.base in ("v_readlane_b32", "v_writelane_b32", "v_readfirstlane_b32"):
            req(("sw", ("s", "exec")), 4)
        for r in ins.sr:
            if ins.base in ("v_readlane_b32", "v_writelane_b32"): req(("sw", r), 4)
            elif ins.base == "v_div_fmas_f32": req(("sw", r), 4)
            else: req(("sw", r), 2)
        if not ins.is_trans:
            for r in ins.vr: req(("tw", r), 1)
        for r in ins.vw: req(("sd", r), 2)
    if ins.is_vmem:
        for r in ins.sr: req(("sw", r), 5)
    if ins.is_vmem or ins.is_ds:
        for r in ins.vw: req(("sd", r), 1)
    for key, age in st.items():
        if key[0] == "mw":
            _, r, p, D = key
            lat = {4: 8, 8: 12}[p]
            if ins.is_mfma:
                if r in ins.ab: need = max(need, lat - age)
                if r in ins.srcC:
                    if set(D) == ins.srcC and ins.passes == p: pass
                    else: need = max(need, {4: 6, 8: 10}[p] - age)
                elif r in ins.vw:
                    need = max(need, lat - age)
            elif (ins.is_valu or ins.is_vmem or ins.is_ds) and (r in ins.vr or r in ins.vw):
                need = max(need, lat - age)
        if key[0] == "mc":
            _, r, p = key
            if ins.is_valu and r in ins.vw: need = max(need, {4: 3, 8: 7}[p] - age)
    return max(need, 0)

def advance(st, n):
    for k in list(st):
        st[k] += n
        if st[k] > 24: del st[k]

def record(ins, st):
    if ins.is_valu:
        for r in ins.vw:
            st[("vw", r)] = 0
            if ins.is_trans: st[("tw", r)] = 0
            else: st.pop(("tw", r), None)
        for r in ins.sw: st[("sw", r)] = 0
    if ins.is_mfma:
        D = tuple(sorted(ins.vw, key=lambda x: x[1]))
        for r in ins.vw:
            for k in [k for k in st if k[0] == "mw" and k[1] == r]: del st[k]
            st[("mw", r, ins.passes, D)] = 0
        for r in ins.srcC: st[("mc", r, ins.passes)] = 0
    if ins.wide_store:
        for r in ins.store_data: st[("sd", r)] = 0

def merge(a, b):
    out = dict(a)
    for k, v in b.items():
        out[k] = min(out.get(k, BIG), v)
    return out

def pad_hazards(lines):
    label_state = {}
    for it in range(3):
        out = []
        st = {}
        dead = False
        new_label_state = {}
        for ln in lines:
            s = ln.strip()
            if not s or s.startswith(";") or s.startswith("."):
                out.append(ln); continue
            if s.endswith(":"):
                lab = s[:-1]
                inc = label_state.get(lab, {})
                st = dict(inc) if dead else merge(st, inc)
                dead = False
                out.append(ln); continue
            ins = Ins(s)
            if ins.mn == "s_nop":
                advance(st, int(ins.ops[0], 0) + 1); out.append(ln); continue
            n = need_waits(ins, st)
            tot = n
            while n > 0:
                k = min(n, 16)
                out.append(f"    s_nop {k-1}")
                n -= k
            advance(st, tot)
            out.append(ln)
            advance(st, 1)
            record(ins, st)
            if ins.mn.startswith(("s_cbranch", "s_branch")):
                lab = ins.ops[0]
                new_label_state[lab] = merge(new_label_state.get(lab, {}), st)
                if ins.mn == "s_branch": dead = True
            if ins.mn == "s_endpgm": dead = True
        done = (new_label_state == label_state)
        label_state = new_label_state
        lines_out = out
        if done: break
    return lines_out

class Asm:
    def __init__(self):
        self.lines = []
        self._lab = 0
        self.vm = []
    def __call__(self, s):
        for l in s.strip("\n").split("\n"):
            l = l.strip()
            if l: self.lines.append("    " + l)
    def c(self, s): self.lines.append("    ; " + s)
    def label(self, name): self.lines.append(name + ":")
    def newlabel(self, base="L"):
        self._lab += 1
        return f"{base}_{self._lab}"
    def vmem(self, name, text):
        self(text); self.vm.append(name)
    def wait(self, name):
        i = len(self.vm) - 1 - self.vm[::-1].index(name)
        n = len(self.vm) - 1 - i
        assert n <= 63
        self(f"s_waitcnt vmcnt({n})")
    def text(self, pad=True):
        ls = pad_hazards(self.lines) if pad else self.lines
        return "\n".join(ls) + "\n"

def wrap(body, grid, block, lds, vgpr=256, sgpr=102, accum=None):
    if accum is None: accum = min(256, (vgpr + 3) // 4 * 4)
    return (HEADER +
f"""; ---------------------------------------------------------------------------------------------
; One launch, 256 workgroups (one per CU) x 7 waves.  Workgroup b owns head g = 4*(b&7) + ((b>>3)&3)
; and key split s = b>>5 (256 of the last 2048 keys).
;   waves 0-3  stream K then V (64 keys each), scores / softmax / PV by MFMA, then the second FFN
;              matmul and the wo product for 64 output columns, final reduction over heads
;   wave 4     layer norm + partial q (64 rows of wq);  publishes partial o and partial y
;   wave 5     layer norm + partial FFN pre-activation (64x64 block of w1); publishes partial o
;   wave 6     housekeeping, publishes (max, sum) of the split
; Hand-offs between workgroups are 8-byte (value, tag) granules in d_ws; tag = epoch word + const,
; the epoch word is advanced once per launch.  q and o partials are written twice: write-through
; for any placement, and a plain copy that is read when all eight producers report the same XCD.
; ---------------------------------------------------------------------------------------------
; Override launch geometry by editing the next line (default: block=256,
; grid=ceil(out_elems/256), lds=0). Harness parses it; keep it on one line.
; @launch grid=({grid},1,1) block=({block},1,1) lds={lds}
.amdgcn_target "amdgcn-amd-amdhsa--gfx950"
.text
.globl {KNAME}
.p2align 8
.type {KNAME},@function
{KNAME}:
{body}
.section .rodata,"a"
.p2align 6
.amdhsa_kernel {KNAME}
  .amdhsa_next_free_vgpr {vgpr}
  .amdhsa_next_free_sgpr {sgpr}
  .amdhsa_accum_offset {accum}
  .amdhsa_group_segment_fixed_size 0
  .amdhsa_kernarg_size 88
  .amdhsa_user_sgpr_count 2
  .amdhsa_user_sgpr_kernarg_segment_ptr 1
  .amdhsa_system_sgpr_workgroup_id_x 1
.end_amdhsa_kernel
""")
```

```python
import sys, re
from asmlib import *

QP0, HP0, OP0, ML0, YP0, WSLIM = 0x1000, 0x42000, 0x60000, 0xA0000, 0xB0000, 0x170000
FASTQ = 0x120000
FASTD = 0x70000
HP_STRIDE = 1408 * 8
STAMP0 = 0x180000
OOB = 0x10000000
TAGC = 0x9E3779B9

L_RO, L_RY = 0, 4096
L_XN0, L_XN1, L_RQ, L_RH = 8192, 9216, 10240, 11264
L_QB, L_ZB, L_FLAG, L_MX, L_LS = 12288, 12544, 12560, 12608, 12672
LDS_TOTAL = 98304

sW, sG, sS, sTAG = 26, 27, 28, 29
SA, SB, SWO, SW2, SWS, SX, SOUT = 32, 36, 40, 44, 48, 52, 56
sT0, sT1, sT2, sT3 = 30, 31, 60, 61
sO1, sO2, sO3 = 62, 63, 64
sC = [None, 66, 68, 70]
sSCALE, sLOG2E = 72, 73
sEX = 74
sRETRY, sFQ = 76, 77
sHV = 78
sCQ = 80
sBLK, sSROW, sHAS = 81, 82, 83
sMK = 84
sOFF, sTAGQ, sREG = 86, 87, 91
sOFW, sOF2, sN2 = 96, 97, 98
sRQ = 99
def srd(r): return f"s[{r}:{r+3}]"

def gen(stamps=False, trace=0, W=10, W0=4, vrest=10, vint=(6, 1, 1, 1, 0), pvn=3, stf='sc1', ldf='sc1', touch=1, tlb=1,
        prefetch=1, fast=1, fastq=1, agather=1, lds=LDS_TOTAL, g2pos=0, b1b=None, eplain=1, g1b=0, Wv=None, b1=1, g1pos=0, redmap=0):
    a = Asm()
    ST = [92, 4, 6, 8, 10, 12, 14, 16, 18, 20]
    RT = {'G1': 88, 'G2': 89, 'G3': 90, 'G4': 90}
    class St: n = 0
    class Tr: n = 0
    def stamp():
        if stamps:
            i = St.n; St.n += 1
            assert i < 10
            a(f"s_memrealtime s[{ST[i]}:{ST[i]+1}]")
    def tr(level=2):
        if trace == level:
            a(f"s_memrealtime s[94:95]\ns_waitcnt lgkmcnt(0)\nv_writelane_b32 v27, s94, {Tr.n}")
            Tr.n += 1
    def dump(trace_too=False):
        if stamps:
            n = St.n
            if trace and trace_too:
                a(f"s_mov_b64 exec, -1\ns_lshl_b32 s{sT0}, s2, 2\ns_add_u32 s{sT0}, s{sT0}, s{sW}\ns_lshl_b32 s{sT0}, s{sT0}, 8\ns_add_u32 s{sT0}, s{sT0}, 0x1C0000\nv_lshlrev_b32 v2, 2, v1\nv_add_u32 v2, s{sT0}, v2")
                a(f"s_waitcnt lgkmcnt(0)\nbuffer_store_dword v27, v2, {srd(SWS)}, 0 offen")
            a("s_mov_b64 exec, 1\ns_waitcnt lgkmcnt(0) vmcnt(0)")
            a(f"s_lshl_b32 s{sT0}, s2, 3\ns_add_u32 s{sT0}, s{sT0}, s{sW}\ns_lshl_b32 s{sT0}, s{sT0}, 7\ns_add_u32 s{sT0}, s{sT0}, {STAMP0}\nv_mov_b32 v2, s{sT0}")
            a(f"v_mov_b32 v3, s100\nbuffer_store_dword v3, v2, {srd(SWS)}, 0 offen")
            a(f"v_mov_b32 v4, {n}\nbuffer_store_dword v4, v2, {srd(SWS)}, 0 offen offset:4")
            for i in range(n):
                a(f"v_mov_b32 v{30+i}, s{ST[i]}\nbuffer_store_dword v{30+i}, v2, {srd(SWS)}, 0 offen offset:{8+4*i}")
            for i, r in enumerate([88, 89, 90, sRETRY]):
                a(f"v_mov_b32 v{50+i}, s{r}\nbuffer_store_dword v{50+i}, v2, {srd(SWS)}, 0 offen offset:{64+4*i}")
        St.n = 0; Tr.n = 0

    vL, vI, vG4, vC, vR8 = 1, 2, 3, 4, 5
    def mk(r, p, nrec, offreg=None):
        if offreg is not None: a(f"s_add_u32 s{r}, s{p}, s{offreg}\ns_addc_u32 s{r+1}, s{p+1}, 0")
        else: a(f"s_mov_b32 s{r}, s{p}\ns_mov_b32 s{r+1}, s{p+1}")
        a(f"s_mov_b32 s{r+2}, {nrec}\ns_mov_b32 s{r+3}, 0x20000")
    def mfma(D, A, B, first):
        a(f"v_mfma_f32_16x16x32_bf16 v[{D}:{D+3}], v[{A}:{A+3}], v[{B}:{B+3}], " + ("0" if first else f"v[{D}:{D+3}]"))
    def dpp(op, v, m): a(f"v_{op}_dpp v{v}, v{v}, v{v} {m} row_mask:0xf bank_mask:0xf")
    def tagcheck(regs, tmp, mask=None, q=False):
        sT = sTAGQ if q else sTAG
        xs, regs, k = [], list(regs), 0
        while regs:
            if len(regs) >= 2:
                a(f"v_bitop3_b32 v{tmp[k]}, v{regs[0]}, v{regs[1]}, s{sT} bitop3:0x7e"); regs = regs[2:]
            else:
                a(f"v_xor_b32 v{tmp[k]}, s{sT}, v{regs[0]}"); regs = regs[1:]
            xs.append(tmp[k]); k += 1
        while len(xs) > 1:
            if len(xs) >= 3:
                a(f"v_or3_b32 v{xs[0]}, v{xs[0]}, v{xs[1]}, v{xs[2]}"); xs = xs[3:] + [xs[0]]
            else:
                a(f"v_or_b32 v{xs[0]}, v{xs[0]}, v{xs[1]}"); xs = [xs[0]]
        if q:
            a(f"v_and_b32 v{tmp[-1]}, 0xfffffff0, v{xs[0]}\nv_cmp_ne_u32 vcc, 0, v{tmp[-1]}")
            return xs[0]
        a(f"v_cmp_ne_u32 vcc, 0, v{xs[0]}")
        if mask is not None: a(f"s_and_b64 vcc, vcc, s[{mask}:{mask+1}]")
    def poll(name, waitname, regs, tmp, reissue, mask=None, q=False, reissue2=None):
        ok, rt = a.newlabel("Lok"), a.newlabel("Lrt")
        if waitname: a.wait(waitname)
        else: a("s_waitcnt vmcnt(0)")
        xr = tagcheck(regs, tmp, mask, q)
        a(f"s_cbranch_vccz {ok}")
        a.label(rt)
        for txt in ([reissue] if reissue2 is None else [reissue, reissue2]):
            a(f"s_sub_u32 s{sRETRY}, s{sRETRY}, 1")
            a(txt)
            a("s_waitcnt vmcnt(0)")
            tagcheck(regs, tmp, mask, q)
            a(f"s_cbranch_vccz {ok}")
        a(f"s_cmp_gt_i32 s{sRETRY}, 0\ns_cbranch_scc1 {rt}")
        a.label(ok)
        if stamps: a(f"s_mov_b32 s{RT[name]}, s{sRETRY}")
        return xr
    def red8(vals, op="add_f32"):
        for m in ("quad_perm:[1,0,3,2]", "quad_perm:[2,3,0,1]", "row_half_mirror"):
            for v in vals: dpp(op, v, m)
    def get_tag(): a(f"s_load_dword s{sTAG}, s[24:25], 0")
    def fin_tag(q=True):
        if q: a(f"s_getreg_b32 s{sTAGQ}, hwreg(HW_REG_XCC_ID, 0, 4)")
        a(f"s_waitcnt lgkmcnt(0)\ns_add_u32 s{sTAG}, s{sTAG}, {TAGC:#x}")
        if q: a(f"s_and_b32 s{sT3}, s{sTAG}, 0xfffffff0\ns_or_b32 s{sTAGQ}, s{sTAGQ}, s{sT3}")
    def addr_d(dst, d, tmp):
        a(f"v_lshrrev_b32 v{dst}, 5, v{d}\nv_lshlrev_b32 v{dst}, 6, v{dst}\nv_and_b32 v{tmp}, 7, v{d}\nv_lshl_add_u32 v{dst}, v{tmp}, 2, v{dst}\nv_bfe_u32 v{tmp}, v{d}, 3, 2\nv_add_lshl_u32 v{dst}, v{dst}, v{tmp}, 2")
    ws_lim = WSLIM if not stamps else 0x240000

    a("s_cmp_ge_u32 s2, 256\ns_cbranch_scc1 L_end")
    if stamps: a("s_memrealtime s[100:101]")
    a("s_load_dwordx16 s[4:19], s[0:1], 0")
    a("s_load_dwordx4 s[20:23], s[0:1], 64")
    a("s_load_dwordx2 s[24:25], s[0:1], 80")
    if prefetch:
        a("s_getpc_b64 s[84:85]")
        a.label("L_pc")
        a(f"v_lshlrev_b32 v8, 7, v0\nv_cmp_gt_u32 vcc, (L_end-L_pc)/128, v0\ns_and_saveexec_b64 s[{sEX}:{sEX+1}], vcc\ns_cbranch_execz L_pf_done")
        a("v_mov_b32 v9, s85\nv_add_co_u32 v8, vcc, s84, v8\nv_addc_co_u32 v9, vcc, 0, v9, vcc\nglobal_load_dword v248, v[8:9], off")
        a.label("L_pf_done")
        a(f"s_mov_b64 exec, s[{sEX}:{sEX+1}]")
    a(f"v_lshrrev_b32 v{vI}, 6, v0\nv_and_b32 v{vL}, 63, v0\nv_readfirstlane_b32 s{sW}, v{vI}")
    a(f"s_and_b32 s{sT0}, s2, 7\ns_lshr_b32 s{sT1}, s2, 3\ns_lshl_b32 s{sG}, s{sT0}, 2\ns_and_b32 s{sT2}, s{sT1}, 3\ns_add_u32 s{sG}, s{sG}, s{sT2}\ns_lshr_b32 s{sS}, s2, 5")
    a(f"v_and_b32 v{vI}, 15, v{vL}\nv_lshrrev_b32 v{vG4}, 4, v{vL}\nv_and_b32 v{vC}, 7, v{vL}\nv_lshrrev_b32 v{vR8}, 3, v{vL}")
    a(f"s_mov_b32 s{sRETRY}, 100000")
    if stamps: a(f"s_mov_b32 s88, 100000\ns_mov_b32 s89, 100000\ns_mov_b32 s90, 100000")
    a(f"s_cmp_ge_u32 s{sW}, 4\ns_cbranch_scc1 L_aux")

    vKo, vVo, vWOo, vW2o, vGq, vGm, vGh, vRAW, vSL = 6, 7, 8, 9, 10, 11, 12, 13, 14
    vQA = [15, 16, 17, 18]
    vOUT = 19; vM = [20, 21, 22, 23]; vXD, vMX, vG1 = 24, 25, 26
    vK, vV, vW2, vWO, vBq, vD = 28, 92, 156, 164, 180, 196
    vB0, vB1, vGa, vPP = 212, 216, 220, 232
    vF = list(range(236, 244)); t0, t1, t2, t3 = 244, 245, 246, 247
    vDo, vDy = 200, 204
    SK, SV = SA, SB
    a.vm = []
    a(f"v_lshrrev_b32 v{vKo}, 2, v{vI}\nv_and_b32 v{t0}, 3, v{vI}\nv_lshlrev_b32 v{vKo}, 12, v{vKo}\nv_lshl_add_u32 v{t0}, v{vG4}, 2, v{t0}\nv_lshl_add_u32 v{vKo}, v{t0}, 4, v{vKo}")
    a(f"s_lshl_b32 s{sT0}, s{sG}, 21\ns_lshl_b32 s{sT1}, s{sS}, 16\ns_add_u32 s{sT0}, s{sT0}, s{sT1}\ns_lshl_b32 s{sT1}, s{sW}, 10\ns_add_u32 s{sT0}, s{sT0}, s{sT1}\ns_add_u32 s{sOFF}, s{sT0}, 0x180000")
    a(f"s_mov_b32 s{sO1}, 16384\ns_mov_b32 s{sO2}, 32768\ns_mov_b32 s{sO3}, 49152")
    a(f"v_lshlrev_b32 v{vVo}, 12, v{vG4}\nv_lshl_add_u32 v{vVo}, v{vI}, 4, v{vVo}")
    a(f"v_lshlrev_b32 v{t0}, 4, v{t0}\nv_add_u32 v{t0}, {L_QB}, v{t0}\nv_mov_b32 v{t1}, {L_ZB}")
    for tt in range(4):
        m = 0x000F000F << (4 * tt)
        a(f"s_mov_b32 s{sMK}, {m:#x}\ns_mov_b32 s{sMK+1}, {m:#x}\nv_cndmask_b32 v{vQA[tt]}, v{t1}, v{t0}, s[{sMK}:{sMK+1}]")
    for c in range(1, 4):
        m = 0x11111111 << c
        a(f"s_mov_b32 s{sC[c]}, {m:#x}\ns_mov_b32 s{sC[c]+1}, {m:#x}")
    a(f"s_mov_b32 s{sSCALE}, 0x3db504f3\ns_mov_b32 s{sLOG2E}, 0x3fb8aa3b\ns_mov_b32 s{sFQ}, {FASTQ if fastq else 0:#x}")
    a("s_waitcnt lgkmcnt(0)")
    mk(SK, 6, 62464, sOFF); mk(SV, 8, 62464, sOFF)
    get_tag()
    so4 = ["0", f"s{sO1}", f"s{sO2}", f"s{sO3}"]
    def ldK(t): a.vmem(f"K{t}", f"buffer_load_dwordx4 v[{vK+4*t}:{vK+4*t+3}], v{vKo}, {srd(SK)}, {so4[t%4]} offen offset:{(t//4)*256} nt")
    def ldV(t): a.vmem(f"V{t}", f"buffer_load_dwordx4 v[{vV+4*t}:{vV+4*t+3}], v{vVo}, {srd(SV)}, {so4[t%4]} offen offset:{(t//4)*256} nt")
    def ldWO(t): a.vmem(f"wo{t}", f"buffer_load_dwordx4 v[{vWO+4*t}:{vWO+4*t+3}], v{vWOo}, {srd(SWO)}, 0 offen offset:{t*1024} nt")
    def ldW2(t): a.vmem(f"w2{t}", f"buffer_load_dwordx4 v[{vW2+4*t}:{vW2+4*t+3}], v{vW2o}, {srd(SW2)}, 0 offen offset:{t*1024} nt")
    g2txt = f"buffer_load_dwordx4 v[{vGa+8}:{vGa+11}], v{vGh}, {srd(SWS)}, 0 offen {ldf}"
    def ldG2(): a.vmem("G2", g2txt)
    def g1(so):
        return (f"buffer_load_dwordx4 v[{vGa}:{vGa+3}], v{vG1}, {srd(SWS)}, {so} offen {ldf}\n"
                f"buffer_load_dwordx4 v[{vGa+4}:{vGa+7}], v{vG1}, {srd(SWS)}, {so} offen offset:16 {ldf}")
    g1txt = g1(f"s{sFQ}") if fastq else g1("0")
    def ldG1():
        t_ = g1txt.split("\n"); a.vmem("G1a", t_[0]); a.vmem("G1b", t_[1])
    def ldG1B():
        a.vmem("G1c", f"buffer_load_dwordx4 v[{vWO}:{vWO+3}], v{vG1}, {srd(SWS)}, s{sFQ} offen {ldf}")
        a.vmem("G1d", f"buffer_load_dwordx4 v[{vWO+4}:{vWO+7}], v{vG1}, {srd(SWS)}, s{sFQ} offen offset:16 {ldf}")
    tailq = {0: [("G2", 0), ("W2", 0), ("W2", 1)] + [("WO", t) for t in range(4)],
             1: [("W2", 0), ("W2", 1)] + [("WO", t) for t in range(4)] + [("G2", 0)]}[g2pos]
    vs = [("V", t) for t in range(16)]
    if g1b and not agather: vs = vs[:g1b] + [("G1B", 0)] + vs[g1b:]
    if g1pos and not agather:
        queue = [("K", t) for t in range(16)] + vs[:g1pos] + [("G1", 0)] + vs[g1pos:] + tailq
    else:
        queue = [("K", t) for t in range(16)] + ([] if agather else [("G1", 0)]) + vs + tailq
    order = [(f"{k}{t}" if k in ("K", "V") else None) for k, t in queue]
    def nxt(n=1):
        for _ in range(n):
            if not queue: return
            k, t = queue.pop(0)
            {"K": lambda: ldK(t), "V": lambda: ldV(t), "G1": ldG1, "G1B": ldG1B, "G2": ldG2, "W2": lambda: ldW2(t), "WO": lambda: ldWO(t)}[k]()
    stamp()
    if b1: a("s_barrier")
    npre = 16 + (0 if agather else 1) + vrest + (1 if (g1b and not agather and g1b <= vrest) else 0)
    def nxt_free():
        n = 1; nxt()
        while queue and queue[0][0] in ("G1", "G1B"): nxt(); n += 1
        return n
    issued = 0
    while issued < min(W0, npre): issued += nxt_free()
    a(f"s_lshr_b32 s{sCQ}, s{sG}, 1")
    a(f"v_lshlrev_b32 v{vWOo}, 12, v{vR8}\nv_lshl_add_u32 v{vWOo}, v{vC}, 4, v{vWOo}")
    a(f"v_lshlrev_b32 v{vW2o}, 11, v{vR8}\nv_lshl_add_u32 v{vW2o}, v{vC}, 4, v{vW2o}")
    a(f"s_lshl_b32 s{sT0}, s{sG}, 7\ns_lshl_b32 s{sT1}, s{sW}, 5\ns_add_u32 s{sT0}, s{sT0}, s{sT1}\ns_lshl_b32 s{sT0}, s{sT0}, 10\ns_lshl_b32 s{sT1}, s{sS}, 7\ns_add_u32 s{sT0}, s{sT0}, s{sT1}")
    mk(SWO, 12, 31 * 1024 + 128, sT0)
    a(f"s_mul_i32 s{sT0}, s{sCQ}, 86\ns_and_b32 s{sT1}, s{sG}, 1\ns_mul_i32 s{sT2}, s{sT1}, 44\ns_add_u32 s{sT0}, s{sT0}, s{sT2}\ns_mul_i32 s{sT2}, s{sW}, 12\ns_add_u32 s{sT0}, s{sT0}, s{sT2}")
    a(f"s_lshl_b32 s{sT1}, s{sT1}, 1\ns_sub_u32 s{sT1}, 44, s{sT1}\ns_sub_u32 s{sT1}, s{sT1}, s{sT2}\ns_min_u32 s{sT3}, s{sT1}, 12")
    a(f"v_mul_u32_u24 v{vGh}, {HP_STRIDE}, v{vC}\nv_lshl_add_u32 v{vGh}, v{vR8}, 4, v{vGh}\ns_lshl_b32 s{sT1}, s{sT0}, 3\ns_add_u32 s{sT1}, s{sT1}, {HP0}\nv_add_u32 v{vGh}, s{sT1}, v{vGh}")
    a(f"v_lshlrev_b32 v{t0}, 1, v{vR8}\nv_cmp_gt_u32 s[{sHV}:{sHV+1}], s{sT3}, v{t0}\nv_mov_b32 v{t1}, {OOB}\nv_cndmask_b32 v{vGh}, v{t1}, v{vGh}, s[{sHV}:{sHV+1}]")
    a(f"s_lshl_b32 s{sT0}, s{sT0}, 10\ns_lshl_b32 s{sT1}, s{sS}, 7\ns_add_u32 s{sT0}, s{sT0}, s{sT1}")
    a(f"s_add_u32 s{SW2}, s18, s{sT0}\ns_addc_u32 s{SW2+1}, s19, 0\ns_sub_u32 s{sT3}, s{sT3}, 1\ns_lshl_b32 s{sT3}, s{sT3}, 10\ns_add_u32 s{SW2+2}, s{sT3}, 128\ns_mov_b32 s{SW2+3}, 0x20000")
    mk(SWS, 24, ws_lim); mk(SX, 4, 1024); mk(SOUT, 20, 1024)
    if redmap: a(f"s_lshr_b32 s{sRQ}, s{sG}, 3\ns_lshl_b32 s{sRQ}, s{sRQ}, 2\ns_and_b32 s{sT0}, s{sG}, 3\ns_or_b32 s{sRQ}, s{sRQ}, s{sT0}")
    else: a(f"s_mov_b32 s{sRQ}, s{sCQ}")
    a(f"s_lshl_b32 s{sT0}, s{sS}, 7\ns_lshl_b32 s{sT1}, s{sRQ}, 3\ns_add_u32 s{sT0}, s{sT0}, s{sT1}\nv_and_b32 v{vOUT}, 1, v{vL}\nv_lshlrev_b32 v{vOUT}, 2, v{vOUT}\nv_add_u32 v{vOUT}, s{sT0}, v{vOUT}")
    a(f"v_and_b32 v{t0}, 1, v{vL}\nv_lshlrev_b32 v{t0}, 4, v{t0}\nv_mov_b32 v{t1}, 0xffff\nv_lshlrev_b32 v{t0}, v{t0}, v{t1}")
    for w in range(4):
        m = 0x03030303 << (2 * w)
        a(f"s_mov_b32 s{sMK}, {m:#x}\ns_mov_b32 s{sMK+1}, {m:#x}\nv_cndmask_b32 v{vM[w]}, 0, v{t0}, s[{sMK}:{sMK+1}]")
    a(f"s_lshl_b32 s{sT0}, s{sG}, 13\ns_lshl_b32 s{sT1}, s{sW}, 8\ns_add_u32 s{sT0}, s{sT0}, s{sT1}\ns_add_u32 s{sT0}, s{sT0}, {OP0}")
    a(f"v_lshlrev_b32 v{vGq}, 10, v{vC}\nv_lshl_add_u32 v{vGq}, v{vR8}, 5, v{vGq}\nv_add_u32 v{vGq}, s{sT0}, v{vGq}")
    if not agather: a(f"v_subrev_u32 v{vG1}, {OP0-QP0}, v{vGq}")
    a(f"s_lshl_b32 s{sT0}, s{sG}, 7\ns_add_u32 s{sT0}, s{sT0}, {ML0}\nv_lshlrev_b32 v{vGm}, 4, v{vC}\nv_add_u32 v{vGm}, s{sT0}, v{vGm}")
    a(f"s_lshl_b32 s{sT0}, s{sW}, 10\nv_lshlrev_b32 v{vRAW}, 4, v{vL}\nv_add_u32 v{vRAW}, s{sT0}, v{vRAW}")
    a(f"s_lshl_b32 s{sT0}, s{sW}, 4\nv_lshlrev_b32 v{vSL}, 2, v{vG4}\nv_add_u32 v{vSL}, s{sT0}, v{vSL}")
    stamp()
    if b1b is not None:
        a("s_barrier")
        while issued < min(W, npre): issued += nxt_free()
    wi = 0
    while issued < npre:
        while order[wi] is None: wi += 1
        a.wait(order[wi]); wi += 1
        tr(1)
        issued += nxt_free()
        wcur = W if (Wv is None or (queue and queue[0][0] == "K")) else Wv
        if issued < npre and issued - wi < wcur: issued += nxt_free()
    fin_tag(q=not agather)
    a.wait("K15")
    tr()
    stamp()
    if not agather:
        g1regs = [vGa + 1, vGa + 3, vGa + 5, vGa + 7]
        if g1b:
            lg = a.newlabel("Lg1ok")
            a.wait("G1b")
            xr = tagcheck(g1regs, vF, None, True)
            a(f"s_cbranch_vccz {lg}")
            a.wait("G1d")
            for j in range(8): a(f"v_mov_b32 v{vGa+j}, v{vWO+j}")
            poll("G1", "G1d", g1regs, vF, g1("0"), q=True, reissue2=(g1txt if fastq else None))
            a.label(lg)
        else:
            xr = poll("G1", "G1b", g1regs, vF, g1("0"), q=True, reissue2=(g1txt if fastq else None))
        a(f"v_cmp_ne_u32 vcc, 0, v{xr}\ns_cmp_eq_u64 vcc, 0\ns_cselect_b32 s{sREG}, {FASTD if fast else 0}, 0")
        nxt(vint[0])
        qv = [vGa, vGa + 2, vGa + 4, vGa + 6]
        red8(qv)
        a(f"v_cvt_pk_bf16_f32 v{vGa}, v{qv[0]}, v{qv[1]}\nv_cvt_pk_bf16_f32 v{vGa+1}, v{qv[2]}, v{qv[3]}")
        a(f"s_lshl_b32 s{sT0}, s{sW}, 6\nv_lshlrev_b32 v{t0}, 3, v{vR8}\nv_add_u32 v{t0}, s{sT0}, v{t0}")
        a(f"s_mov_b64 s[{sEX}:{sEX+1}], exec\ns_mov_b32 exec_lo, 0x01010101\ns_mov_b32 exec_hi, 0x01010101")
        a(f"ds_write_b64 v{t0}, v[{vGa}:{vGa+1}] offset:{L_QB}")
        a(f"s_mov_b64 exec, s[{sEX}:{sEX+1}]")
        a(f"v_add_u32 v{vGq}, s{sREG}, v{vGq}\nv_add_u32 v{vGm}, s{sREG}, v{vGm}")
        a("s_waitcnt lgkmcnt(0)")
    tr()
    a("s_barrier")
    tr()
    for tt in range(4): a(f"ds_read_b128 v[{vBq+4*tt}:{vBq+4*tt+3}], v{vQA[tt]}")
    if agather:
        a(f"v_mov_b32 v{t2}, 0\nds_read_b32 v{t3}, v{t2} offset:{L_FLAG+8}")
        nxt(vint[0])
    a.vmem("xd", f"buffer_load_dword v{vXD}, v{vOUT}, {srd(SX)}, 0 offen")
    if not agather: nxt(vint[1])
    ex = 1 if agather else 0
    for tt in range(4):
        a(f"s_waitcnt lgkmcnt({3-tt+ex})")
        for u in range(4): mfma(vD + 4 * u, vK + 4 * (4 * u + tt), vBq + 4 * tt, tt == 0)
    if agather:
        a(f"s_waitcnt lgkmcnt(0)\nv_add_u32 v{vGq}, v{t3}, v{vGq}\nv_add_u32 v{vGm}, v{t3}, v{vGm}")
        nxt(vint[1])
    tr()
    nxt(vint[2])
    sc = vF[:4]
    for r_ in (1, 2, 3):
        for u in range(4):
            src0 = vD + 4 * u if r_ == 1 else sc[u]
            a(f"v_cndmask_b32 v{sc[u]}, v{src0}, v{vD+4*u+r_}, s[{sC[r_]}:{sC[r_]+1}]")
    for m in ("quad_perm:[1,0,3,2]", "quad_perm:[2,3,0,1]"):
        for u in range(4): dpp("add_f32", sc[u], m)
    def round2():
        for u in (0, 2): a(f"v_cvt_pk_bf16_f32 v{t0+u//2}, v{sc[u]}, v{sc[u+1]}")
        for u in (0, 2): a(f"v_lshlrev_b32 v{sc[u]}, 16, v{t0+u//2}\nv_and_b32 v{sc[u+1]}, 0xffff0000, v{t0+u//2}")
    round2()
    for u in range(4): a(f"v_mul_f32 v{sc[u]}, s{sSCALE}, v{sc[u]}")
    round2()
    a(f"v_max3_f32 v{t0}, v{sc[0]}, v{sc[1]}, v{sc[2]}\nv_max_f32 v{t0}, v{t0}, v{sc[3]}")
    for m in ("row_ror:4", "row_ror:8"): dpp("max_f32", t0, m)
    a(f"ds_write_b32 v{vSL}, v{t0} offset:{L_MX}")
    nxt(vint[3])
    a(f"v_mov_b32 v{t1}, 0")
    tr()
    a("s_waitcnt lgkmcnt(0)\ns_barrier")
    tr()
    mx = vD
    for i in range(4): a(f"ds_read_b128 v[{mx+4*i}:{mx+4*i+3}], v{t1} offset:{L_MX+16*i}")
    nxt(vint[4])
    a("s_waitcnt lgkmcnt(0)")
    a(f"v_max3_f32 v{mx}, v{mx}, v{mx+1}, v{mx+2}\nv_max3_f32 v{mx+3}, v{mx+3}, v{mx+4}, v{mx+5}\nv_max3_f32 v{mx+6}, v{mx+6}, v{mx+7}, v{mx+8}\nv_max3_f32 v{mx+9}, v{mx+9}, v{mx+10}, v{mx+11}\nv_max3_f32 v{mx+12}, v{mx+12}, v{mx+13}, v{mx+14}")
    a(f"v_max3_f32 v{mx}, v{mx}, v{mx+3}, v{mx+6}\nv_max3_f32 v{mx+9}, v{mx+9}, v{mx+12}, v{mx+15}\nv_max_f32 v{vMX}, v{mx}, v{mx+9}")
    for u in range(4): a(f"v_sub_f32 v{sc[u]}, v{sc[u]}, v{vMX}")
    for u in range(4): a(f"v_mul_f32 v{sc[u]}, s{sLOG2E}, v{sc[u]}")
    for u in range(4): a(f"v_exp_f32 v{sc[u]}, v{sc[u]}")
    for u in range(4): a(f"v_cvt_pk_bf16_f32 v{vPP+u}, v{sc[u]}, v{sc[u]}")
    Bs = [vB0, vB1]
    def build(dst, pp, d=None):
        for w in range(4):
            if d is None: a(f"v_and_b32 v{dst+w}, v{pp}, v{vM[w]}")
            else: a(f"v_and_b32_dpp v{dst+w}, v{pp}, v{vM[w]} {d} row_mask:0xf bank_mask:0xf")
    a(f"v_add_f32 v{t0}, v{sc[0]}, v{sc[1]}\nv_add_f32 v{t1}, v{sc[2]}, v{sc[3]}\nv_add_f32 v{t0}, v{t0}, v{t1}")
    build(Bs[0], vPP, "row_newbcast:0")
    for m in ("row_ror:4", "row_ror:8"): dpp("add_f32", t0, m)
    a(f"ds_write_b32 v{vSL}, v{t0} offset:{L_LS}")
    a(f"v_mov_b32 v{t1}, 0\nds_write_b32 v{t1}, v{vMX} offset:{L_FLAG+4}")
    tr()
    stamp()
    for t in range(16):
        if t + 1 < 16: build(Bs[(t + 1) % 2], vPP + (t + 1) // 4, f"row_newbcast:{4*((t+1)%4)}")
        a.wait(f"V{t}"); tr(1); mfma(vDo, vV + 4 * t, Bs[t % 2], t == 0); nxt(pvn)
    assert not queue
    tr()
    stamp()
    a(f"ds_write_b128 v{vRAW}, v[{vDo}:{vDo+3}] offset:{L_RO}")
    a("s_waitcnt lgkmcnt(0)\ns_barrier")
    tr()
    poll("G2", "G2", [vGa + 9, vGa + 11], vF, g2txt, mask=sHV)
    tr()
    hv = [vGa + 8, vGa + 10]
    red8(hv)
    a(f"v_cvt_pk_bf16_f32 v{t0}, v{hv[0]}, v{hv[1]}\nv_lshlrev_b32 v{hv[0]}, 16, v{t0}\nv_and_b32 v{hv[1]}, 0xffff0000, v{t0}")
    ev = [vF[0], vF[1]]
    for j in range(2): a(f"v_mul_f32 v{ev[j]}, s{sLOG2E}, v{hv[j]}")
    for j in range(2): a(f"v_exp_f32 v{ev[j]}, -v{ev[j]}")
    for j in range(2): a(f"v_add_f32 v{ev[j]}, 1.0, v{ev[j]}")
    for j in range(2): a(f"v_rcp_f32 v{ev[j]}, v{ev[j]}")
    for j in range(2): a(f"v_mul_f32 v{hv[j]}, v{hv[j]}, v{ev[j]}")
    for j in range(2): a(f"v_cvt_pk_bf16_f32 v{hv[j]}, v{hv[j]}, v{hv[j]}")
    for j in range(2): a(f"v_cndmask_b32 v{hv[j]}, 0, v{hv[j]}, s[{sHV}:{sHV+1}]")
    build(Bs[0], hv[0]); build(Bs[1], hv[1])
    g3txt = (f"buffer_load_dwordx4 v[{vGa}:{vGa+3}], v{vGq}, {srd(SWS)}, 0 offen {ldf}\n"
             f"buffer_load_dwordx4 v[{vGa+4}:{vGa+7}], v{vGq}, {srd(SWS)}, 0 offen offset:16 {ldf}\n"
             f"buffer_load_dwordx4 v[{vGa+8}:{vGa+11}], v{vGm}, {srd(SWS)}, 0 offen {ldf}")
    a.wait("w20"); mfma(vDy, vW2, Bs[0], True)
    a.wait("w21"); mfma(vDy, vW2 + 4, Bs[1], False)
    tr()
    stamp()
    a(g3txt)
    poll("G3", None, [vGa + 1, vGa + 3, vGa + 5, vGa + 7, vGa + 9, vGa + 11], vF, g3txt)
    tr()
    stamp()
    vm_, vl_ = vGa + 8, vGa + 10
    a(f"v_mov_b32 v{t0}, v{vm_}")
    red8([t0], "max_f32")
    a(f"v_sub_f32 v{t0}, v{vm_}, v{t0}\nv_mul_f32 v{t0}, s{sLOG2E}, v{t0}\nv_exp_f32 v{t0}, v{t0}")
    ov = [vGa, vGa + 2, vGa + 4, vGa + 6]
    a(f"v_mul_f32 v{vl_}, v{vl_}, v{t0}")
    for v in ov: a(f"v_mul_f32 v{v}, v{v}, v{t0}")
    red8([vl_] + ov)
    a(f"v_rcp_f32 v{vl_}, v{vl_}")
    for v in ov: a(f"v_mul_f32 v{v}, v{v}, v{vl_}")
    for v in ov: a(f"v_cvt_pk_bf16_f32 v{v}, v{v}, v{v}")
    build(Bs[0], ov[0])
    for t in range(4):
        if t + 1 < 4: build(Bs[(t + 1) % 2], ov[t + 1])
        mfma(vDy, vWO + 4 * t, Bs[t % 2], False)
    a(f"s_lshl_b32 s{sT0}, s{sS}, 14\ns_lshl_b32 s{sT1}, s{sRQ}, 5\ns_add_u32 s{sT0}, s{sT0}, s{sT1}\ns_add_u32 s{sT0}, s{sT0}, {YP0}")
    a(f"v_lshrrev_b32 v{t0}, 1, v{vL}\nv_lshlrev_b32 v{t0}, 9, v{t0}\nv_and_b32 v{t1}, 1, v{vL}\nv_lshl_add_u32 v{t0}, v{t1}, 4, v{t0}\nv_add_u32 v{vGq}, s{sT0}, v{t0}")
    a(f"ds_write_b128 v{vRAW}, v[{vDy}:{vDy+3}] offset:{L_RY}")
    tr()
    a("s_waitcnt lgkmcnt(0)\ns_barrier")
    tr()
    stamp()
    lfin = "L_main_fin"
    a(f"s_and_b32 s{sT0}, s{sG}, {4 if redmap else 1}\ns_or_b32 s{sT0}, s{sT0}, s{sW}\ns_cmp_eq_u32 s{sT0}, 0\ns_cbranch_scc0 {lfin}")
    g4txt = f"buffer_load_dwordx4 v[{vGa}:{vGa+3}], v{vGq}, {srd(SWS)}, 0 offen {ldf}"
    a(g4txt)
    a(f"v_lshlrev_b32 v{t2}, 16, v{vXD}\nv_and_b32 v{t3}, 0xffff0000, v{vXD}")
    poll("G4", None, [vGa + 1, vGa + 3], vF, g4txt)
    yv = [vGa, vGa + 2]
    for m in ("quad_perm:[2,3,0,1]", "row_ror:4", "row_ror:8"):
        for v in yv: dpp("add_f32", v, m)
    for sw in ("v_permlane16_swap_b32", "v_permlane32_swap_b32"):
        a(f"v_mov_b32 v{vF[0]}, v{yv[0]}\nv_mov_b32 v{vF[1]}, v{yv[1]}")
        a(f"{sw} v{yv[0]}, v{vF[0]}\n{sw} v{yv[1]}, v{vF[1]}")
        a(f"v_add_f32 v{yv[0]}, v{yv[0]}, v{vF[0]}\nv_add_f32 v{yv[1]}, v{yv[1]}, v{vF[1]}")
    a(f"v_add_f32 v{yv[0]}, v{yv[0]}, v{t2}\nv_add_f32 v{yv[1]}, v{yv[1]}, v{t3}\nv_cvt_pk_bf16_f32 v{yv[0]}, v{yv[0]}, v{yv[1]}")
    a("s_mov_b64 exec, 3")
    a(f"buffer_store_dword v{yv[0]}, v{vOUT}, {srd(SOUT)}, 0 offen")
    a(f"s_or_b32 s{sT0}, s{sS}, s{sG}\ns_cmp_eq_u32 s{sT0}, 0\ns_cbranch_scc0 {lfin}")
    a(f"s_mov_b64 exec, 1\nv_mov_b32 v{t0}, 0\nv_mov_b32 v{t1}, s{sTAG}\nbuffer_store_dword v{t1}, v{t0}, {srd(SWS)}, 0 offen" + ("" if eplain else " " + stf))
    a.label(lfin)
    stamp()
    dump(trace_too=True)
    a("s_endpgm")

    a.label("L_aux")
    a(f"s_cmp_eq_u32 s{sW}, 6\ns_cbranch_scc1 L_gath")
    vXA = 8
    vF = list(range(12, 20)); vE = list(range(20, 28))
    vSel = [[28 + 2 * w + p for p in range(2)] for w in range(4)]
    vPair = 36; vB = [44, 48]; vDp = 52; vWt = 64
    vOff, vRd, vPub, vVal = 6, 7, 56, 60
    u0, u1, u2, u3 = 57, 58, 59, 128
    vMU, vSD, vR = 129, 130, 131
    SWt = SA
    a(f"v_lshlrev_b32 v{u0}, 4, v{vL}")
    a(f"s_cmp_eq_u32 s{sW}, 5\ns_cbranch_scc1 L_w1_addr")
    a(f"v_lshlrev_b32 v{vOff}, 17, v{vG4}\nv_lshl_add_u32 v{vOff}, v{vI}, 4, v{vOff}")
    a(f"s_lshl_b32 s{sT0}, s{sS}, 19\ns_lshl_b32 s{sT1}, s{sG}, 8\ns_add_u32 s{sOFF}, s{sT0}, s{sT1}")
    a("s_waitcnt lgkmcnt(0)")
    mk(SX, 4, 1024)
    a.vm = []
    a.vmem("xa", f"buffer_load_dwordx4 v[{vXA}:{vXA+3}], v{u0}, {srd(SX)}, 0 offen")
    mk(SWt, 10, 63 * 8192 + 256, sOFF)
    a(f"s_mov_b32 s{sO1}, 0")
    for t in range(16):
        a.vmem(f"w{t}", f"buffer_load_dwordx4 v[{vWt+4*t}:{vWt+4*t+3}], v{vOff}, {srd(SWt)}, s{sO1} offen nt")
        if t < 15: a(f"s_add_u32 s{sO1}, s{sO1}, 8192")
    vm_wq = list(a.vm)
    a("s_branch L_aux_ld")
    a.label("L_w1_addr")
    a(f"s_and_b32 s{sT0}, s2, 7\ns_lshr_b32 s{sT1}, s2, 3\ns_mul_i32 s{sT0}, s{sT0}, 22\ns_add_u32 s{sT0}, s{sT0}, s{sT1}\ns_lshr_b32 s{sBLK}, s{sT0}, 3\ns_and_b32 s{sSROW}, s{sT0}, 7\ns_cmp_lt_u32 s{sT1}, 22\ns_cselect_b32 s{sHAS}, 1, 0")
    a(f"v_mul_u32_u24 v{vOff}, 22016, v{vR8}\nv_lshl_add_u32 v{vOff}, v{vC}, 4, v{vOff}")
    a(f"s_cmp_eq_u32 s{sBLK}, 21\ns_cselect_b32 s{sT0}, 4, 8\nv_cmp_le_u32 vcc, s{sT0}, v{vC}\nv_mov_b32 v{u1}, {OOB}\nv_cndmask_b32 v{vOff}, v{vOff}, v{u1}, vcc")
    a(f"s_mul_i32 s{sT0}, s{sSROW}, {64*2752}\ns_lshl_b32 s{sT1}, s{sBLK}, 7\ns_add_u32 s{sOFF}, s{sT0}, s{sT1}")
    a("s_waitcnt lgkmcnt(0)")
    mk(SX, 4, 1024)
    a(f"buffer_load_dwordx4 v[{vXA}:{vXA+3}], v{u0}, {srd(SX)}, 0 offen")
    a(f"s_add_u32 s{SWt}, s16, s{sOFF}\ns_addc_u32 s{SWt+1}, s17, 0\ns_sub_u32 s{sT0}, 1409024, s{sOFF}\ns_cmp_eq_u32 s{sHAS}, 1\ns_cselect_b32 s{SWt+2}, s{sT0}, 0\ns_mov_b32 s{SWt+3}, 0x20000")
    a(f"s_mov_b32 s{sO1}, 0")
    for t in range(8):
        a(f"buffer_load_dwordx4 v[{vWt+4*t}:{vWt+4*t+3}], v{vOff}, {srd(SWt)}, s{sO1} offen nt")
        if t < 7: a(f"s_add_u32 s{sO1}, s{sO1}, 2752")
    a.label("L_aux_ld")
    stamp()
    if b1: a("s_barrier")
    mk(SWS, 24, ws_lim)
    a(f"v_mov_b32 v{u1}, 0x0c0c0100\nv_mov_b32 v{u2}, 0x01000c0c\ns_mov_b32 s{sMK}, 0xaaaaaaaa\ns_mov_b32 s{sMK+1}, 0xaaaaaaaa\nv_cndmask_b32 v{vE[0]}, v{u1}, v{u2}, s[{sMK}:{sMK+1}]")
    a(f"v_mov_b32 v{u1}, 0x0c0c0302\nv_mov_b32 v{u2}, 0x03020c0c\nv_cndmask_b32 v{vE[1]}, v{u1}, v{u2}, s[{sMK}:{sMK+1}]\nv_mov_b32 v{u1}, 0x0c0c0c0c")
    for w in range(4):
        m = 0x03030303 << (2 * w)
        a(f"s_mov_b32 s{sMK}, {m:#x}\ns_mov_b32 s{sMK+1}, {m:#x}")
        for p in range(2): a(f"v_cndmask_b32 v{vSel[w][p]}, v{u1}, v{vE[p]}, s[{sMK}:{sMK+1}]")
    lx1, lx2 = a.newlabel("Lx"), a.newlabel("Lx")
    a(f"s_cmp_eq_u32 s{sW}, 5\ns_cbranch_scc1 {lx1}\ns_waitcnt vmcnt(16)\ns_branch {lx2}")
    a.label(lx1); a("s_waitcnt vmcnt(8)"); a.label(lx2)
    for j in range(4): a(f"v_lshlrev_b32 v{vF[2*j]}, 16, v{vXA+j}\nv_and_b32 v{vF[2*j+1]}, 0xffff0000, v{vXA+j}")
    def wave_sum(v, sdst):
        for m in ("quad_perm:[1,0,3,2]", "quad_perm:[2,3,0,1]", "row_half_mirror", "row_mirror"): dpp("add_f32", v, m)
        a(f"v_add_f32_dpp v{v}, v{v}, v{v} row_bcast:15 row_mask:0xa bank_mask:0xf")
        a(f"v_add_f32_dpp v{v}, v{v}, v{v} row_bcast:31 row_mask:0xc bank_mask:0xf")
        a(f"v_readlane_b32 s{sdst}, v{v}, 63")
    a(f"v_add_f32 v{u0}, v{vF[0]}, v{vF[1]}\nv_add_f32 v{u1}, v{vF[2]}, v{vF[3]}\nv_add_f32 v{u2}, v{vF[4]}, v{vF[5]}\nv_add_f32 v{u3}, v{vF[6]}, v{vF[7]}")
    a(f"v_add_f32 v{u0}, v{u0}, v{u1}\nv_add_f32 v{u2}, v{u2}, v{u3}\nv_add_f32 v{u0}, v{u0}, v{u2}")
    wave_sum(u0, sT0)
    a(f"v_mov_b32 v{u1}, 0x3b000000\nv_mul_f32 v{vMU}, s{sT0}, v{u1}")
    for j in range(8): a(f"v_sub_f32 v{vE[j]}, v{vF[j]}, v{vMU}")
    a(f"v_mul_f32 v{u0}, v{vE[0]}, v{vE[0]}\nv_mul_f32 v{u2}, v{vE[1]}, v{vE[1]}")
    for j in range(2, 8, 2): a(f"v_fmac_f32 v{u0}, v{vE[j]}, v{vE[j]}\nv_fmac_f32 v{u2}, v{vE[j+1]}, v{vE[j+1]}")
    a(f"v_add_f32 v{u0}, v{u0}, v{u2}")
    def rbf(v): a(f"v_cvt_pk_bf16_f32 v{v}, v{v}, v{v}\nv_and_b32 v{v}, 0xffff0000, v{v}")
    rbf(vMU)
    for j in range(8): a(f"v_sub_f32 v{vF[j]}, v{vF[j]}, v{vMU}")
    wave_sum(u0, sT0)
    for j in range(0, 8, 2): a(f"v_cvt_pk_bf16_f32 v{vE[j//2]}, v{vF[j]}, v{vF[j+1]}")
    a(f"v_mul_f32 v{u0}, s{sT0}, v{u1}")
    for j in range(0, 8, 2): a(f"v_lshlrev_b32 v{vF[j]}, 16, v{vE[j//2]}\nv_and_b32 v{vF[j+1]}, 0xffff0000, v{vE[j//2]}")
    rbf(u0)
    a(f"v_add_f32 v{u0}, 0x3727c5ac, v{u0}")
    rbf(u0)
    a(f"v_sqrt_f32 v{vSD}, v{u0}")
    rbf(vSD)
    a(f"v_rcp_f32 v{vR}, v{vSD}")
    for j in range(8): a(f"v_mul_f32 v{vF[j]}, v{vF[j]}, v{vR}")
    for j in range(0, 8, 2): a(f"v_cvt_pk_bf16_f32 v{vXA+j//2}, v{vF[j]}, v{vF[j+1]}")
    a(f"s_sub_u32 s{sT0}, s{sW}, 4\ns_lshl_b32 s{sT0}, s{sT0}, 10\nv_lshlrev_b32 v{u0}, 4, v{vL}\nv_add_u32 v{u0}, s{sT0}, v{u0}")
    a(f"ds_write_b128 v{u0}, v[{vXA}:{vXA+3}] offset:{L_XN0}")
    stamp()
    a(f"s_cmp_eq_u32 s{sW}, 5\ns_cbranch_scc1 L_prod_w1")
    a(f"s_lshl_b32 s{sT0}, s{sS}, 7\nv_lshlrev_b32 v{u1}, 5, v{vG4}\nv_add_u32 v{u1}, s{sT0}, v{u1}")
    a(f"ds_read_b128 v[{vPair}:{vPair+3}], v{u1} offset:{L_XN0}\nds_read_b128 v[{vPair+4}:{vPair+7}], v{u1} offset:{L_XN0+16}")
    a(f"v_lshrrev_b32 v{vRd}, 4, v{vL}\nv_lshlrev_b32 v{vRd}, 6, v{vRd}\nv_and_b32 v{u2}, 3, v{vL}\nv_lshl_add_u32 v{vRd}, v{u2}, 3, v{vRd}\nv_bfe_u32 v{u2}, v{vL}, 2, 2\nv_add_lshl_u32 v{vRd}, v{vRd}, v{u2}, 2")
    a(f"s_lshl_b32 s{sT0}, s{sG}, 3\ns_add_u32 s{sT0}, s{sT0}, s{sS}\ns_lshl_b32 s{sT0}, s{sT0}, 10\ns_add_u32 s{sT0}, s{sT0}, {QP0}\nv_lshlrev_b32 v{vPub}, 4, v{vL}\nv_add_u32 v{vPub}, s{sT0}, v{vPub}")
    a("s_waitcnt lgkmcnt(0)")
    get_tag()
    def pbuild(dst, t):
        for w in range(4): a(f"v_perm_b32 v{dst+w}, v{vPair+t//2}, v{vPair+t//2}, v{vSel[w][t%2]}")
    a.vm = vm_wq
    pbuild(vB[0], 0)
    for t in range(16):
        if t + 1 < 16: pbuild(vB[(t + 1) % 2], t + 1)
        a.wait(f"w{t}")
        if b1b is not None and t == b1b: a("s_barrier")
        mfma(vDp, vWt + 4 * t, vB[t % 2], t == 0)
    fin_tag()
    a(f"v_lshlrev_b32 v{u0}, 4, v{vL}\nv_mov_b32 v{vVal+1}, s{sTAGQ}\nv_mov_b32 v{vVal+3}, s{sTAGQ}")
    a(f"ds_write_b128 v{u0}, v[{vDp}:{vDp+3}] offset:{L_RQ}")
    a(f"ds_read_b32 v{vVal}, v{vRd} offset:{L_RQ}\nds_read_b32 v{vVal+2}, v{vRd} offset:{L_RQ+16}")
    a("s_waitcnt lgkmcnt(0)")
    if fastq: a(f"s_mov_b32 s{sFQ}, {FASTQ:#x}\nbuffer_store_dwordx4 v[{vVal}:{vVal+3}], v{vPub}, {srd(SWS)}, s{sFQ} offen")
    a(f"buffer_store_dwordx4 v[{vVal}:{vVal+3}], v{vPub}, {srd(SWS)}, 0 offen {stf}")
    if agather: a(f"v_mov_b32 v{u0}, 0\nv_mov_b32 v{u1}, s{sTAG}\nds_write_b32 v{u0}, v{u1} offset:{L_FLAG}")
    a("s_branch L_prod_done")
    a.label("L_prod_w1")
    a(f"s_lshl_b32 s{sT0}, s{sSROW}, 7\nv_lshlrev_b32 v{u1}, 4, v{vR8}\nv_add_u32 v{u1}, s{sT0}, v{u1}")
    a(f"ds_read_b128 v[{vPair}:{vPair+3}], v{u1} offset:{L_XN1}")
    addr_d(vRd, vL, u2)
    a(f"s_mul_i32 s{sT0}, s{sSROW}, {HP_STRIDE}\ns_lshl_b32 s{sT1}, s{sBLK}, 9\ns_add_u32 s{sT0}, s{sT0}, s{sT1}\ns_add_u32 s{sT0}, s{sT0}, {HP0}\ns_cmp_eq_u32 s{sHAS}, 1\ns_cselect_b32 s{sT0}, s{sT0}, {OOB}")
    a(f"v_lshlrev_b32 v{vPub}, 3, v{vL}\nv_add_u32 v{vPub}, s{sT0}, v{vPub}")
    a("s_waitcnt lgkmcnt(0)")
    get_tag()
    pbuild(vB[0], 0)
    for t in range(8):
        if t + 1 < 8: pbuild(vB[(t + 1) % 2], t + 1)
        a(f"s_waitcnt vmcnt({7-t})")
        if b1b is not None and t == 0: a("s_barrier")
        mfma(vDp, vWt + 4 * t, vB[t % 2], t == 0)
    fin_tag(q=False)
    a(f"v_lshlrev_b32 v{u0}, 4, v{vL}\nv_mov_b32 v{vVal+1}, s{sTAG}")
    a(f"ds_write_b128 v{u0}, v[{vDp}:{vDp+3}] offset:{L_RH}")
    a(f"ds_read_b32 v{vVal}, v{vRd} offset:{L_RH}\nds_read_b32 v{vVal+2}, v{vRd} offset:{L_RH+640}")
    a(f"s_waitcnt lgkmcnt(0)\nv_add_f32 v{vVal}, v{vVal}, v{vVal+2}")
    a(f"buffer_store_dwordx2 v[{vVal}:{vVal+1}], v{vPub}, {srd(SWS)}, 0 offen {stf}")
    a.label("L_prod_done")
    stamp()
    a(f"s_sub_u32 s{sT0}, s{sW}, 4\ns_lshl_b32 s{sT0}, s{sT0}, 6\nv_add_u32 v{u0}, s{sT0}, v{vL}")
    addr_d(vRd, u0, u2)
    a(f"s_lshl_b32 s{sT0}, s{sG}, 3\ns_add_u32 s{sT0}, s{sT0}, s{sS}\ns_lshl_b32 s{sT0}, s{sT0}, 10\ns_add_u32 s{sT0}, s{sT0}, {OP0}\nv_lshlrev_b32 v{vPub}, 3, v{u0}\nv_add_u32 v{vPub}, s{sT0}, v{vPub}")
    a(f"v_mov_b32 v{vVal+1}, s{sTAG}\ns_mov_b32 s{sREG}, {FASTD}")
    a("s_waitcnt lgkmcnt(0)\ns_barrier\ns_barrier\ns_barrier")
    o = L_RO // 256
    a(f"ds_read2st64_b32 v[{vF[0]}:{vF[1]}], v{vRd} offset0:{o} offset1:{o+4}\nds_read2st64_b32 v[{vF[2]}:{vF[3]}], v{vRd} offset0:{o+8} offset1:{o+12}")
    a(f"s_waitcnt lgkmcnt(0)\nv_add_f32 v{vF[0]}, v{vF[0]}, v{vF[1]}\nv_add_f32 v{vF[2]}, v{vF[2]}, v{vF[3]}\nv_add_f32 v{vVal}, v{vF[0]}, v{vF[2]}")
    if fast: a(f"buffer_store_dwordx2 v[{vVal}:{vVal+1}], v{vPub}, {srd(SWS)}, s{sREG} offen")
    a(f"buffer_store_dwordx2 v[{vVal}:{vVal+1}], v{vPub}, {srd(SWS)}, 0 offen {stf}")
    stamp()
    a(f"s_cmp_eq_u32 s{sW}, 5\ns_cbranch_scc0 L_ypub\ns_barrier\ns_branch L_aux_fin")
    a.label("L_ypub")
    addr_d(vRd, vL, u2)
    a(f"v_add_u32 v{u0}, 640, v{vRd}")
    a(f"s_lshl_b32 s{sT0}, s{sS}, 5\ns_add_u32 s{sT0}, s{sT0}, s{sG}\ns_lshl_b32 s{sT0}, s{sT0}, 9\ns_add_u32 s{sT0}, s{sT0}, {YP0}\nv_lshlrev_b32 v{vPub}, 3, v{vL}\nv_add_u32 v{vPub}, s{sT0}, v{vPub}")
    a("s_barrier")
    o = L_RY // 256
    a(f"ds_read2st64_b32 v[{vF[0]}:{vF[1]}], v{vRd} offset0:{o} offset1:{o+4}\nds_read2st64_b32 v[{vF[2]}:{vF[3]}], v{vRd} offset0:{o+8} offset1:{o+12}")
    a(f"ds_read2st64_b32 v[{vF[4]}:{vF[5]}], v{u0} offset0:{o} offset1:{o+4}\nds_read2st64_b32 v[{vF[6]}:{vF[7]}], v{u0} offset0:{o+8} offset1:{o+12}")
    a("s_waitcnt lgkmcnt(0)")
    a(f"v_add_f32 v{vF[0]}, v{vF[0]}, v{vF[1]}\nv_add_f32 v{vF[2]}, v{vF[2]}, v{vF[3]}\nv_add_f32 v{vF[4]}, v{vF[4]}, v{vF[5]}\nv_add_f32 v{vF[6]}, v{vF[6]}, v{vF[7]}")
    a(f"v_add_f32 v{vF[0]}, v{vF[0]}, v{vF[2]}\nv_add_f32 v{vF[4]}, v{vF[4]}, v{vF[6]}\nv_add_f32 v{vVal}, v{vF[0]}, v{vF[4]}")
    a(f"buffer_store_dwordx2 v[{vVal}:{vVal+1}], v{vPub}, {srd(SWS)}, 0 offen {stf}")
    stamp()
    a.label("L_aux_fin")
    dump()
    a("s_endpgm")

    a.label("L_gath")
    St.n = 0
    vGo, vGd = 6, 64
    tmp = list(range(12, 28))
    a(f"s_lshl_b32 s{sT0}, s{sG}, 13\ns_add_u32 s{sT0}, s{sT0}, {QP0}\nv_lshlrev_b32 v{vGo}, 10, v{vC}\nv_lshl_add_u32 v{vGo}, v{vR8}, 7, v{vGo}\nv_add_u32 v{vGo}, s{sT0}, v{vGo}")
    a(f"v_mov_b32 v28, 0\nv_mov_b32 v29, 0\nv_mov_b32 v30, 0\nv_mov_b32 v31, 0\nds_write_b128 v28, v[28:31] offset:{L_ZB}")
    a("s_waitcnt lgkmcnt(0)")
    get_tag()
    if tlb:
        a(f"s_lshl_b32 s{sT0}, s{sG}, 21\ns_add_u32 s{sT0}, s{sT0}, 0x180000\ns_add_u32 s40, s8, s{sT0}\ns_addc_u32 s41, s9, 0\ns_load_dword s44, s[40:41], 0")
        a(f"s_lshl_b32 s{sT0}, s{sG}, 17\ns_add_u32 s42, s12, s{sT0}\ns_addc_u32 s43, s13, 0\ns_load_dword s45, s[42:43], 0")
        a(f"s_mul_i32 s{sT0}, s{sG}, {43*1024}\ns_add_u32 s36, s18, s{sT0}\ns_addc_u32 s37, s19, 0\ns_load_dword s46, s[36:37], 0")
    a(f"s_mov_b32 s{SWS}, s24\ns_mov_b32 s{SWS+1}, s25\ns_mov_b32 s{SWS+2}, {ws_lim}\ns_mov_b32 s{SWS+3}, 0x20000")
    stamp()
    if b1: a("s_barrier")
    if b1b is not None: a("s_barrier")
    fin_tag()
    if touch:
        a(f"s_lshl_b32 s{sT0}, s{sG}, 3\ns_add_u32 s{sT0}, s{sT0}, s{sS}\ns_lshl_b32 s{sT0}, s{sT0}, 10\nv_lshlrev_b32 v40, 4, v{vL}\nv_add_u32 v40, s{sT0}, v40")
        if touch == 1:
            a(f"v_add_u32 v41, {QP0}, v40\nbuffer_load_dwordx4 v[44:47], v41, {srd(SWS)}, 0 offen {ldf}")
            a(f"v_add_u32 v41, {OP0}, v40\nbuffer_load_dwordx4 v[48:51], v41, {srd(SWS)}, 0 offen {ldf}")
        a(f"s_lshl_b32 s{sT0}, s{sS}, 5\ns_add_u32 s{sT0}, s{sT0}, s{sG}\ns_lshl_b32 s{sT0}, s{sT0}, 9\ns_add_u32 s{sT0}, s{sT0}, {YP0}\nv_lshlrev_b32 v41, 3, v{vL}\nv_add_u32 v41, s{sT0}, v41")
        a(f"buffer_load_dwordx2 v[52:53], v41, {srd(SWS)}, 0 offen {ldf}")
    a(f"s_lshl_b32 s{sT0}, s{sG}, 7\ns_lshl_b32 s{sT1}, s{sS}, 4\ns_add_u32 s{sT0}, s{sT0}, s{sT1}\ns_add_u32 s{sT0}, s{sT0}, {ML0}")
    a(f"v_lshlrev_b32 v34, 3, v{vL}\nv_add_u32 v34, s{sT0}, v34\nv_cmp_gt_u32 vcc, 2, v{vL}\nv_mov_b32 v35, {OOB}\nv_cndmask_b32 v34, v35, v34, vcc")
    a(f"v_mov_b32 v37, s{sTAG}\ns_mov_b32 s{sFQ}, {FASTQ if fastq else 0:#x}")
    if agather:
        lsp, lgo = a.newlabel("Lsp"), a.newlabel("Lgo")
        a.label(lsp)
        a(f"ds_read_b32 v32, v28 offset:{L_FLAG}\ns_waitcnt lgkmcnt(0)\nv_readfirstlane_b32 s{sT0}, v32\ns_cmp_eq_u32 s{sT0}, s{sTAG}\ns_cbranch_scc1 {lgo}")
        a(f"s_sleep 1\ns_sub_u32 s{sRETRY}, s{sRETRY}, 1\ns_cmp_gt_i32 s{sRETRY}, 0\ns_cbranch_scc1 {lsp}")
        a.label(lgo)
        a(f"s_mov_b32 s{sRETRY}, 100000")
        stamp()
        def g1a(so): return "\n".join(f"buffer_load_dwordx4 v[{vGd+4*k}:{vGd+4*k+3}], v{vGo}, {srd(SWS)}, {so} offen offset:{16*k} {ldf}" for k in range(8))
        first = g1a(f"s{sFQ}") if fastq else g1a("0")
        a(first)
        xr = poll("G1", None, [vGd + 2 * k + 1 for k in range(16)], tmp, first, q=True, reissue2=(g1a("0") if fastq else None))
        a(f"v_cmp_ne_u32 vcc, 0, v{xr}\ns_cmp_eq_u64 vcc, 0\ns_cselect_b32 s{sT1}, {FASTD if fast else 0}, 0\nv_mov_b32 v33, s{sT1}\nds_write_b32 v28, v33 offset:{L_FLAG+8}")
        stamp()
        qv = [vGd + 2 * k for k in range(16)]
        red8(qv)
        for k in range(8): a(f"v_cvt_pk_bf16_f32 v{12+k}, v{qv[2*k]}, v{qv[2*k+1]}")
        a(f"v_lshlrev_b32 v33, 5, v{vR8}")
        a(f"s_mov_b64 s[{sEX}:{sEX+1}], exec\ns_mov_b32 exec_lo, 0x01010101\ns_mov_b32 exec_hi, 0x01010101")
        a(f"ds_write_b128 v33, v[12:15] offset:{L_QB}\nds_write_b128 v33, v[16:19] offset:{L_QB+16}")
        a(f"s_mov_b64 exec, s[{sEX}:{sEX+1}]")
    a(f"s_mov_b32 s{sREG}, {FASTD}\ns_waitcnt vmcnt(0) lgkmcnt(0)")
    stamp()
    a("s_barrier\ns_barrier\ns_barrier")
    ls = 40
    for i in range(4): a(f"ds_read_b128 v[{ls+4*i}:{ls+4*i+3}], v28 offset:{L_LS+16*i}")
    a(f"ds_read_b32 v38, v28 offset:{L_FLAG+4}")
    a(f"v_cmp_eq_u32 vcc, 0, v{vL}\ns_waitcnt lgkmcnt(0)")
    for st in (1, 2, 4, 8):
        for i in range(0, 16, 2 * st): a(f"v_add_f32 v{ls+i}, v{ls+i}, v{ls+i+st}")
    a(f"v_cndmask_b32 v36, v{ls}, v38, vcc")
    if fast: a(f"buffer_store_dwordx2 v[36:37], v34, {srd(SWS)}, s{sREG} offen")
    a(f"buffer_store_dwordx2 v[36:37], v34, {srd(SWS)}, 0 offen {stf}")
    stamp()
    a("s_barrier")
    dump()
    a.label("L_end")
    a("s_endpgm")
    return wrap(a.text(), 256, 448, lds, vgpr=256, sgpr=102)

if __name__ == "__main__":
    out = sys.argv[1]
    kw = {}
    for arg in sys.argv[2:]:
        k, v = arg.split("=")
        if k == "vint": kw[k] = tuple(int(c) for c in v)
        else: kw[k] = int(v, 0) if re.fullmatch(r"-?(0x)?[0-9a-fA-F]+", v) and not v.startswith("sc") else v.replace("+", " ")
    open(out, "w").write(gen(**kw))
```

```python
import sys, re
from asmlib import *

QP0, HP0, OP0, ML0, YP0, WSLIM = 0x1000, 0x42000, 0x60000, 0xA0000, 0xB0000, 0x170000
FASTQ = 0x120000
FASTD = 0x70000
HP_STRIDE = 1408 * 8
STAMP0 = 0x180000
OOB = 0x10000000
TAGC = 0x9E3779B9

L_RO, L_RY = 0, 4096
L_XN0, L_XN1, L_RQ, L_RH = 8192, 9216, 10240, 11264
L_QB, L_ZB, L_FLAG, L_MX, L_LS = 12288, 12544, 12560, 12608, 12672
LDS_TOTAL = 98304

sW, sG, sS, sTAG = 26, 27, 28, 29
SA, SB, SWO, SW2, SWS, SX, SOUT = 32, 36, 40, 44, 48, 52, 56
sT0, sT1, sT2, sT3 = 30, 31, 60, 61
sO1, sO2, sO3 = 62, 63, 64
sC = [None, 66, 68, 70]
sSCALE, sLOG2E = 72, 73
sEX = 74
sRETRY, sFQ = 76, 77
sHV = 78
sCQ = 80
sBLK, sSROW, sHAS = 81, 82, 83
sMK = 84
sOFF, sTAGQ, sREG = 86, 87, 91
sOFW, sOF2, sN2 = 96, 97, 98
sRQ = 99
def srd(r): return f"s[{r}:{r+3}]"

def gen(stamps=False, trace=0, W=10, W0=4, vrest=10, vint=(6, 1, 1, 1, 0), pvn=3, stf='sc1', ldf='sc1', touch=1, tlb=1,
        prefetch=1, fast=1, fastq=1, agather=1, lds=LDS_TOTAL, g2pos=0, b1b=None, eplain=1, g1b=0, Wv=None, b1=1, g1pos=0, redmap=0, skipslow=0):
    a = Asm()
    ST = [92, 4, 6, 8, 10, 12, 14, 16, 18, 20]
    RT = {'G1': 88, 'G2': 89, 'G3': 90, 'G4': 90}
    class St: n = 0
    class Tr: n = 0
    def stamp():
        if stamps:
            i = St.n; St.n += 1
            assert i < 10
            a(f"s_memrealtime s[{ST[i]}:{ST[i]+1}]")
    def tr(level=2):
        if trace == level:
            a(f"s_memrealtime s[94:95]\ns_waitcnt lgkmcnt(0)\nv_writelane_b32 v27, s94, {Tr.n}")
            Tr.n += 1
    def dump(trace_too=False):
        if stamps:
            n = St.n
            if trace and trace_too:
                a(f"s_mov_b64 exec, -1\ns_lshl_b32 s{sT0}, s2, 2\ns_add_u32 s{sT0}, s{sT0}, s{sW}\ns_lshl_b32 s{sT0}, s{sT0}, 8\ns_add_u32 s{sT0}, s{sT0}, 0x1C0000\nv_lshlrev_b32 v2, 2, v1\nv_add_u32 v2, s{sT0}, v2")
                a(f"s_waitcnt lgkmcnt(0)\nbuffer_store_dword v27, v2, {srd(SWS)}, 0 offen")
            a("s_mov_b64 exec, 1\ns_waitcnt lgkmcnt(0) vmcnt(0)")
            a(f"s_lshl_b32 s{sT0}, s2, 3\ns_add_u32 s{sT0}, s{sT0}, s{sW}\ns_lshl_b32 s{sT0}, s{sT0}, 7\ns_add_u32 s{sT0}, s{sT0}, {STAMP0}\nv_mov_b32 v2, s{sT0}")
            a(f"v_mov_b32 v3, s100\nbuffer_store_dword v3, v2, {srd(SWS)}, 0 offen")
            a(f"v_mov_b32 v4, {n}\nbuffer_store_dword v4, v2, {srd(SWS)}, 0 offen offset:4")
            for i in range(n):
                a(f"v_mov_b32 v{30+i}, s{ST[i]}\nbuffer_store_dword v{30+i}, v2, {srd(SWS)}, 0 offen offset:{8+4*i}")
            for i, r in enumerate([88, 89, 90, sRETRY]):
                a(f"v_mov_b32 v{50+i}, s{r}\nbuffer_store_dword v{50+i}, v2, {srd(SWS)}, 0 offen offset:{64+4*i}")
        St.n = 0; Tr.n = 0

    vL, vI, vG4, vC, vR8 = 1, 2, 3, 4, 5
    def mk(r, p, nrec, offreg=None):
        if offreg is not None: a(f"s_add_u32 s{r}, s{p}, s{offreg}\ns_addc_u32 s{r+1}, s{p+1}, 0")
        else: a(f"s_mov_b32 s{r}, s{p}\ns_mov_b32 s{r+1}, s{p+1}")
        a(f"s_mov_b32 s{r+2}, {nrec}\ns_mov_b32 s{r+3}, 0x20000")
    def mfma(D, A, B, first):
        a(f"v_mfma_f32_16x16x32_bf16 v[{D}:{D+3}], v[{A}:{A+3}], v[{B}:{B+3}], " + ("0" if first else f"v[{D}:{D+3}]"))
    def dpp(op, v, m): a(f"v_{op}_dpp v{v}, v{v}, v{v} {m} row_mask:0xf bank_mask:0xf")
    def tagcheck(regs, tmp, mask=None, q=False):
        sT = sTAGQ if q else sTAG
        xs, regs, k = [], list(regs), 0
        while regs:
            if len(regs) >= 2:
                a(f"v_bitop3_b32 v{tmp[k]}, v{regs[0]}, v{regs[1]}, s{sT} bitop3:0x7e"); regs = regs[2:]
            else:
                a(f"v_xor_b32 v{tmp[k]}, s{sT}, v{regs[0]}"); regs = regs[1:]
            xs.append(tmp[k]); k += 1
        while len(xs) > 1:
            if len(xs) >= 3:
                a(f"v_or3_b32 v{xs[0]}, v{xs[0]}, v{xs[1]}, v{xs[2]}"); xs = xs[3:] + [xs[0]]
            else:
                a(f"v_or_b32 v{xs[0]}, v{xs[0]}, v{xs[1]}"); xs = [xs[0]]
        if q:
            a(f"v_and_b32 v{tmp[-1]}, 0xfffffff0, v{xs[0]}\nv_cmp_ne_u32 vcc, 0, v{tmp[-1]}")
            return xs[0]
        a(f"v_cmp_ne_u32 vcc, 0, v{xs[0]}")
        if mask is not None: a(f"s_and_b64 vcc, vcc, s[{mask}:{mask+1}]")
    def poll(name, waitname, regs, tmp, reissue, mask=None, q=False, reissue2=None):
        ok, rt = a.newlabel("Lok"), a.newlabel("Lrt")
        if waitname: a.wait(waitname)
        else: a("s_waitcnt vmcnt(0)")
        xr = tagcheck(regs, tmp, mask, q)
        a(f"s_cbranch_vccz {ok}")
        a.label(rt)
        for txt in ([reissue] if reissue2 is None else [reissue, reissue2]):
            a(f"s_sub_u32 s{sRETRY}, s{sRETRY}, 1")
            a(txt)
            a("s_waitcnt vmcnt(0)")
            tagcheck(regs, tmp, mask, q)
            a(f"s_cbranch_vccz {ok}")
        a(f"s_cmp_gt_i32 s{sRETRY}, 0\ns_cbranch_scc1 {rt}")
        a.label(ok)
        if stamps: a(f"s_mov_b32 s{RT[name]}, s{sRETRY}")
        return xr
    def red8(vals, op="add_f32"):
        for m in ("quad_perm:[1,0,3,2]", "quad_perm:[2,3,0,1]", "row_half_mirror"):
            for v in vals: dpp(op, v, m)
    def get_tag(): a(f"s_load_dword s{sTAG}, s[24:25], 0")
    def fin_tag(q=True):
        if q: a(f"s_getreg_b32 s{sTAGQ}, hwreg(HW_REG_XCC_ID, 0, 4)")
        a(f"s_waitcnt lgkmcnt(0)\ns_add_u32 s{sTAG}, s{sTAG}, {TAGC:#x}")
        if q: a(f"s_and_b32 s{sT3}, s{sTAG}, 0xfffffff0\ns_or_b32 s{sTAGQ}, s{sTAGQ}, s{sT3}")
    def addr_d(dst, d, tmp):
        a(f"v_lshrrev_b32 v{dst}, 5, v{d}\nv_lshlrev_b32 v{dst}, 6, v{dst}\nv_and_b32 v{tmp}, 7, v{d}\nv_lshl_add_u32 v{dst}, v{tmp}, 2, v{dst}\nv_bfe_u32 v{tmp}, v{d}, 3, 2\nv_add_lshl_u32 v{dst}, v{dst}, v{tmp}, 2")
    ws_lim = WSLIM if not stamps else 0x240000

    a("s_cmp_ge_u32 s2, 256\ns_cbranch_scc1 L_end")
    if stamps: a("s_memrealtime s[100:101]")
    a("s_load_dwordx16 s[4:19], s[0:1], 0")
    a("s_load_dwordx4 s[20:23], s[0:1], 64")
    a("s_load_dwordx2 s[24:25], s[0:1], 80")
    if prefetch:
        a("s_getpc_b64 s[84:85]")
        a.label("L_pc")
        a(f"v_lshlrev_b32 v8, 7, v0\nv_cmp_gt_u32 vcc, (L_end-L_pc)/128, v0\ns_and_saveexec_b64 s[{sEX}:{sEX+1}], vcc\ns_cbranch_execz L_pf_done")
        a("v_mov_b32 v9, s85\nv_add_co_u32 v8, vcc, s84, v8\nv_addc_co_u32 v9, vcc, 0, v9, vcc\nglobal_load_dword v248, v[8:9], off")
        a.label("L_pf_done")
        a(f"s_mov_b64 exec, s[{sEX}:{sEX+1}]")
    a(f"v_lshrrev_b32 v{vI}, 6, v0\nv_and_b32 v{vL}, 63, v0\nv_readfirstlane_b32 s{sW}, v{vI}")
    a(f"s_and_b32 s{sT0}, s2, 7\ns_lshr_b32 s{sT1}, s2, 3\ns_lshl_b32 s{sG}, s{sT0}, 2\ns_and_b32 s{sT2}, s{sT1}, 3\ns_add_u32 s{sG}, s{sG}, s{sT2}\ns_lshr_b32 s{sS}, s2, 5")
    a(f"v_and_b32 v{vI}, 15, v{vL}\nv_lshrrev_b32 v{vG4}, 4, v{vL}\nv_and_b32 v{vC}, 7, v{vL}\nv_lshrrev_b32 v{vR8}, 3, v{vL}")
    a(f"s_mov_b32 s{sRETRY}, 100000")
    if stamps: a(f"s_mov_b32 s88, 100000\ns_mov_b32 s89, 100000\ns_mov_b32 s90, 100000")
    a(f"s_cmp_ge_u32 s{sW}, 4\ns_cbranch_scc1 L_aux")

    vKo, vVo, vWOo, vW2o, vGq, vGm, vGh, vRAW, vSL = 6, 7, 8, 9, 10, 11, 12, 13, 14
    vQA = [15, 16, 17, 18]
    vOUT = 19; vM = [20, 21, 22, 23]; vXD, vMX, vG1 = 24, 25, 26
    vK, vV, vW2, vWO, vBq, vD = 28, 92, 156, 164, 180, 196
    vB0, vB1, vGa, vPP = 212, 216, 220, 232
    vF = list(range(236, 244)); t0, t1, t2, t3 = 244, 245, 246, 247
    vDo, vDy = 200, 204
    SK, SV = SA, SB
    a.vm = []
    a(f"v_lshrrev_b32 v{vKo}, 2, v{vI}\nv_and_b32 v{t0}, 3, v{vI}\nv_lshlrev_b32 v{vKo}, 12, v{vKo}\nv_lshl_add_u32 v{t0}, v{vG4}, 2, v{t0}\nv_lshl_add_u32 v{vKo}, v{t0}, 4, v{vKo}")
    a(f"s_lshl_b32 s{sT0}, s{sG}, 21\ns_lshl_b32 s{sT1}, s{sS}, 16\ns_add_u32 s{sT0}, s{sT0}, s{sT1}\ns_lshl_b32 s{sT1}, s{sW}, 10\ns_add_u32 s{sT0}, s{sT0}, s{sT1}\ns_add_u32 s{sOFF}, s{sT0}, 0x180000")
    a(f"s_mov_b32 s{sO1}, 16384\ns_mov_b32 s{sO2}, 32768\ns_mov_b32 s{sO3}, 49152")
    a(f"v_lshlrev_b32 v{vVo}, 12, v{vG4}\nv_lshl_add_u32 v{vVo}, v{vI}, 4, v{vVo}")
    a(f"v_lshlrev_b32 v{t0}, 4, v{t0}\nv_add_u32 v{t0}, {L_QB}, v{t0}\nv_mov_b32 v{t1}, {L_ZB}")
    for tt in range(4):
        m = 0x000F000F << (4 * tt)
        a(f"s_mov_b32 s{sMK}, {m:#x}\ns_mov_b32 s{sMK+1}, {m:#x}\nv_cndmask_b32 v{vQA[tt]}, v{t1}, v{t0}, s[{sMK}:{sMK+1}]")
    for c in range(1, 4):
        m = 0x11111111 << c
        a(f"s_mov_b32 s{sC[c]}, {m:#x}\ns_mov_b32 s{sC[c]+1}, {m:#x}")
    a(f"s_mov_b32 s{sSCALE}, 0x3db504f3\ns_mov_b32 s{sLOG2E}, 0x3fb8aa3b\ns_mov_b32 s{sFQ}, {FASTQ if fastq else 0:#x}")
    a("s_waitcnt lgkmcnt(0)")
    mk(SK, 6, 62464, sOFF); mk(SV, 8, 62464, sOFF)
    get_tag()
    so4 = ["0", f"s{sO1}", f"s{sO2}", f"s{sO3}"]
    def ldK(t): a.vmem(f"K{t}", f"buffer_load_dwordx4 v[{vK+4*t}:{vK+4*t+3}], v{vKo}, {srd(SK)}, {so4[t%4]} offen offset:{(t//4)*256} nt")
    def ldV(t): a.vmem(f"V{t}", f"buffer_load_dwordx4 v[{vV+4*t}:{vV+4*t+3}], v{vVo}, {srd(SV)}, {so4[t%4]} offen offset:{(t//4)*256} nt")
    def ldWO(t): a.vmem(f"wo{t}", f"buffer_load_dwordx4 v[{vWO+4*t}:{vWO+4*t+3}], v{vWOo}, {srd(SWO)}, 0 offen offset:{t*1024} nt")
    def ldW2(t): a.vmem(f"w2{t}", f"buffer_load_dwordx4 v[{vW2+4*t}:{vW2+4*t+3}], v{vW2o}, {srd(SW2)}, 0 offen offset:{t*1024} nt")
    g2txt = f"buffer_load_dwordx4 v[{vGa+8}:{vGa+11}], v{vGh}, {srd(SWS)}, 0 offen {ldf}"
    def ldG2(): a.vmem("G2", g2txt)
    def g1(so):
        return (f"buffer_load_dwordx4 v[{vGa}:{vGa+3}], v{vG1}, {srd(SWS)}, {so} offen {ldf}\n"
                f"buffer_load_dwordx4 v[{vGa+4}:{vGa+7}], v{vG1}, {srd(SWS)}, {so} offen offset:16 {ldf}")
    g1txt = g1(f"s{sFQ}") if fastq else g1("0")
    def ldG1():
        t_ = g1txt.split("\n"); a.vmem("G1a", t_[0]); a.vmem("G1b", t_[1])
    def ldG1B():
        a.vmem("G1c", f"buffer_load_dwordx4 v[{vWO}:{vWO+3}], v{vG1}, {srd(SWS)}, s{sFQ} offen {ldf}")
        a.vmem("G1d", f"buffer_load_dwordx4 v[{vWO+4}:{vWO+7}], v{vG1}, {srd(SWS)}, s{sFQ} offen offset:16 {ldf}")
    tailq = {0: [("G2", 0), ("W2", 0), ("W2", 1)] + [("WO", t) for t in range(4)],
             1: [("W2", 0), ("W2", 1)] + [("WO", t) for t in range(4)] + [("G2", 0)]}[g2pos]
    vs = [("V", t) for t in range(16)]
    if g1b and not agather: vs = vs[:g1b] + [("G1B", 0)] + vs[g1b:]
    if g1pos and not agather:
        queue = [("K", t) for t in range(16)] + vs[:g1pos] + [("G1", 0)] + vs[g1pos:] + tailq
    else:
        queue = [("K", t) for t in range(16)] + ([] if agather else [("G1", 0)]) + vs + tailq
    order = [(f"{k}{t}" if k in ("K", "V") else None) for k, t in queue]
    def nxt(n=1):
        for _ in range(n):
            if not queue: return
            k, t = queue.pop(0)
            {"K": lambda: ldK(t), "V": lambda: ldV(t), "G1": ldG1, "G1B": ldG1B, "G2": ldG2, "W2": lambda: ldW2(t), "WO": lambda: ldWO(t)}[k]()
    stamp()
    if b1: a("s_barrier")
    npre = 16 + (0 if agather else 1) + vrest + (1 if (g1b and not agather and g1b <= vrest) else 0)
    def nxt_free():
        n = 1; nxt()
        while queue and queue[0][0] in ("G1", "G1B"): nxt(); n += 1
        return n
    issued = 0
    while issued < min(W0, npre): issued += nxt_free()
    a(f"s_lshr_b32 s{sCQ}, s{sG}, 1")
    a(f"v_lshlrev_b32 v{vWOo}, 12, v{vR8}\nv_lshl_add_u32 v{vWOo}, v{vC}, 4, v{vWOo}")
    a(f"v_lshlrev_b32 v{vW2o}, 11, v{vR8}\nv_lshl_add_u32 v{vW2o}, v{vC}, 4, v{vW2o}")
    a(f"s_lshl_b32 s{sT0}, s{sG}, 7\ns_lshl_b32 s{sT1}, s{sW}, 5\ns_add_u32 s{sT0}, s{sT0}, s{sT1}\ns_lshl_b32 s{sT0}, s{sT0}, 10\ns_lshl_b32 s{sT1}, s{sS}, 7\ns_add_u32 s{sT0}, s{sT0}, s{sT1}")
    mk(SWO, 12, 31 * 1024 + 128, sT0)
    a(f"s_mul_i32 s{sT0}, s{sCQ}, 86\ns_and_b32 s{sT1}, s{sG}, 1\ns_mul_i32 s{sT2}, s{sT1}, 44\ns_add_u32 s{sT0}, s{sT0}, s{sT2}\ns_mul_i32 s{sT2}, s{sW}, 12\ns_add_u32 s{sT0}, s{sT0}, s{sT2}")
    a(f"s_lshl_b32 s{sT1}, s{sT1}, 1\ns_sub_u32 s{sT1}, 44, s{sT1}\ns_sub_u32 s{sT1}, s{sT1}, s{sT2}\ns_min_u32 s{sT3}, s{sT1}, 12")
    a(f"v_mul_u32_u24 v{vGh}, {HP_STRIDE}, v{vC}\nv_lshl_add_u32 v{vGh}, v{vR8}, 4, v{vGh}\ns_lshl_b32 s{sT1}, s{sT0}, 3\ns_add_u32 s{sT1}, s{sT1}, {HP0}\nv_add_u32 v{vGh}, s{sT1}, v{vGh}")
    a(f"v_lshlrev_b32 v{t0}, 1, v{vR8}\nv_cmp_gt_u32 s[{sHV}:{sHV+1}], s{sT3}, v{t0}\nv_mov_b32 v{t1}, {OOB}\nv_cndmask_b32 v{vGh}, v{t1}, v{vGh}, s[{sHV}:{sHV+1}]")
    a(f"s_lshl_b32 s{sT0}, s{sT0}, 10\ns_lshl_b32 s{sT1}, s{sS}, 7\ns_add_u32 s{sT0}, s{sT0}, s{sT1}")
    a(f"s_add_u32 s{SW2}, s18, s{sT0}\ns_addc_u32 s{SW2+1}, s19, 0\ns_sub_u32 s{sT3}, s{sT3}, 1\ns_lshl_b32 s{sT3}, s{sT3}, 10\ns_add_u32 s{SW2+2}, s{sT3}, 128\ns_mov_b32 s{SW2+3}, 0x20000")
    mk(SWS, 24, ws_lim); mk(SX, 4, 1024); mk(SOUT, 20, 1024)
    if redmap: a(f"s_lshr_b32 s{sRQ}, s{sG}, 3\ns_lshl_b32 s{sRQ}, s{sRQ}, 2\ns_and_b32 s{sT0}, s{sG}, 3\ns_or_b32 s{sRQ}, s{sRQ}, s{sT0}")
    else: a(f"s_mov_b32 s{sRQ}, s{sCQ}")
    a(f"s_lshl_b32 s{sT0}, s{sS}, 7\ns_lshl_b32 s{sT1}, s{sRQ}, 3\ns_add_u32 s{sT0}, s{sT0}, s{sT1}\nv_and_b32 v{vOUT}, 1, v{vL}\nv_lshlrev_b32 v{vOUT}, 2, v{vOUT}\nv_add_u32 v{vOUT}, s{sT0}, v{vOUT}")
    a(f"v_and_b32 v{t0}, 1, v{vL}\nv_lshlrev_b32 v{t0}, 4, v{t0}\nv_mov_b32 v{t1}, 0xffff\nv_lshlrev_b32 v{t0}, v{t0}, v{t1}")
    for w in range(4):
        m = 0x03030303 << (2 * w)
        a(f"s_mov_b32 s{sMK}, {m:#x}\ns_mov_b32 s{sMK+1}, {m:#x}\nv_cndmask_b32 v{vM[w]}, 0, v{t0}, s[{sMK}:{sMK+1}]")
    a(f"s_lshl_b32 s{sT0}, s{sG}, 13\ns_lshl_b32 s{sT1}, s{sW}, 8\ns_add_u32 s{sT0}, s{sT0}, s{sT1}\ns_add_u32 s{sT0}, s{sT0}, {OP0}")
    a(f"v_lshlrev_b32 v{vGq}, 10, v{vC}\nv_lshl_add_u32 v{vGq}, v{vR8}, 5, v{vGq}\nv_add_u32 v{vGq}, s{sT0}, v{vGq}")
    if not agather: a(f"v_subrev_u32 v{vG1}, {OP0-QP0}, v{vGq}")
    a(f"s_lshl_b32 s{sT0}, s{sG}, 7\ns_add_u32 s{sT0}, s{sT0}, {ML0}\nv_lshlrev_b32 v{vGm}, 4, v{vC}\nv_add_u32 v{vGm}, s{sT0}, v{vGm}")
    a(f"s_lshl_b32 s{sT0}, s{sW}, 10\nv_lshlrev_b32 v{vRAW}, 4, v{vL}\nv_add_u32 v{vRAW}, s{sT0}, v{vRAW}")
    a(f"s_lshl_b32 s{sT0}, s{sW}, 4\nv_lshlrev_b32 v{vSL}, 2, v{vG4}\nv_add_u32 v{vSL}, s{sT0}, v{vSL}")
    stamp()
    if b1b is not None:
        a("s_barrier")
        while issued < min(W, npre): issued += nxt_free()
    wi = 0
    while issued < npre:
        while order[wi] is None: wi += 1
        a.wait(order[wi]); wi += 1
        tr(1)
        issued += nxt_free()
        wcur = W if (Wv is None or (queue and queue[0][0] == "K")) else Wv
        if issued < npre and issued - wi < wcur: issued += nxt_free()
    fin_tag(q=not agather)
    a.wait("K15")
    tr()
    stamp()
    if not agather:
        g1regs = [vGa + 1, vGa + 3, vGa + 5, vGa + 7]
        if g1b:
            lg = a.newlabel("Lg1ok")
            a.wait("G1b")
            xr = tagcheck(g1regs, vF, None, True)
            a(f"s_cbranch_vccz {lg}")
            a.wait("G1d")
            for j in range(8): a(f"v_mov_b32 v{vGa+j}, v{vWO+j}")
            poll("G1", "G1d", g1regs, vF, g1("0"), q=True, reissue2=(g1txt if fastq else None))
            a.label(lg)
        else:
            xr = poll("G1", "G1b", g1regs, vF, g1("0"), q=True, reissue2=(g1txt if fastq else None))
        a(f"v_cmp_ne_u32 vcc, 0, v{xr}\ns_cmp_eq_u64 vcc, 0\ns_cselect_b32 s{sREG}, {FASTD if fast else 0}, 0")
        nxt(vint[0])
        qv = [vGa, vGa + 2, vGa + 4, vGa + 6]
        red8(qv)
        a(f"v_cvt_pk_bf16_f32 v{vGa}, v{qv[0]}, v{qv[1]}\nv_cvt_pk_bf16_f32 v{vGa+1}, v{qv[2]}, v{qv[3]}")
        a(f"s_lshl_b32 s{sT0}, s{sW}, 6\nv_lshlrev_b32 v{t0}, 3, v{vR8}\nv_add_u32 v{t0}, s{sT0}, v{t0}")
        a(f"s_mov_b64 s[{sEX}:{sEX+1}], exec\ns_mov_b32 exec_lo, 0x01010101\ns_mov_b32 exec_hi, 0x01010101")
        a(f"ds_write_b64 v{t0}, v[{vGa}:{vGa+1}] offset:{L_QB}")
        a(f"s_mov_b64 exec, s[{sEX}:{sEX+1}]")
        a(f"v_add_u32 v{vGq}, s{sREG}, v{vGq}\nv_add_u32 v{vGm}, s{sREG}, v{vGm}")
        if skipslow: a(f"v_mov_b32 v{t0}, s{sREG}\nv_mov_b32 v{t1}, 0\nds_write_b32 v{t1}, v{t0} offset:{L_FLAG+8}")
        a("s_waitcnt lgkmcnt(0)")
    tr()
    a("s_barrier")
    tr()
    for tt in range(4): a(f"ds_read_b128 v[{vBq+4*tt}:{vBq+4*tt+3}], v{vQA[tt]}")
    if agather:
        a(f"v_mov_b32 v{t2}, 0\nds_read_b32 v{t3}, v{t2} offset:{L_FLAG+8}")
        nxt(vint[0])
    a.vmem("xd", f"buffer_load_dword v{vXD}, v{vOUT}, {srd(SX)}, 0 offen")
    if not agather: nxt(vint[1])
    ex = 1 if agather else 0
    for tt in range(4):
        a(f"s_waitcnt lgkmcnt({3-tt+ex})")
        for u in range(4): mfma(vD + 4 * u, vK + 4 * (4 * u + tt), vBq + 4 * tt, tt == 0)
    if agather:
        a(f"s_waitcnt lgkmcnt(0)\nv_add_u32 v{vGq}, v{t3}, v{vGq}\nv_add_u32 v{vGm}, v{t3}, v{vGm}")
        nxt(vint[1])
    tr()
    nxt(vint[2])
    sc = vF[:4]
    for r_ in (1, 2, 3):
        for u in range(4):
            src0 = vD + 4 * u if r_ == 1 else sc[u]
            a(f"v_cndmask_b32 v{sc[u]}, v{src0}, v{vD+4*u+r_}, s[{sC[r_]}:{sC[r_]+1}]")
    for m in ("quad_perm:[1,0,3,2]", "quad_perm:[2,3,0,1]"):
        for u in range(4): dpp("add_f32", sc[u], m)
    def round2():
        for u in (0, 2): a(f"v_cvt_pk_bf16_f32 v{t0+u//2}, v{sc[u]}, v{sc[u+1]}")
        for u in (0, 2): a(f"v_lshlrev_b32 v{sc[u]}, 16, v{t0+u//2}\nv_and_b32 v{sc[u+1]}, 0xffff0000, v{t0+u//2}")
    round2()
    for u in range(4): a(f"v_mul_f32 v{sc[u]}, s{sSCALE}, v{sc[u]}")
    round2()
    a(f"v_max3_f32 v{t0}, v{sc[0]}, v{sc[1]}, v{sc[2]}\nv_max_f32 v{t0}, v{t0}, v{sc[3]}")
    for m in ("row_ror:4", "row_ror:8"): dpp("max_f32", t0, m)
    a(f"ds_write_b32 v{vSL}, v{t0} offset:{L_MX}")
    nxt(vint[3])
    a(f"v_mov_b32 v{t1}, 0")
    tr()
    a("s_waitcnt lgkmcnt(0)\ns_barrier")
    tr()
    mx = vD
    for i in range(4): a(f"ds_read_b128 v[{mx+4*i}:{mx+4*i+3}], v{t1} offset:{L_MX+16*i}")
    nxt(vint[4])
    a("s_waitcnt lgkmcnt(0)")
    a(f"v_max3_f32 v{mx}, v{mx}, v{mx+1}, v{mx+2}\nv_max3_f32 v{mx+3}, v{mx+3}, v{mx+4}, v{mx+5}\nv_max3_f32 v{mx+6}, v{mx+6}, v{mx+7}, v{mx+8}\nv_max3_f32 v{mx+9}, v{mx+9}, v{mx+10}, v{mx+11}\nv_max3_f32 v{mx+12}, v{mx+12}, v{mx+13}, v{mx+14}")
    a(f"v_max3_f32 v{mx}, v{mx}, v{mx+3}, v{mx+6}\nv_max3_f32 v{mx+9}, v{mx+9}, v{mx+12}, v{mx+15}\nv_max_f32 v{vMX}, v{mx}, v{mx+9}")
    for u in range(4): a(f"v_sub_f32 v{sc[u]}, v{sc[u]}, v{vMX}")
    for u in range(4): a(f"v_mul_f32 v{sc[u]}, s{sLOG2E}, v{sc[u]}")
    for u in range(4): a(f"v_exp_f32 v{sc[u]}, v{sc[u]}")
    for u in range(4): a(f"v_cvt_pk_bf16_f32 v{vPP+u}, v{sc[u]}, v{sc[u]}")
    Bs = [vB0, vB1]
    def build(dst, pp, d=None):
        for w in range(4):
            if d is None: a(f"v_and_b32 v{dst+w}, v{pp}, v{vM[w]}")
            else: a(f"v_and_b32_dpp v{dst+w}, v{pp}, v{vM[w]} {d} row_mask:0xf bank_mask:0xf")
    a(f"v_add_f32 v{t0}, v{sc[0]}, v{sc[1]}\nv_add_f32 v{t1}, v{sc[2]}, v{sc[3]}\nv_add_f32 v{t0}, v{t0}, v{t1}")
    build(Bs[0], vPP, "row_newbcast:0")
    for m in ("row_ror:4", "row_ror:8"): dpp("add_f32", t0, m)
    a(f"ds_write_b32 v{vSL}, v{t0} offset:{L_LS}")
    a(f"v_mov_b32 v{t1}, 0\nds_write_b32 v{t1}, v{vMX} offset:{L_FLAG+4}")
    tr()
    stamp()
    for t in range(16):
        if t + 1 < 16: build(Bs[(t + 1) % 2], vPP + (t + 1) // 4, f"row_newbcast:{4*((t+1)%4)}")
        a.wait(f"V{t}"); tr(1); mfma(vDo, vV + 4 * t, Bs[t % 2], t == 0); nxt(pvn)
    assert not queue
    tr()
    stamp()
    a(f"ds_write_b128 v{vRAW}, v[{vDo}:{vDo+3}] offset:{L_RO}")
    a("s_waitcnt lgkmcnt(0)\ns_barrier")
    tr()
    poll("G2", "G2", [vGa + 9, vGa + 11], vF, g2txt, mask=sHV)
    tr()
    hv = [vGa + 8, vGa + 10]
    red8(hv)
    a(f"v_cvt_pk_bf16_f32 v{t0}, v{hv[0]}, v{hv[1]}\nv_lshlrev_b32 v{hv[0]}, 16, v{t0}\nv_and_b32 v{hv[1]}, 0xffff0000, v{t0}")
    ev = [vF[0], vF[1]]
    for j in range(2): a(f"v_mul_f32 v{ev[j]}, s{sLOG2E}, v{hv[j]}")
    for j in range(2): a(f"v_exp_f32 v{ev[j]}, -v{ev[j]}")
    for j in range(2): a(f"v_add_f32 v{ev[j]}, 1.0, v{ev[j]}")
    for j in range(2): a(f"v_rcp_f32 v{ev[j]}, v{ev[j]}")
    for j in range(2): a(f"v_mul_f32 v{hv[j]}, v{hv[j]}, v{ev[j]}")
    for j in range(2): a(f"v_cvt_pk_bf16_f32 v{hv[j]}, v{hv[j]}, v{hv[j]}")
    for j in range(2): a(f"v_cndmask_b32 v{hv[j]}, 0, v{hv[j]}, s[{sHV}:{sHV+1}]")
    build(Bs[0], hv[0]); build(Bs[1], hv[1])
    g3txt = (f"buffer_load_dwordx4 v[{vGa}:{vGa+3}], v{vGq}, {srd(SWS)}, 0 offen {ldf}\n"
             f"buffer_load_dwordx4 v[{vGa+4}:{vGa+7}], v{vGq}, {srd(SWS)}, 0 offen offset:16 {ldf}\n"
             f"buffer_load_dwordx4 v[{vGa+8}:{vGa+11}], v{vGm}, {srd(SWS)}, 0 offen {ldf}")
    a.wait("w20"); mfma(vDy, vW2, Bs[0], True)
    a.wait("w21"); mfma(vDy, vW2 + 4, Bs[1], False)
    tr()
    stamp()
    a(g3txt)
    poll("G3", None, [vGa + 1, vGa + 3, vGa + 5, vGa + 7, vGa + 9, vGa + 11], vF, g3txt)
    tr()
    stamp()
    vm_, vl_ = vGa + 8, vGa + 10
    a(f"v_mov_b32 v{t0}, v{vm_}")
    red8([t0], "max_f32")
    a(f"v_sub_f32 v{t0}, v{vm_}, v{t0}\nv_mul_f32 v{t0}, s{sLOG2E}, v{t0}\nv_exp_f32 v{t0}, v{t0}")
    ov = [vGa, vGa + 2, vGa + 4, vGa + 6]
    a(f"v_mul_f32 v{vl_}, v{vl_}, v{t0}")
    for v in ov: a(f"v_mul_f32 v{v}, v{v}, v{t0}")
    red8([vl_] + ov)
    a(f"v_rcp_f32 v{vl_}, v{vl_}")
    for v in ov: a(f"v_mul_f32 v{v}, v{v}, v{vl_}")
    for v in ov: a(f"v_cvt_pk_bf16_f32 v{v}, v{v}, v{v}")
    build(Bs[0], ov[0])
    for t in range(4):
        if t + 1 < 4: build(Bs[(t + 1) % 2], ov[t + 1])
        mfma(vDy, vWO + 4 * t, Bs[t % 2], False)
    a(f"s_lshl_b32 s{sT0}, s{sS}, 14\ns_lshl_b32 s{sT1}, s{sRQ}, 5\ns_add_u32 s{sT0}, s{sT0}, s{sT1}\ns_add_u32 s{sT0}, s{sT0}, {YP0}")
    a(f"v_lshrrev_b32 v{t0}, 1, v{vL}\nv_lshlrev_b32 v{t0}, 9, v{t0}\nv_and_b32 v{t1}, 1, v{vL}\nv_lshl_add_u32 v{t0}, v{t1}, 4, v{t0}\nv_add_u32 v{vGq}, s{sT0}, v{t0}")
    a(f"ds_write_b128 v{vRAW}, v[{vDy}:{vDy+3}] offset:{L_RY}")
    tr()
    a("s_waitcnt lgkmcnt(0)\ns_barrier")
    tr()
    stamp()
    lfin = "L_main_fin"
    a(f"s_and_b32 s{sT0}, s{sG}, {4 if redmap else 1}\ns_or_b32 s{sT0}, s{sT0}, s{sW}\ns_cmp_eq_u32 s{sT0}, 0\ns_cbranch_scc0 {lfin}")
    g4txt = f"buffer_load_dwordx4 v[{vGa}:{vGa+3}], v{vGq}, {srd(SWS)}, 0 offen {ldf}"
    a(g4txt)
    a(f"v_lshlrev_b32 v{t2}, 16, v{vXD}\nv_and_b32 v{t3}, 0xffff0000, v{vXD}")
    poll("G4", None, [vGa + 1, vGa + 3], vF, g4txt)
    yv = [vGa, vGa + 2]
    for m in ("quad_perm:[2,3,0,1]", "row_ror:4", "row_ror:8"):
        for v in yv: dpp("add_f32", v, m)
    for sw in ("v_permlane16_swap_b32", "v_permlane32_swap_b32"):
        a(f"v_mov_b32 v{vF[0]}, v{yv[0]}\nv_mov_b32 v{vF[1]}, v{yv[1]}")
        a(f"{sw} v{yv[0]}, v{vF[0]}\n{sw} v{yv[1]}, v{vF[1]}")
        a(f"v_add_f32 v{yv[0]}, v{yv[0]}, v{vF[0]}\nv_add_f32 v{yv[1]}, v{yv[1]}, v{vF[1]}")
    a(f"v_add_f32 v{yv[0]}, v{yv[0]}, v{t2}\nv_add_f32 v{yv[1]}, v{yv[1]}, v{t3}\nv_cvt_pk_bf16_f32 v{yv[0]}, v{yv[0]}, v{yv[1]}")
    a("s_mov_b64 exec, 3")
    a(f"buffer_store_dword v{yv[0]}, v{vOUT}, {srd(SOUT)}, 0 offen")
    a(f"s_or_b32 s{sT0}, s{sS}, s{sG}\ns_cmp_eq_u32 s{sT0}, 0\ns_cbranch_scc0 {lfin}")
    a(f"s_mov_b64 exec, 1\nv_mov_b32 v{t0}, 0\nv_mov_b32 v{t1}, s{sTAG}\nbuffer_store_dword v{t1}, v{t0}, {srd(SWS)}, 0 offen" + ("" if eplain else " " + stf))
    a.label(lfin)
    stamp()
    dump(trace_too=True)
    a("s_endpgm")

    a.label("L_aux")
    a(f"s_cmp_eq_u32 s{sW}, 6\ns_cbranch_scc1 L_gath")
    vXA = 8
    vF = list(range(12, 20)); vE = list(range(20, 28))
    vSel = [[28 + 2 * w + p for p in range(2)] for w in range(4)]
    vPair = 36; vB = [44, 48]; vDp = 52; vWt = 64
    vOff, vRd, vPub, vVal = 6, 7, 56, 60
    u0, u1, u2, u3 = 57, 58, 59, 128
    vMU, vSD, vR = 129, 130, 131
    SWt = SA
    a(f"v_lshlrev_b32 v{u0}, 4, v{vL}")
    a(f"s_cmp_eq_u32 s{sW}, 5\ns_cbranch_scc1 L_w1_addr")
    a(f"v_lshlrev_b32 v{vOff}, 17, v{vG4}\nv_lshl_add_u32 v{vOff}, v{vI}, 4, v{vOff}")
    a(f"s_lshl_b32 s{sT0}, s{sS}, 19\ns_lshl_b32 s{sT1}, s{sG}, 8\ns_add_u32 s{sOFF}, s{sT0}, s{sT1}")
    a("s_waitcnt lgkmcnt(0)")
    mk(SX, 4, 1024)
    a.vm = []
    a.vmem("xa", f"buffer_load_dwordx4 v[{vXA}:{vXA+3}], v{u0}, {srd(SX)}, 0 offen")
    mk(SWt, 10, 63 * 8192 + 256, sOFF)
    a(f"s_mov_b32 s{sO1}, 0")
    for t in range(16):
        a.vmem(f"w{t}", f"buffer_load_dwordx4 v[{vWt+4*t}:{vWt+4*t+3}], v{vOff}, {srd(SWt)}, s{sO1} offen nt")
        if t < 15: a(f"s_add_u32 s{sO1}, s{sO1}, 8192")
    vm_wq = list(a.vm)
    a("s_branch L_aux_ld")
    a.label("L_w1_addr")
    a(f"s_and_b32 s{sT0}, s2, 7\ns_lshr_b32 s{sT1}, s2, 3\ns_mul_i32 s{sT0}, s{sT0}, 22\ns_add_u32 s{sT0}, s{sT0}, s{sT1}\ns_lshr_b32 s{sBLK}, s{sT0}, 3\ns_and_b32 s{sSROW}, s{sT0}, 7\ns_cmp_lt_u32 s{sT1}, 22\ns_cselect_b32 s{sHAS}, 1, 0")
    a(f"v_mul_u32_u24 v{vOff}, 22016, v{vR8}\nv_lshl_add_u32 v{vOff}, v{vC}, 4, v{vOff}")
    a(f"s_cmp_eq_u32 s{sBLK}, 21\ns_cselect_b32 s{sT0}, 4, 8\nv_cmp_le_u32 vcc, s{sT0}, v{vC}\nv_mov_b32 v{u1}, {OOB}\nv_cndmask_b32 v{vOff}, v{vOff}, v{u1}, vcc")
    a(f"s_mul_i32 s{sT0}, s{sSROW}, {64*2752}\ns_lshl_b32 s{sT1}, s{sBLK}, 7\ns_add_u32 s{sOFF}, s{sT0}, s{sT1}")
    a("s_waitcnt lgkmcnt(0)")
    mk(SX, 4, 1024)
    a(f"buffer_load_dwordx4 v[{vXA}:{vXA+3}], v{u0}, {srd(SX)}, 0 offen")
    a(f"s_add_u32 s{SWt}, s16, s{sOFF}\ns_addc_u32 s{SWt+1}, s17, 0\ns_sub_u32 s{sT0}, 1409024, s{sOFF}\ns_cmp_eq_u32 s{sHAS}, 1\ns_cselect_b32 s{SWt+2}, s{sT0}, 0\ns_mov_b32 s{SWt+3}, 0x20000")
    a(f"s_mov_b32 s{sO1}, 0")
    for t in range(8):
        a(f"buffer_load_dwordx4 v[{vWt+4*t}:{vWt+4*t+3}], v{vOff}, {srd(SWt)}, s{sO1} offen nt")
        if t < 7: a(f"s_add_u32 s{sO1}, s{sO1}, 2752")
    a.label("L_aux_ld")
    stamp()
    if b1: a("s_barrier")
    mk(SWS, 24, ws_lim)
    a(f"v_mov_b32 v{u1}, 0x0c0c0100\nv_mov_b32 v{u2}, 0x01000c0c\ns_mov_b32 s{sMK}, 0xaaaaaaaa\ns_mov_b32 s{sMK+1}, 0xaaaaaaaa\nv_cndmask_b32 v{vE[0]}, v{u1}, v{u2}, s[{sMK}:{sMK+1}]")
    a(f"v_mov_b32 v{u1}, 0x0c0c0302\nv_mov_b32 v{u2}, 0x03020c0c\nv_cndmask_b32 v{vE[1]}, v{u1}, v{u2}, s[{sMK}:{sMK+1}]\nv_mov_b32 v{u1}, 0x0c0c0c0c")
    for w in range(4):
        m = 0x03030303 << (2 * w)
        a(f"s_mov_b32 s{sMK}, {m:#x}\ns_mov_b32 s{sMK+1}, {m:#x}")
        for p in range(2): a(f"v_cndmask_b32 v{vSel[w][p]}, v{u1}, v{vE[p]}, s[{sMK}:{sMK+1}]")
    lx1, lx2 = a.newlabel("Lx"), a.newlabel("Lx")
    a(f"s_cmp_eq_u32 s{sW}, 5\ns_cbranch_scc1 {lx1}\ns_waitcnt vmcnt(16)\ns_branch {lx2}")
    a.label(lx1); a("s_waitcnt vmcnt(8)"); a.label(lx2)
    for j in range(4): a(f"v_lshlrev_b32 v{vF[2*j]}, 16, v{vXA+j}\nv_and_b32 v{vF[2*j+1]}, 0xffff0000, v{vXA+j}")
    def wave_sum(v, sdst):
        for m in ("quad_perm:[1,0,3,2]", "quad_perm:[2,3,0,1]", "row_half_mirror", "row_mirror"): dpp("add_f32", v, m)
        a(f"v_add_f32_dpp v{v}, v{v}, v{v} row_bcast:15 row_mask:0xa bank_mask:0xf")
        a(f"v_add_f32_dpp v{v}, v{v}, v{v} row_bcast:31 row_mask:0xc bank_mask:0xf")
        a(f"v_readlane_b32 s{sdst}, v{v}, 63")
    a(f"v_add_f32 v{u0}, v{vF[0]}, v{vF[1]}\nv_add_f32 v{u1}, v{vF[2]}, v{vF[3]}\nv_add_f32 v{u2}, v{vF[4]}, v{vF[5]}\nv_add_f32 v{u3}, v{vF[6]}, v{vF[7]}")
    a(f"v_add_f32 v{u0}, v{u0}, v{u1}\nv_add_f32 v{u2}, v{u2}, v{u3}\nv_add_f32 v{u0}, v{u0}, v{u2}")
    wave_sum(u0, sT0)
    a(f"v_mov_b32 v{u1}, 0x3b000000\nv_mul_f32 v{vMU}, s{sT0}, v{u1}")
    for j in range(8): a(f"v_sub_f32 v{vE[j]}, v{vF[j]}, v{vMU}")
    a(f"v_mul_f32 v{u0}, v{vE[0]}, v{vE[0]}\nv_mul_f32 v{u2}, v{vE[1]}, v{vE[1]}")
    for j in range(2, 8, 2): a(f"v_fmac_f32 v{u0}, v{vE[j]}, v{vE[j]}\nv_fmac_f32 v{u2}, v{vE[j+1]}, v{vE[j+1]}")
    a(f"v_add_f32 v{u0}, v{u0}, v{u2}")
    def rbf(v): a(f"v_cvt_pk_bf16_f32 v{v}, v{v}, v{v}\nv_and_b32 v{v}, 0xffff0000, v{v}")
    rbf(vMU)
    for j in range(8): a(f"v_sub_f32 v{vF[j]}, v{vF[j]}, v{vMU}")
    wave_sum(u0, sT0)
    for j in range(0, 8, 2): a(f"v_cvt_pk_bf16_f32 v{vE[j//2]}, v{vF[j]}, v{vF[j+1]}")
    a(f"v_mul_f32 v{u0}, s{sT0}, v{u1}")
    for j in range(0, 8, 2): a(f"v_lshlrev_b32 v{vF[j]}, 16, v{vE[j//2]}\nv_and_b32 v{vF[j+1]}, 0xffff0000, v{vE[j//2]}")
    rbf(u0)
    a(f"v_add_f32 v{u0}, 0x3727c5ac, v{u0}")
    rbf(u0)
    a(f"v_sqrt_f32 v{vSD}, v{u0}")
    rbf(vSD)
    a(f"v_rcp_f32 v{vR}, v{vSD}")
    for j in range(8): a(f"v_mul_f32 v{vF[j]}, v{vF[j]}, v{vR}")
    for j in range(0, 8, 2): a(f"v_cvt_pk_bf16_f32 v{vXA+j//2}, v{vF[j]}, v{vF[j+1]}")
    a(f"s_sub_u32 s{sT0}, s{sW}, 4\ns_lshl_b32 s{sT0}, s{sT0}, 10\nv_lshlrev_b32 v{u0}, 4, v{vL}\nv_add_u32 v{u0}, s{sT0}, v{u0}")
    a(f"ds_write_b128 v{u0}, v[{vXA}:{vXA+3}] offset:{L_XN0}")
    stamp()
    a(f"s_cmp_eq_u32 s{sW}, 5\ns_cbranch_scc1 L_prod_w1")
    a(f"s_lshl_b32 s{sT0}, s{sS}, 7\nv_lshlrev_b32 v{u1}, 5, v{vG4}\nv_add_u32 v{u1}, s{sT0}, v{u1}")
    a(f"ds_read_b128 v[{vPair}:{vPair+3}], v{u1} offset:{L_XN0}\nds_read_b128 v[{vPair+4}:{vPair+7}], v{u1} offset:{L_XN0+16}")
    a(f"v_lshrrev_b32 v{vRd}, 4, v{vL}\nv_lshlrev_b32 v{vRd}, 6, v{vRd}\nv_and_b32 v{u2}, 3, v{vL}\nv_lshl_add_u32 v{vRd}, v{u2}, 3, v{vRd}\nv_bfe_u32 v{u2}, v{vL}, 2, 2\nv_add_lshl_u32 v{vRd}, v{vRd}, v{u2}, 2")
    a(f"s_lshl_b32 s{sT0}, s{sG}, 3\ns_add_u32 s{sT0}, s{sT0}, s{sS}\ns_lshl_b32 s{sT0}, s{sT0}, 10\ns_add_u32 s{sT0}, s{sT0}, {QP0}\nv_lshlrev_b32 v{vPub}, 4, v{vL}\nv_add_u32 v{vPub}, s{sT0}, v{vPub}")
    a("s_waitcnt lgkmcnt(0)")
    get_tag()
    def pbuild(dst, t):
        for w in range(4): a(f"v_perm_b32 v{dst+w}, v{vPair+t//2}, v{vPair+t//2}, v{vSel[w][t%2]}")
    a.vm = vm_wq
    pbuild(vB[0], 0)
    for t in range(16):
        if t + 1 < 16: pbuild(vB[(t + 1) % 2], t + 1)
        a.wait(f"w{t}")
        if b1b is not None and t == b1b: a("s_barrier")
        mfma(vDp, vWt + 4 * t, vB[t % 2], t == 0)
    fin_tag()
    a(f"v_lshlrev_b32 v{u0}, 4, v{vL}\nv_mov_b32 v{vVal+1}, s{sTAGQ}\nv_mov_b32 v{vVal+3}, s{sTAGQ}")
    a(f"ds_write_b128 v{u0}, v[{vDp}:{vDp+3}] offset:{L_RQ}")
    a(f"ds_read_b32 v{vVal}, v{vRd} offset:{L_RQ}\nds_read_b32 v{vVal+2}, v{vRd} offset:{L_RQ+16}")
    a("s_waitcnt lgkmcnt(0)")
    if fastq: a(f"s_mov_b32 s{sFQ}, {FASTQ:#x}\nbuffer_store_dwordx4 v[{vVal}:{vVal+3}], v{vPub}, {srd(SWS)}, s{sFQ} offen")
    a(f"buffer_store_dwordx4 v[{vVal}:{vVal+3}], v{vPub}, {srd(SWS)}, 0 offen {stf}")
    if agather: a(f"v_mov_b32 v{u0}, 0\nv_mov_b32 v{u1}, s{sTAG}\nds_write_b32 v{u0}, v{u1} offset:{L_FLAG}")
    a("s_branch L_prod_done")
    a.label("L_prod_w1")
    a(f"s_lshl_b32 s{sT0}, s{sSROW}, 7\nv_lshlrev_b32 v{u1}, 4, v{vR8}\nv_add_u32 v{u1}, s{sT0}, v{u1}")
    a(f"ds_read_b128 v[{vPair}:{vPair+3}], v{u1} offset:{L_XN1}")
    addr_d(vRd, vL, u2)
    a(f"s_mul_i32 s{sT0}, s{sSROW}, {HP_STRIDE}\ns_lshl_b32 s{sT1}, s{sBLK}, 9\ns_add_u32 s{sT0}, s{sT0}, s{sT1}\ns_add_u32 s{sT0}, s{sT0}, {HP0}\ns_cmp_eq_u32 s{sHAS}, 1\ns_cselect_b32 s{sT0}, s{sT0}, {OOB}")
    a(f"v_lshlrev_b32 v{vPub}, 3, v{vL}\nv_add_u32 v{vPub}, s{sT0}, v{vPub}")
    a("s_waitcnt lgkmcnt(0)")
    get_tag()
    pbuild(vB[0], 0)
    for t in range(8):
        if t + 1 < 8: pbuild(vB[(t + 1) % 2], t + 1)
        a(f"s_waitcnt vmcnt({7-t})")
        if b1b is not None and t == 0: a("s_barrier")
        mfma(vDp, vWt + 4 * t, vB[t % 2], t == 0)
    fin_tag(q=False)
    a(f"v_lshlrev_b32 v{u0}, 4, v{vL}\nv_mov_b32 v{vVal+1}, s{sTAG}")
    a(f"ds_write_b128 v{u0}, v[{vDp}:{vDp+3}] offset:{L_RH}")
    a(f"ds_read_b32 v{vVal}, v{vRd} offset:{L_RH}\nds_read_b32 v{vVal+2}, v{vRd} offset:{L_RH+640}")
    a(f"s_waitcnt lgkmcnt(0)\nv_add_f32 v{vVal}, v{vVal}, v{vVal+2}")
    a(f"buffer_store_dwordx2 v[{vVal}:{vVal+1}], v{vPub}, {srd(SWS)}, 0 offen {stf}")
    a.label("L_prod_done")
    stamp()
    a(f"s_sub_u32 s{sT0}, s{sW}, 4\ns_lshl_b32 s{sT0}, s{sT0}, 6\nv_add_u32 v{u0}, s{sT0}, v{vL}")
    addr_d(vRd, u0, u2)
    a(f"s_lshl_b32 s{sT0}, s{sG}, 3\ns_add_u32 s{sT0}, s{sT0}, s{sS}\ns_lshl_b32 s{sT0}, s{sT0}, 10\ns_add_u32 s{sT0}, s{sT0}, {OP0}\nv_lshlrev_b32 v{vPub}, 3, v{u0}\nv_add_u32 v{vPub}, s{sT0}, v{vPub}")
    a(f"v_mov_b32 v{vVal+1}, s{sTAG}\ns_mov_b32 s{sREG}, {FASTD}")
    a("s_waitcnt lgkmcnt(0)\ns_barrier\ns_barrier\ns_barrier")
    o = L_RO // 256
    a(f"ds_read2st64_b32 v[{vF[0]}:{vF[1]}], v{vRd} offset0:{o} offset1:{o+4}\nds_read2st64_b32 v[{vF[2]}:{vF[3]}], v{vRd} offset0:{o+8} offset1:{o+12}")
    if skipslow: a(f"v_mov_b32 v{u1}, 0\nds_read_b32 v{u1}, v{u1} offset:{L_FLAG+8}")
    a(f"s_waitcnt lgkmcnt(0)\nv_add_f32 v{vF[0]}, v{vF[0]}, v{vF[1]}\nv_add_f32 v{vF[2]}, v{vF[2]}, v{vF[3]}\nv_add_f32 v{vVal}, v{vF[0]}, v{vF[2]}")
    if fast: a(f"buffer_store_dwordx2 v[{vVal}:{vVal+1}], v{vPub}, {srd(SWS)}, s{sREG} offen")
    if skipslow: a(f"v_readfirstlane_b32 s{sT0}, v{u1}\ns_cmp_lg_u32 s{sT0}, 0\ns_cbranch_scc1 L_noslow_o")
    a(f"buffer_store_dwordx2 v[{vVal}:{vVal+1}], v{vPub}, {srd(SWS)}, 0 offen {stf}")
    if skipslow: a.label("L_noslow_o")
    stamp()
    a(f"s_cmp_eq_u32 s{sW}, 5\ns_cbranch_scc0 L_ypub\ns_barrier\ns_branch L_aux_fin")
    a.label("L_ypub")
    addr_d(vRd, vL, u2)
    a(f"v_add_u32 v{u0}, 640, v{vRd}")
    a(f"s_lshl_b32 s{sT0}, s{sS}, 5\ns_add_u32 s{sT0}, s{sT0}, s{sG}\ns_lshl_b32 s{sT0}, s{sT0}, 9\ns_add_u32 s{sT0}, s{sT0}, {YP0}\nv_lshlrev_b32 v{vPub}, 3, v{vL}\nv_add_u32 v{vPub}, s{sT0}, v{vPub}")
    a("s_barrier")
    o = L_RY // 256
    a(f"ds_read2st64_b32 v[{vF[0]}:{vF[1]}], v{vRd} offset0:{o} offset1:{o+4}\nds_read2st64_b32 v[{vF[2]}:{vF[3]}], v{vRd} offset0:{o+8} offset1:{o+12}")
    a(f"ds_read2st64_b32 v[{vF[4]}:{vF[5]}], v{u0} offset0:{o} offset1:{o+4}\nds_read2st64_b32 v[{vF[6]}:{vF[7]}], v{u0} offset0:{o+8} offset1:{o+12}")
    a("s_waitcnt lgkmcnt(0)")
    a(f"v_add_f32 v{vF[0]}, v{vF[0]}, v{vF[1]}\nv_add_f32 v{vF[2]}, v{vF[2]}, v{vF[3]}\nv_add_f32 v{vF[4]}, v{vF[4]}, v{vF[5]}\nv_add_f32 v{vF[6]}, v{vF[6]}, v{vF[7]}")
    a(f"v_add_f32 v{vF[0]}, v{vF[0]}, v{vF[2]}\nv_add_f32 v{vF[4]}, v{vF[4]}, v{vF[6]}\nv_add_f32 v{vVal}, v{vF[0]}, v{vF[4]}")
    a(f"buffer_store_dwordx2 v[{vVal}:{vVal+1}], v{vPub}, {srd(SWS)}, 0 offen {stf}")
    stamp()
    a.label("L_aux_fin")
    dump()
    a("s_endpgm")

    a.label("L_gath")
    St.n = 0
    vGo, vGd = 6, 64
    tmp = list(range(12, 28))
    a(f"s_lshl_b32 s{sT0}, s{sG}, 13\ns_add_u32 s{sT0}, s{sT0}, {QP0}\nv_lshlrev_b32 v{vGo}, 10, v{vC}\nv_lshl_add_u32 v{vGo}, v{vR8}, 7, v{vGo}\nv_add_u32 v{vGo}, s{sT0}, v{vGo}")
    a(f"v_mov_b32 v28, 0\nv_mov_b32 v29, 0\nv_mov_b32 v30, 0\nv_mov_b32 v31, 0\nds_write_b128 v28, v[28:31] offset:{L_ZB}")
    a("s_waitcnt lgkmcnt(0)")
    get_tag()
    if tlb:
        a(f"s_lshl_b32 s{sT0}, s{sG}, 21\ns_add_u32 s{sT0}, s{sT0}, 0x180000\ns_add_u32 s40, s8, s{sT0}\ns_addc_u32 s41, s9, 0\ns_load_dword s44, s[40:41], 0")
        a(f"s_lshl_b32 s{sT0}, s{sG}, 17\ns_add_u32 s42, s12, s{sT0}\ns_addc_u32 s43, s13, 0\ns_load_dword s45, s[42:43], 0")
        a(f"s_mul_i32 s{sT0}, s{sG}, {43*1024}\ns_add_u32 s36, s18, s{sT0}\ns_addc_u32 s37, s19, 0\ns_load_dword s46, s[36:37], 0")
    a(f"s_mov_b32 s{SWS}, s24\ns_mov_b32 s{SWS+1}, s25\ns_mov_b32 s{SWS+2}, {ws_lim}\ns_mov_b32 s{SWS+3}, 0x20000")
    stamp()
    if b1: a("s_barrier")
    if b1b is not None: a("s_barrier")
    fin_tag()
    if touch:
        a(f"s_lshl_b32 s{sT0}, s{sG}, 3\ns_add_u32 s{sT0}, s{sT0}, s{sS}\ns_lshl_b32 s{sT0}, s{sT0}, 10\nv_lshlrev_b32 v40, 4, v{vL}\nv_add_u32 v40, s{sT0}, v40")
        if touch == 1:
            a(f"v_add_u32 v41, {QP0}, v40\nbuffer_load_dwordx4 v[44:47], v41, {srd(SWS)}, 0 offen {ldf}")
            a(f"v_add_u32 v41, {OP0}, v40\nbuffer_load_dwordx4 v[48:51], v41, {srd(SWS)}, 0 offen {ldf}")
        a(f"s_lshl_b32 s{sT0}, s{sS}, 5\ns_add_u32 s{sT0}, s{sT0}, s{sG}\ns_lshl_b32 s{sT0}, s{sT0}, 9\ns_add_u32 s{sT0}, s{sT0}, {YP0}\nv_lshlrev_b32 v41, 3, v{vL}\nv_add_u32 v41, s{sT0}, v41")
        a(f"buffer_load_dwordx2 v[52:53], v41, {srd(SWS)}, 0 offen {ldf}")
    a(f"s_lshl_b32 s{sT0}, s{sG}, 7\ns_lshl_b32 s{sT1}, s{sS}, 4\ns_add_u32 s{sT0}, s{sT0}, s{sT1}\ns_add_u32 s{sT0}, s{sT0}, {ML0}")
    a(f"v_lshlrev_b32 v34, 3, v{vL}\nv_add_u32 v34, s{sT0}, v34\nv_cmp_gt_u32 vcc, 2, v{vL}\nv_mov_b32 v35, {OOB}\nv_cndmask_b32 v34, v35, v34, vcc")
    a(f"v_mov_b32 v37, s{sTAG}\ns_mov_b32 s{sFQ}, {FASTQ if fastq else 0:#x}")
    if agather:
        lsp, lgo = a.newlabel("Lsp"), a.newlabel("Lgo")
        a.label(lsp)
        a(f"ds_read_b32 v32, v28 offset:{L_FLAG}\ns_waitcnt lgkmcnt(0)\nv_readfirstlane_b32 s{sT0}, v32\ns_cmp_eq_u32 s{sT0}, s{sTAG}\ns_cbranch_scc1 {lgo}")
        a(f"s_sleep 1\ns_sub_u32 s{sRETRY}, s{sRETRY}, 1\ns_cmp_gt_i32 s{sRETRY}, 0\ns_cbranch_scc1 {lsp}")
        a.label(lgo)
        a(f"s_mov_b32 s{sRETRY}, 100000")
        stamp()
        if agather == 2:
            a(f"s_lshl_b32 s{sT0}, s{sG}, 13\ns_add_u32 s{sT0}, s{sT0}, {QP0}\nv_lshlrev_b32 v{vGo}, 4, v{vL}\nv_add_u32 v{vGo}, s{sT0}, v{vGo}\nv_add_u32 v7, 4096, v{vGo}")
            def g1a(so): return "\n".join(f"buffer_load_dwordx4 v[{vGd+4*k}:{vGd+4*k+3}], v{vGo if k < 4 else 7}, {srd(SWS)}, {so} offen offset:{1024*(k%4)} {ldf}" for k in range(8))
        else:
            def g1a(so): return "\n".join(f"buffer_load_dwordx4 v[{vGd+4*k}:{vGd+4*k+3}], v{vGo}, {srd(SWS)}, {so} offen offset:{16*k} {ldf}" for k in range(8))
        first = g1a(f"s{sFQ}") if fastq else g1a("0")
        a(first)
        xr = poll("G1", None, [vGd + 2 * k + 1 for k in range(16)], tmp, first, q=True, reissue2=(g1a("0") if fastq else None))
        a(f"v_cmp_ne_u32 vcc, 0, v{xr}\ns_cmp_eq_u64 vcc, 0\ns_cselect_b32 s{sT1}, {FASTD if fast else 0}, 0\nv_mov_b32 v33, s{sT1}\nds_write_b32 v28, v33 offset:{L_FLAG+8}")
        stamp()
        if agather == 2:
            for lvl in ((0, 1), (2, 3), (4, 5), (6, 7), (0, 2), (4, 6), (0, 4)):
                for h in (0, 2):
                    a(f"v_add_f32 v{vGd+4*lvl[0]+h}, v{vGd+4*lvl[0]+h}, v{vGd+4*lvl[1]+h}")
            a(f"v_cvt_pk_bf16_f32 v12, v{vGd}, v{vGd+2}\nv_lshlrev_b32 v33, 2, v{vL}\nds_write_b32 v33, v12 offset:{L_QB}")
        else:
            qv = [vGd + 2 * k for k in range(16)]
            red8(qv)
            for k in range(8): a(f"v_cvt_pk_bf16_f32 v{12+k}, v{qv[2*k]}, v{qv[2*k+1]}")
            a(f"v_lshlrev_b32 v33, 5, v{vR8}")
            a(f"s_mov_b64 s[{sEX}:{sEX+1}], exec\ns_mov_b32 exec_lo, 0x01010101\ns_mov_b32 exec_hi, 0x01010101")
            a(f"ds_write_b128 v33, v[12:15] offset:{L_QB}\nds_write_b128 v33, v[16:19] offset:{L_QB+16}")
            a(f"s_mov_b64 exec, s[{sEX}:{sEX+1}]")
    a(f"s_mov_b32 s{sREG}, {FASTD}\ns_waitcnt vmcnt(0) lgkmcnt(0)")
    stamp()
    a("s_barrier\ns_barrier\ns_barrier")
    ls = 40
    for i in range(4): a(f"ds_read_b128 v[{ls+4*i}:{ls+4*i+3}], v28 offset:{L_LS+16*i}")
    a(f"ds_read_b32 v38, v28 offset:{L_FLAG+4}")
    if skipslow: a(f"ds_read_b32 v39, v28 offset:{L_FLAG+8}")
    a(f"v_cmp_eq_u32 vcc, 0, v{vL}\ns_waitcnt lgkmcnt(0)")
    for st in (1, 2, 4, 8):
        for i in range(0, 16, 2 * st): a(f"v_add_f32 v{ls+i}, v{ls+i}, v{ls+i+st}")
    a(f"v_cndmask_b32 v36, v{ls}, v38, vcc")
    if fast: a(f"buffer_store_dwordx2 v[36:37], v34, {srd(SWS)}, s{sREG} offen")
    if skipslow: a(f"v_readfirstlane_b32 s{sT0}, v39\ns_cmp_lg_u32 s{sT0}, 0\ns_cbranch_scc1 L_noslow_m")
    a(f"buffer_store_dwordx2 v[36:37], v34, {srd(SWS)}, 0 offen {stf}")
    if skipslow: a.label("L_noslow_m")
    stamp()
    a("s_barrier")
    dump()
    a.label("L_end")
    a("s_endpgm")
    return wrap(a.text(), 256, 448, lds, vgpr=256, sgpr=102)

if __name__ == "__main__":
    out = sys.argv[1]
    kw = {}
    for arg in sys.argv[2:]:
        k, v = arg.split("=")
        if k == "vint": kw[k] = tuple(int(c) for c in v)
        else: kw[k] = int(v, 0) if re.fullmatch(r"-?(0x)?[0-9a-fA-F]+", v) and not v.startswith("sc") else v.replace("+", " ")
    open(out, "w").write(gen(**kw))
```
